```python
import torch

def _softmax(x, axis=-1):
    return torch.softmax(x, dim=axis)
def _gelu(x):
    return torch.nn.functional.gelu(x, approximate="tanh")
def _silu(x):
    return torch.nn.functional.silu(x)
def _sigmoid(x):
    return torch.sigmoid(x)
def _layernorm(x, axis=-1, eps=1e-5):
    m = x.mean(dim=axis, keepdim=True)
    v = x.var(dim=axis, keepdim=True, unbiased=False)
    return (x - m) / torch.sqrt(v + eps)
def _scatter_add(tgt, idx, src, axis=0):
    return tgt.clone().index_add_(axis, idx, src)
def _segment_sum(src, seg, n):
    out = torch.zeros((n,) + src.shape[1:], dtype=src.dtype)
    return out.index_add_(0, seg, src)
def _pad(x, pw):
    flat = tuple(v for pair in reversed(pw) for v in pair)
    return torch.nn.functional.pad(x, flat)

kernel_name = 'standalone__mha_block_cached__near_ridge'

def setup_inputs():

    _w = (lambda a: (lambda t: t.to(torch.bfloat16) if t.is_floating_point() else t)(torch.as_tensor(a)))
    B, Sq, D = 16, 208, 1024
    H, Sk, Dh = 32, 1024, 128
    return {
        "x": _w((lambda *s: torch.randn(*s, dtype=torch.bfloat16) * 0.8)(B, Sq, D)),
        "k_cache": _w((lambda *s: torch.randn(*s, dtype=torch.bfloat16) * 0.8)(B, H, Sk, Dh)),
        "v_cache": _w((lambda *s: torch.randn(*s, dtype=torch.bfloat16) * 0.05)(B, H, Sk, Dh)),
        "wq": _w((lambda *s: torch.randn(*s, dtype=torch.bfloat16) * 0.8)(D, H * Dh) * (D ** -0.5)),
        "wo": _w((lambda *s: torch.randn(*s, dtype=torch.bfloat16) * 0.05)(H * Dh, D) * ((H * Dh) ** -0.5)),
    }

def reference(x, k_cache, v_cache, wq, wo):
    B, Sq, D = x.shape
    H, Dh = 32, 128
    q = (lambda x, *d: x.permute(*d))((x @ wq).reshape(B, Sq, H, Dh), 0, 2, 1, 3)
    scores = torch.einsum("bhqd,bhkd->bhqk", q, k_cache) * (Dh ** -0.5)
    p = _softmax(scores, axis=-1)
    o = torch.einsum("bhqk,bhkd->bhqd", p, v_cache)
    return (lambda x, *d: x.permute(*d))(o, 0, 2, 1, 3).reshape(B, Sq, H * Dh) @ wo
```

```python
import re

TRANS = ("v_exp_f32", "v_log_f32", "v_rcp_f32", "v_rsq_f32", "v_sqrt_f32")

def regs_of(tok):
    tok = tok.strip()
    if tok.startswith("-"): tok = tok[1:]
    m = re.fullmatch(r"abs\((.*)\)", tok)
    if m: tok = m.group(1)
    m = re.fullmatch(r"([vas])(\d+)", tok)
    if m: return {f"{m.group(1)}{m.group(2)}"}
    m = re.fullmatch(r"([vas])\[(\d+):(\d+)\]", tok)
    if m: return {f"{m.group(1)}{i}" for i in range(int(m.group(2)), int(m.group(3)) + 1)}
    if tok in ("vcc", "m0", "exec", "scc"): return {tok}
    if tok in ("vcc_lo", "vcc_hi"): return {"vcc"}
    return set()

class Ins:
    __slots__ = ("text", "op", "kind", "rd", "wr", "cregs", "abregs", "states", "lab")
    def __init__(self, text):
        self.text = text
        t = text.split(";")[0].strip()
        self.lab = None
        self.rd = set(); self.wr = set(); self.cregs = set(); self.abregs = set(); self.states = 1
        if not t or t.startswith(".") :
            self.kind = "none"; self.op = ""; self.states = 0; return
        if t.endswith(":"):
            self.kind = "label"; self.op = ""; self.states = 0; self.lab = t[:-1]; return
        parts = t.split(None, 1)
        op = parts[0]; self.op = op
        rest = parts[1] if len(parts) > 1 else ""
        ops = [o.strip() for o in rest.split(",")] if rest else []
        mods = ""
        if ops:
            last = ops[-1].split(None, 1)
            ops[-1] = last[0]
            mods = last[1] if len(last) > 1 else ""
        R = [regs_of(o) for o in ops]
        if op.startswith("v_mfma"):
            self.kind = "mfma"; self.wr = R[0]; self.abregs = R[1] | R[2]; self.cregs = R[3]; self.rd = self.abregs | self.cregs
        elif op.startswith("ds_read"):
            self.kind = "dsr"; self.wr = R[0]; self.rd = R[1]
        elif op.startswith("ds_write"):
            self.kind = "dsw"; self.rd = set().union(*R)
        elif op.startswith("buffer_load") or op.startswith("global_load"):
            if " lds" in (" " + mods) or "_lds_" in op:
                self.kind = "dma"; self.rd = set().union(*R) | {"m0"}
            else:
                self.kind = "vld"; self.wr = R[0]; self.rd = set().union(*R[1:])
        elif op.startswith("buffer_store") or op.startswith("global_store") or op.startswith("buffer_atomic") or op.startswith("global_atomic"):
            self.kind = "vst"; self.rd = set().union(*R)
        elif op.startswith("buffer_wbl2") or op.startswith("buffer_inv"):
            self.kind = "vmisc"
        elif op == "s_nop":
            self.kind = "nop"; self.states = int(ops[0], 0) + 1
        elif op == "s_waitcnt":
            self.kind = "wait"
        elif op.startswith("s_load") or op.startswith("s_memtime") or op.startswith("s_memrealtime"):
            self.kind = "smem"; self.wr = R[0]; self.rd = set().union(*R[1:]) if len(R) > 1 else set()
        elif op.startswith("s_"):
            self.kind = "salu"
            if op.startswith("s_cmp") or op.startswith("s_bitcmp"):
                self.rd = set().union(*R); self.wr = {"scc"}
            elif op.startswith("s_cbranch") or op in ("s_branch", "s_barrier", "s_endpgm", "s_setprio", "s_sleep"):
                pass
            else:
                self.wr = R[0] if R else set(); self.rd = set().union(*R[1:]) if len(R) > 1 else set()
        elif op.startswith("v_"):
            self.kind = "trans" if op.replace("_e32", "").replace("_e64", "") in TRANS else "valu"
            if op.startswith("v_permlane") and "swap" in op:
                self.wr = R[0] | R[1]; self.rd = R[0] | R[1]
            elif op.startswith("v_cmp"):
                self.wr = R[0]; self.rd = set().union(*R[1:])
            elif op.startswith("v_add_co") or op.startswith("v_addc_co") or op.startswith("v_sub_co"):
                self.wr = R[0] | R[1]; self.rd = set().union(*R[2:])
            else:
                self.wr = R[0]; self.rd = set().union(*R[1:]) if len(R) > 1 else set()
                if op.startswith("v_fmac") or op.startswith("v_pk_fmac"): self.rd |= R[0]
                if op.startswith("v_cndmask") and len(R) == 3: self.rd |= {"vcc"}
        else:
            raise ValueError("unknown instr " + text)

def wait_vals(text):
    vm = re.search(r"vmcnt\((\d+)\)", text); lg = re.search(r"lgkmcnt\((\d+)\)", text)
    return (int(vm.group(1)) if vm else None, int(lg.group(1)) if lg else None)

def isv(r): return r[0] in "va" and r[1:].isdigit()

def required_gap(p, c):
    need = 0
    pv = p.kind in ("valu", "trans")
    cv = c.kind in ("valu", "trans")
    if pv:
        w = p.wr
        if c.kind == "mfma" and (w & c.rd): need = max(need, 2)
        if p.kind == "trans" and c.kind == "valu" and (w & c.rd): need = max(need, 1)
        if c.op.startswith("v_permlane") and (w & c.rd): need = max(need, 2)
        if c.op.startswith("v_readfirstlane") or c.op.startswith("v_readlane"):
            if w & c.rd: need = max(need, 1)
        sw = {r for r in w if not isv(r)}
        if sw:
            if c.kind in ("dma", "vld", "vst") and (sw & c.rd): need = max(need, 5)
            if cv and (sw & c.rd): need = max(need, 2)
            if c.kind == "salu" and (sw & c.rd): need = max(need, 1)
        if "dpp" in c.text or "row_" in c.text:
            if w & c.rd: need = max(need, 2)
    if p.kind == "mfma":
        passes = 4 if "16x16x32" in p.op else 8
        d = p.wr
        big = {4: 8, 8: 12}[passes]
        if c.kind == "mfma":
            if d & c.abregs: need = max(need, big)
            if d & c.cregs and c.cregs != d: need = max(need, {4: 6, 8: 10}[passes])
            if d & c.wr and not (c.cregs == d and c.wr == d):
                need = max(need, {4: 6, 8: 10}[passes])
        elif cv:
            if d & (c.rd | c.wr): need = max(need, big)
            if p.cregs & c.wr: need = max(need, {4: 3, 8: 7}[passes])
        elif c.kind in ("dsr", "dsw", "dma", "vld", "vst"):
            if d & (c.rd | c.wr): need = max(need, big)
            if p.cregs & c.wr: need = max(need, big)
    if p.kind == "salu" and "m0" in p.wr and c.kind == "dma": need = max(need, 1)
    if p.kind in ("vst", "dsw") and ("x4" in p.op or "x3" in p.op or "b128" in p.op):
        if cv and (p.rd & c.wr): need = max(need, 2)
    return need

class Prog:
    def __init__(self):
        self.ins = []
    def e(self, text):
        for line in text.split("\n"):
            line = line.strip()
            if line: self.ins.append(Ins(line))
    def extend(self, lst):
        for t in lst: self.e(t)
    def text(self):
        out = []
        for i in self.ins:
            if i.kind == "label" or i.text.startswith("."): out.append(i.text)
            else: out.append("    " + i.text)
        return "\n".join(out) + "\n"

def fix_hazards(seq, prev=(), verbose=False, tag=""):
    out = []
    hist = list(prev)[-24:]
    n = 0
    for c in seq:
        if c.states == 0:
            out.append(c); continue
        dist = 0; worst = 0; why = None
        for p in reversed(hist):
            need = required_gap(p, c)
            if need - dist > worst: worst = need - dist; why = p
            dist += p.states
            if dist > 16: break
        if worst > 0:
            nop = Ins(f"s_nop {worst-1}")
            out.append(nop); hist.append(nop); n += 1
            if verbose: print(f"[{tag}] nop {worst} before '{c.text}' after '{why.text}'")
        out.append(c); hist.append(c)
        if len(hist) > 40: hist = hist[-24:]
    return out, n

def fix_lgkm(seq, state=None, verbose=False, tag=""):
    q = list(state) if state else []
    out = []
    n = 0
    for c in seq:
        if c.states == 0:
            out.append(c); continue
        if c.kind == "wait":
            vm, lg = wait_vals(c.text)
            if lg is not None and len(q) > lg: q = q[len(q) - lg:] if lg else []
            out.append(c); continue
        touch = c.rd | c.wr
        idx = -1
        for k, pend in enumerate(q):
            if pend & touch: idx = k
        if idx >= 0:
            N = len(q) - idx - 1
            N = min(N, 15)
            w = Ins(f"s_waitcnt lgkmcnt({N})")
            out.append(w); n += 1
            q = q[len(q) - N:] if N else []
            if verbose: print(f"[{tag}] lgkm({N}) before '{c.text}'")
        if c.kind == "dsr": q.append(set(c.wr))
        elif c.kind == "dsw": q.append(set())
        elif c.kind == "smem": q.append(set(c.wr))
        out.append(c)
    return out, q, n

def check_vm(seq, state=None, tag=""):
    q = list(state) if state else []
    for c in seq:
        if c.states == 0: continue
        if c.kind == "wait":
            vm, lg = wait_vals(c.text)
            if vm is not None and len(q) > vm: q = q[len(q) - vm:] if vm else []
            continue
        touch = c.rd | c.wr
        if c.kind == "vld" and c.wr == {"v255"}: touch = c.rd
        for k, pend in enumerate(q):
            if pend & touch:
                raise RuntimeError(f"[{tag}] vmcnt hazard at '{c.text}' needs vmcnt({len(q)-k-1})")
        if c.kind == "vld": q.append(set(c.wr))
        elif c.kind in ("dma", "vst", "vmisc"): q.append(set())
        if len(q) > 63: q = q[1:]
    return q

def finalize_straight(seq, prev=(), lg=None, vm=None, tag="", verbose=False):
    seq, lg, n1 = fix_lgkm(seq, lg, verbose, tag)
    seq, n2 = fix_hazards(seq, prev, verbose, tag)
    vm = check_vm(seq, vm, tag)
    return seq, lg, vm

def finalize_loop(body, prev=(), lg=None, vm=None, tag="", verbose=False):
    b = body
    st = lg
    for it in range(4):
        b2, st2, n = fix_lgkm(b, st, verbose, tag)
        b = b2
        st = st2
        if n == 0 and it > 0: break
    _, s1, n1 = fix_lgkm(b, lg); _, s2, n2 = fix_lgkm(b, s1)
    assert n1 == 0 and n2 == 0
    b, _ = fix_hazards(b, prev, verbose, tag)
    b, _ = fix_hazards(b, b, verbose, tag + "/back")
    _, n = fix_hazards(b, prev); assert n == 0
    v1 = check_vm(b, vm, tag); v2 = check_vm(b, v1, tag + "/back"); v3 = check_vm(b, v2, tag + "/back2")
    return b, s2, v3
```

```python
from asmgen import *
from gen_k2 import mf, vr, ar, WS_O_BYTES_PER_B
import struct, math

SLOT = 32768
NSLOT = 5
PI = (0, 3, 2, 1)
QSCALE = math.log2(math.e) / math.sqrt(128.0)
def f32bits(x): return struct.unpack("<I", struct.pack("<f", x))[0]

def O_(c, dt):
    return vr(c * 32 + dt * 4) if c < 6 else ar(208 + dt * 4)
def NEGM(c): return 192 + 4 * c
def S_(buf, kt): return 220 + buf * 8 + kt * 4
def P_(buf): return 236 + buf * 4
V_KA, V_VA0, V_VA1 = 244, 245, 246
V_KV = 248
V_LANE = 247
V_T = 252
V_QW = 208
V_QX = 212
V_QRW, V_QRX = 216, 217
def Q_(c, ds): return c * 16 + ds * 4
def K_(kt, ds): return 112 + kt * 16 + ds * 4
def V_(dt): return 144 + dt * 4
def L_(c): return 176 + 4 * c
ONES = 204
def QA(buf, j2, u): return 112 + buf * 60 + (j2 * 2 + u) * 4
def QB(buf, c): return 112 + buf * 60 + 32 + c * 4
def QACC(c, j2, u, p):
    if c < 6: return (c * 8 + j2 * 2 + u) * 4
    return (48 + (j2 - 2 * p) * 2 + u) * 4
S_WAVE, S_HH, S_B, S_HP = 24, 25, 26, 27
S_CNT = 28
S_DST = 29
S_XO, S_WO = 30, 31
S_KO, S_KO2 = 32, 33
S_DELTA = 34
S_M0W, S_M0X, S_M0KV = 35, 36, 37
S_M0A = 38
S_RD = 39
S_T = 40
S_FLAG = 48

XREG = 16640

class Place:
    def __init__(self): self.m = []; self.g = []; self.cap = []
    def add(self, m, cap=2, fixed=()):
        self.m.append(m); self.g.append(list(fixed)); self.cap.append(cap)
    def put(self, pos, items, per=None):
        for it in items:
            while pos < len(self.m) - 1 and self.cap[pos] <= 0: pos += 1
            self.g[pos].append(it); self.cap[pos] -= 1 + it.count("\n")
        return pos
    def ins(self, lo=0, hi=None):
        out = []
        for k in range(lo, len(self.m) if hi is None else hi):
            if self.m[k]: out.append(Ins(self.m[k]))
            for x in self.g[k]:
                for line in x.split("\n"): out.append(Ins(line))
        return out

def ring_next(reg, tmp=S_T):
    return [f"s_add_u32 s{reg}, s{reg}, {SLOT}", f"s_cmp_eq_u32 s{reg}, {SLOT*NSLOT}\ns_cselect_b32 s{reg}, 0, s{reg}"]

def gen_k1(name="attn_kernel", opt=None):
    opt = opt or {}
    dbg = opt.get("dbg", None)
    P = Prog(); e = P.e
    e(f".p2align 8\n.type {name},@function\n{name}:")
    e("s_cmp_ge_u32 s2, 256\ns_cbranch_scc1 L1_end")
    e("s_load_dwordx4 s[40:43], s[0:1], 0")
    e("s_load_dwordx4 s[44:47], s[0:1], 16")
    e("s_load_dwordx2 s[4:5], s[0:1], 56")
    e(f"v_lshrrev_b32 v{V_T}, 6, v0")
    e(f"v_and_b32 v{V_LANE}, 63, v0")
    e(f"v_readfirstlane_b32 s{S_WAVE}, v{V_T}")
    e("s_and_b32 s50, s2, 7\ns_lshr_b32 s51, s2, 3")
    e(f"s_lshr_b32 s{S_B}, s50, 1\ns_lshl_b32 s{S_B}, s{S_B}, 2\ns_lshr_b32 s52, s51, 3\ns_add_u32 s{S_B}, s{S_B}, s52")
    e(f"s_and_b32 s{S_HP}, s50, 1\ns_lshl_b32 s{S_HP}, s{S_HP}, 3\ns_and_b32 s52, s51, 7\ns_add_u32 s{S_HP}, s{S_HP}, s52")
    e(f"s_lshr_b32 s{S_HH}, s{S_WAVE}, 1")
    e("s_waitcnt lgkmcnt(0)")
    e(f"s_mul_i32 s52, s{S_B}, 425984")
    e("s_add_u32 s8, s40, s52\ns_addc_u32 s9, s41, 0\ns_mov_b32 s10, 425984\ns_mov_b32 s11, 0x20000")
    e(f"s_lshl_b32 s52, s{S_HP}, 9")
    e("s_add_u32 s12, s46, s52\ns_addc_u32 s13, s47, 0\ns_sub_u32 s12, s12, 4096\ns_subb_u32 s13, s13, 0")
    e(f"s_sub_u32 s14, {8388608+4096}, s52\ns_mov_b32 s15, 0x20000")
    e(f"s_and_b32 s53, s{S_WAVE}, 1\ns_cmp_eq_u32 s53, 0")
    e("s_cselect_b32 s16, s42, s44\ns_cselect_b32 s17, s43, s45")
    e(f"s_lshl_b32 s52, s{S_B}, 5\ns_lshl_b32 s54, s{S_HP}, 1\ns_add_u32 s52, s52, s54\ns_add_u32 s52, s52, s{S_HH}")
    e("s_lshl_b32 s54, s52, 18")
    e("s_add_u32 s16, s16, s54\ns_addc_u32 s17, s17, 0\ns_mov_b32 s18, 262144\ns_mov_b32 s19, 0x20000")
    e(f"s_mul_i32 s52, s{S_B}, {WS_O_BYTES_PER_B}")
    e(f"s_add_u32 s20, s4, s52\ns_addc_u32 s21, s5, 0\ns_mov_b32 s22, {WS_O_BYTES_PER_B}\ns_mov_b32 s23, 0x20000")
    if dbg:
        e("s_add_u32 s60, s4, 0x4000000\ns_addc_u32 s61, s5, 0\ns_mov_b32 s62, 0x4000000\ns_mov_b32 s63, 0x20000")
    L = V_LANE
    t0, t1, t2, t3 = V_T, V_T + 1, V_T + 2, V_T + 3
    e(f"v_lshrrev_b32 v{t0}, 2, v{L}\nv_and_b32 v{t0}, 3, v{t0}")
    e(f"v_lshrrev_b32 v{t1}, 4, v{L}")
    e(f"v_and_b32 v{t2}, 3, v{L}")
    e(f"v_lshlrev_b32 v{V_QW}, 13, v{t0}")
    e(f"v_lshl_add_u32 v{V_QW}, v{t1}, 6, v{V_QW}")
    e(f"v_lshl_add_u32 v{V_QW}, v{t2}, 4, v{V_QW}")
    e(f"s_lshl_b32 s52, s{S_WAVE}, 16\ns_add_u32 s52, s52, 4096")
    e(f"v_add_u32 v{V_QW}, s52, v{V_QW}")
    for i in range(1, 4):
        hh2, uk = i >> 1, i & 1
        d = uk * 4 * 8192 + hh2 * 256 - i * 1024
        if d >= 0: e(f"v_add_u32 v{V_QW+i}, {d}, v{V_QW}")
        else: e(f"v_subrev_u32 v{V_QW+i}, {-d}, v{V_QW}")
    e(f"v_sub_u32 v{t3}, 4, v{t1}\nv_and_b32 v{t3}, 3, v{t3}")
    e(f"v_xor_b32 v{t3}, v{t3}, v{t2}")
    e(f"v_lshrrev_b32 v{V_QX}, 2, v{L}\nv_lshlrev_b32 v{V_QX}, 11, v{V_QX}")
    e(f"v_lshl_add_u32 v{V_QX}, v{t3}, 4, v{V_QX}")
    e(f"s_lshl_b32 s52, s{S_WAVE}, 2\ns_lshr_b32 s52, 0x7a40, s52\ns_and_b32 s52, s52, 15")
    e("s_lshl_b32 s54, s52, 15")
    e(f"v_add_u32 v{V_QX}, s54, v{V_QX}")
    for i in range(1, 4): e(f"v_add_u32 v{V_QX+i}, {i*(32768-1024)}, v{V_QX}")
    e(f"s_lshl_b32 s{S_M0X}, s52, 10\ns_add_u32 s{S_M0X}, s{S_M0X}, {XREG}")
    e(f"s_mul_i32 s{S_M0W}, s53, 8200\ns_lshl_b32 s54, s{S_HH}, 12\ns_add_u32 s{S_M0W}, s{S_M0W}, s54")
    e(f"s_lshl_b32 s{S_M0KV}, s{S_WAVE}, 13")
    e(f"v_and_b32 v{V_QRW}, 1, v{t1}\nv_mul_u32_u24 v{V_QRW}, 8200, v{V_QRW}")
    e(f"v_lshrrev_b32 v{V_QRX}, 1, v{t1}\nv_lshl_add_u32 v{V_QRW}, v{V_QRX}, 12, v{V_QRW}")
    e(f"v_and_b32 v{V_QRX}, 15, v{L}\nv_lshl_add_u32 v{V_QRW}, v{V_QRX}, 4, v{V_QRW}")
    e(f"s_lshl_b32 s54, s{S_HH}, 11\nv_add_u32 v{V_QRW}, s54, v{V_QRW}")
    e(f"v_sub_u32 v{t3}, 4, v{t0}\nv_and_b32 v{t3}, 3, v{t3}\nv_xor_b32 v{t3}, v{t3}, v{t1}\nv_lshlrev_b32 v{t3}, 4, v{t3}")
    e(f"v_lshl_add_u32 v{V_QRX}, v{V_QRX}, 6, v{t3}")
    e(f"v_add_u32 v{V_QRX}, {XREG}, v{V_QRX}")
    e(f"v_lshl_add_u32 v{V_KA}, v{t0}, 10, v{t3}\nv_lshl_add_u32 v{V_KA}, v{t2}, 6, v{V_KA}")
    e(f"s_lshl_b32 s54, s{S_HH}, 14\ns_add_u32 s54, s54, {2*SLOT}")
    e(f"v_add_u32 v{V_KA}, s54, v{V_KA}")
    e(f"v_lshlrev_b32 v{V_VA0}, 10, v{t1}\nv_lshl_add_u32 v{V_VA0}, v{t0}, 6, v{V_VA0}\nv_lshl_add_u32 v{V_VA0}, v{t2}, 3, v{V_VA0}")
    e(f"s_add_u32 s54, s54, 8192\nv_add_u32 v{V_VA0}, s54, v{V_VA0}")
    e(f"v_and_b32 v{t3}, 1, v{t1}\nv_lshl_add_u32 v{V_VA0}, v{t3}, 5, v{V_VA0}")
    e(f"v_xor_b32 v{V_VA1}, 32, v{V_VA0}")
    e(f"v_lshlrev_b32 v{V_KV}, 8, v{t0}\nv_lshl_add_u32 v{V_KV}, v{t1}, 6, v{V_KV}\nv_lshl_add_u32 v{V_KV}, v{t2}, 4, v{V_KV}")
    e(f"s_mov_b32 s{S_DST}, 0\ns_mov_b32 s{S_RD}, 0\ns_mov_b32 s{S_XO}, 0\ns_mov_b32 s{S_WO}, 0\ns_mov_b32 s{S_KO}, 0\ns_mov_b32 s{S_KO2}, 4096\ns_mov_b32 s{S_FLAG}, 0")
    e("s_cmp_eq_u32 s53, 1\ns_cbranch_scc1 L1_p1")
    head, _, _ = finalize_straight(P.ins, tag="k1head")
    out = list(head)
    for p in range(2):
        out += gen_path(p, head, opt)
    out.append(Ins("L1_end:")); out.append(Ins("s_endpgm"))
    Q = Prog(); Q.ins = out
    desc = f""".amdhsa_kernel {name}
  .amdhsa_next_free_vgpr 512
  .amdhsa_next_free_sgpr 102
  .amdhsa_accum_offset 256
  .amdhsa_group_segment_fixed_size 0
  .amdhsa_kernarg_size 64
  .amdhsa_user_sgpr_count 2
  .amdhsa_user_sgpr_kernarg_segment_ptr 1
  .amdhsa_system_sgpr_workgroup_id_x 1
.end_amdhsa_kernel
"""
    return Q.text(), desc

def gen_path(p, head, opt):
    dbg = opt.get("dbg", None)
    verbose = opt.get("verbose", False)
    KVF = opt.get("kvflags", "nt")
    nx = 4 if p == 0 else 3
    nq = 4 + nx
    tag = f"p{p}"
    out = []
    P = Prog(); e = P.e
    e(f"L1_p{p}:")
    for i in range(1, 4):
        x = PI[i] * 16 if p == 0 else (i & 1) * 32
        e(f"v_xor_b32 v{V_KV+i}, {x}, v{V_KV}")

    def dmaQ():
        L = [f"s_add_u32 m0, s{S_DST}, s{S_M0W}"]
        for i in range(4): L.append(f"buffer_load_dwordx4 v{V_QW+i}, s[12:15], s{S_WO} offen offset:{i*1024} lds")
        L.append(f"s_add_u32 m0, s{S_DST}, s{S_M0X}")
        for i in range(nx): L.append(f"buffer_load_dwordx4 v{V_QX+i}, s[8:11], s{S_XO} offen offset:{i*1024} lds")
        L += [f"s_add_u32 s{S_WO}, s{S_WO}, 262144", f"s_add_u32 s{S_XO}, s{S_XO}, 64"]
        return L
    def dmaKV(base):
        L = [f"s_add_u32 m0, s{base}, s{S_M0KV}"]
        for i in range(4): L.append(f"buffer_load_dwordx4 v{V_KV+i}, s[16:19], s{S_KO} offen offset:{i*1024} {KVF} lds")
        L.append("s_add_u32 m0, m0, 4096")
        for i in range(4): L.append(f"buffer_load_dwordx4 v{V_KV+i}, s[16:19], s{S_KO2} offen offset:{i*1024} {KVF} lds")
        L += [f"s_add_u32 s{S_KO}, s{S_KO}, 8192", f"s_add_u32 s{S_KO2}, s{S_KO2}, 8192"]
        return L
    def mt_of(c): return 6 * p + c if c < 6 else 12
    def readQ(buf):
        L = []
        order = []
        for j2 in range(4):
            for u in range(2):
                for uk in range(2):
                    order.append(f"ds_read_b64_tr_b16 {ar(QA(buf,j2,u)+2*uk,2)}, v{V_QRW} offset:{uk*1024+j2*256+u*8}")
        xs = [f"ds_read_b128 {ar(QB(buf,c))}, v{V_QRX} offset:{mt_of(c)*1024}" for c in range(7)]
        return xs + order
    def adv_rd():
        return [f"s_mov_b32 s{S_T}, s{S_RD}"] + ring_next(S_RD) + [f"s_sub_u32 s{S_T}, s{S_RD}, s{S_T}",
                f"v_add_u32 v{V_QRW}, s{S_T}, v{V_QRW}", f"v_add_u32 v{V_QRX}, s{S_T}, v{V_QRX}"]
    for s in range(5):
        P.extend(dmaQ()); P.extend(ring_next(S_DST))
    e(f"s_waitcnt vmcnt({4*nq})\ns_barrier")
    P.extend(readQ(0))
    P.extend(adv_rd())
    seq, lg, vm = finalize_straight(P.ins, head, tag=tag + "pro", verbose=verbose)
    out += seq
    def cnt(s): return nq if s <= 31 else 8
    def qstage(s):
        buf = s % 2
        pl = Place()
        pre = []
        if s < 31:
            allowed = sum(cnt(x) for x in range(s + 2, s + 5))
            pre = [f"s_waitcnt vmcnt({allowed}) lgkmcnt(0)", "s_barrier"]
        else:
            pre = ["s_waitcnt lgkmcnt(0)", "s_barrier"]
        pl.add(None, 0, pre)
        for j2 in range(4):
            for u in range(2):
                for c in range(7):
                    if c == 6 and (j2 >> 1) != p: continue
                    d = vr(QACC(c, j2, u, p))
                    pl.add(mf(d, ar(QA(buf, j2, u)), ar(QB(buf, c)), "0" if s == 0 else d), cap=1)
        if s < 31:
            pos = pl.put(1, readQ(1 - buf))
            pos = pl.put(pos + 1, adv_rd())
            if s + 5 <= 31: dm = dmaQ()
            else: dm = dmaKV(S_DST)
            pl.put(pos + 1, dm + ring_next(S_DST))
        return pl.ins()
    seq = qstage(0) + qstage(1) + [Ins(f"s_mov_b32 s{S_CNT}, 12")]
    seq, lg, vm = finalize_straight(seq, out, lg, vm, tag=tag + "q01", verbose=verbose)
    out += seq
    body = [Ins(".p2align 6"), Ins(f"L1_q{p}:")] + qstage(2) + qstage(3) + \
           [Ins(f"s_sub_u32 s{S_CNT}, s{S_CNT}, 1"), Ins(f"s_cmp_lg_u32 s{S_CNT}, 0"), Ins(f"s_cbranch_scc1 L1_q{p}")]
    body, lg, vm = finalize_loop(body, out, lg, vm, tag=tag + "qloop", verbose=verbose)
    out += body
    seq = []
    for s in range(26, 32): seq += qstage(s)
    E = Prog(); e = E.e
    e(f"s_mov_b32 s{S_T}, {f32bits(QSCALE):#x}\ns_mov_b32 s{S_T+1}, {f32bits(QSCALE):#x}")
    e(f"v_lshlrev_b32 v{V_T}, 4, v{V_LANE}")
    e(f"s_lshl_b32 s{S_T+2}, s{S_WAVE}, 11\ns_add_u32 s{S_T+2}, s{S_T+2}, {SLOT*1}")
    e(f"v_add_u32 v{V_T}, s{S_T+2}, v{V_T}")
    e(f"v_xor_b32 v{V_T+1}, 2048, v{V_T}")
    for c in [6, 0, 1, 2, 3, 4, 5]:
        for j2 in range(4):
            if c == 6 and (j2 >> 1) != p: continue
            r = QACC(c, j2, 0, p)
            for h in range(0, 8, 2): e(f"v_pk_mul_f32 v[{r+h}:{r+h+1}], v[{r+h}:{r+h+1}], s[{S_T}:{S_T+1}]")
            for h in range(4): e(f"v_cvt_pk_bf16_f32 v{r+h}, v{r+2*h}, v{r+2*h+1}")
            if c == 6: e(f"ds_write_b128 v{V_T}, {vr(r)} offset:{(j2&1)*1024}")
            for h in range(4): e(f"v_accvgpr_write_b32 a{Q_(c,j2)+h}, v{r+h}")
    e(f"v_mov_b32 v{V_T+2}, 0x3f803f80")
    for h in range(4): e(f"v_accvgpr_write_b32 a{ONES+h}, v{V_T+2}")
    e("s_waitcnt vmcnt(24) lgkmcnt(0)\ns_barrier")
    for i in range(2): e(f"ds_read_b128 {ar(Q_(6, 2*(1-p)+i))}, v{V_T+1} offset:{i*1024}")
    e(f"s_mov_b32 s{S_DST}, {2*SLOT}")
    def readK(kts=(0, 1)):
        return [f"ds_read_b128 {ar(K_(kt,ds))}, v{V_KA} offset:{kt*4096+ds*256}" for kt in kts for ds in range(4)]
    def readV(dt):
        return [f"ds_read_b64_tr_b16 {ar(V_(dt)+2*kt,2)}, v{V_VA0+(dt&1)} offset:{kt*4096+(dt>>1)*256}" for kt in range(2)]
    E.extend(readK())
    for dt in range(8): E.extend(readV(dt))
    if dbg == "q":
        e("s_waitcnt lgkmcnt(0)")
        e(f"v_lshlrev_b32 v{V_T+2}, 4, v{V_LANE}")
        e(f"s_lshl_b32 s{S_T+3}, s2, 2\ns_add_u32 s{S_T+3}, s{S_T+3}, s{S_WAVE}\ns_mul_i32 s{S_T+3}, s{S_T+3}, {28*1024}")
        for k in range(28):
            e(f"buffer_store_dwordx4 {ar(4*k)}, v{V_T+2}, s[60:63], s{S_T+3} offen\ns_add_u32 s{S_T+3}, s{S_T+3}, 1024")
        e("s_waitcnt vmcnt(0)")
    for c in range(7):
        for kt in range(2):
            for ds in range(4):
                d = vr(c * 8 + kt * 4)
                e(mf(d, ar(K_(kt, ds)), ar(Q_(c, ds)), "0" if ds == 0 else d))
    for c in range(7):
        r = c * 8
        e(f"v_max3_f32 v{r}, v{r}, v{r+1}, v{r+2}\nv_max3_f32 v{r+3}, v{r+3}, v{r+4}, v{r+5}\nv_max3_f32 v{r}, v{r}, v{r+6}, v{r+7}\nv_max_f32 v{r}, v{r}, v{r+3}")
        e(f"v_mov_b32 v{r+1}, v{r}")
    for c in range(7): e(f"v_permlane32_swap_b32 v{c*8}, v{c*8+1}")
    for c in range(7): e(f"v_max_f32 v{c*8}, v{c*8}, v{c*8+1}\nv_mov_b32 v{c*8+1}, v{c*8}")
    for c in range(7): e(f"v_permlane16_swap_b32 v{c*8}, v{c*8+1}")
    for c in range(7):
        e(f"v_max_f32 v{c*8}, v{c*8}, v{c*8+1}")
    for c in range(7):
        for h in range(4): e(f"v_sub_f32 v{NEGM(c)+h}, 0, v{c*8}")
    seq += E.ins
    seq, lg, vm = finalize_straight(seq, out, lg, vm, tag=tag + "qtail", verbose=verbose)
    out += seq

    units = []
    for t in range(32):
        if t % 2 == p: units.append((t, 6))
        for c in range(6): units.append((t, c))
    N = len(units)
    first_pv = set()
    pl = Place()
    slot_start = []
    for n in range(N + 2):
        slot_start.append(len(pl.m))
        qk = units[n] if n < N else None
        sm = units[n - 1] if 1 <= n <= N else None
        pv = units[n - 2] if n >= 2 else None
        def Qm(kt, ds):
            if not qk: return None
            d = vr(S_(n % 2, kt))
            return mf(d, ar(K_(kt, ds)), ar(Q_(qk[1], ds)), vr(NEGM(qk[1])) if ds == 0 else d)
        fst = pv is not None and pv[1] not in first_pv
        def Pm(dt):
            if not pv: return None
            d = O_(pv[1], dt)
            return mf(d, ar(V_(dt)), vr(P_(n % 2)), "0" if fst else d)
        def Lm():
            if not pv: return None
            d = ar(L_(pv[1]))
            return mf(d, ar(ONES), vr(P_(n % 2)), "0" if fst else d)
        if pv: first_pv.add(pv[1])
        sb = (n - 1) % 2
        def Ex(i): return [f"v_exp_f32 v{S_(sb,0)+i}, v{S_(sb,0)+i}"] if sm else []
        def Cv(i): return [f"v_cvt_pk_bf16_f32 v{P_(sb)+i}, v{S_(sb,0)+2*i}, v{S_(sb,0)+2*i+1}"] if sm else []
        pl.add(None, 0)
        for ds in range(4): pl.add(Qm(0, ds), 0, Ex(ds))
        pl.add(Pm(0), 0, Cv(0) + Cv(1))
        pl.add(Pm(1), 2); pl.add(Pm(2), 2)
        pl.add(Pm(3), 0, Ex(4))
        pl.add(None, 0)
        for ds in range(3): pl.add(Qm(1, ds), 0, Ex(5 + ds))
        pl.add(Qm(1, 3), 2)
        pl.add(Pm(4), 0, Cv(2) + Cv(3))
        pl.add(Pm(5), 2); pl.add(Pm(6), 2); pl.add(Pm(7), 2)
        pl.add(Lm(), 2)
    slot_start.append(len(pl.m))
    G = lambda n, k: slot_start[n] + k
    last_of = {}
    for n, (t, c) in enumerate(units): last_of[t] = n
    for t in range(31):
        n = last_of[t]
        pl.put(G(n, 6), readK((0,)))
        pl.put(G(n, 13), readK((1,)))
        m = n + 2
        pl.put(G(m, 6), readV(0) + readV(1))
        pl.put(G(m, 13), readV(2) + readV(3) + readV(4) + readV(5) + readV(6) + readV(7))
    for t in range(31):
        n = last_of[t]
        upd = [f"s_add_u32 s{S_T+4}, s{S_RD}, {SLOT}", f"s_cmp_eq_u32 s{S_T+4}, {SLOT*NSLOT}\ns_cselect_b32 s{S_T+4}, 0, s{S_T+4}", f"s_sub_u32 s{S_DELTA}, s{S_T+4}, s{S_RD}", f"s_mov_b32 s{S_RD}, s{S_T+4}",
               f"v_add_u32 v{V_KA}, s{S_DELTA}, v{V_KA}"]
        last = pl.put(G(n - 1, 6), upd)
        assert last < G(n, 6)
        last = pl.put(G(n + 1, 6), [f"v_add_u32 v{V_VA0}, s{S_DELTA}, v{V_VA0}", f"v_add_u32 v{V_VA1}, s{S_DELTA}, v{V_VA1}"])
        assert last < G(n + 2, 6)
    for j in range(32):
        D = j // 2
        g = G(13 * D + 5, 0) if j % 2 == 0 else G(13 * D + 11, 9)
        if j == 0:
            pl.g[g] += ["s_waitcnt vmcnt(16)", "s_barrier"]
            dm = [f"s_mov_b32 s{S_M0A}, {SLOT}"] + dmaKV(S_M0A) + dmaKV(S_DST) + ring_next(S_DST)
        else:
            pl.g[g] += ["s_waitcnt vmcnt(24)", "s_barrier"]
            dm = dmaKV(S_DST) + ring_next(S_DST)
        last = pl.put(g, dm)
        nxt = G(13 * D + 11, 9) if j % 2 == 0 else (G(13 * D + 18, 0) if D < 15 else len(pl.m))
        assert last < nxt, (j, last, nxt)
    seq = [Ins(f"s_mov_b32 s{S_RD}, {2*SLOT}")] + pl.ins(0, G(13, 0)) + [Ins(f"s_mov_b32 s{S_CNT}, 7")]
    seq, lg, vm = finalize_straight(seq, out, lg, vm, tag=tag + "a0", verbose=verbose)
    out += seq
    per = G(39, 0) - G(13, 0)
    for it in range(1, 7):
        for k in range(per):
            a, b = G(13, 0) + k, G(13, 0) + it * per + k
            assert pl.m[a] == pl.m[b] and pl.g[a] == pl.g[b], (it, k, pl.m[a], pl.m[b], pl.g[a], pl.g[b])
    body = [Ins(".p2align 6"), Ins(f"L1_a{p}:")] + pl.ins(G(13, 0), G(39, 0)) + \
           [Ins(f"s_sub_u32 s{S_CNT}, s{S_CNT}, 1"), Ins(f"s_cmp_lg_u32 s{S_CNT}, 0"), Ins(f"s_cbranch_scc1 L1_a{p}")]
    body, lg, vm = finalize_loop(body, out, lg, vm, tag=tag + "aloop", verbose=verbose)
    out += body
    seq = pl.ins(G(195, 0), len(pl.m))
    E = Prog(); e = E.e
    xs = ((32 + 30) % 5) * SLOT
    e(f"v_lshlrev_b32 v{V_T}, 4, v{V_LANE}")
    e(f"s_add_u32 s{S_T+2}, s{S_M0KV}, {xs}")
    e(f"v_add_u32 v{V_T+1}, s{S_T+2}, v{V_T}")
    e(f"v_xor_b32 v{V_T+2}, 8192, v{V_T+1}")
    e("s_waitcnt vmcnt(0)")
    for i in range(4): e(f"ds_write_b128 v{V_T+1}, {O_(6, 4*(1-p)+i)} offset:{i*1024}")
    e(f"ds_write_b128 v{V_T+1}, {ar(L_(6))} offset:4096")
    e(f"s_lshl_b32 s{S_T+3}, s{S_HP}, 1\ns_add_u32 s{S_T+3}, s{S_T+3}, s{S_HH}\ns_mul_i32 s{S_T+3}, s{S_T+3}, {4*13*1024}")
    R = 220
    for c in range(6): e(f"v_accvgpr_read_b32 v{R+2*c}, a{L_(c)}")
    for c in range(6): e(f"v_rcp_f32 v{R+2*c}, v{R+2*c}")
    def norm_store(r, rc, j, mt):
        for h in range(0, 8, 2): e(f"v_pk_mul_f32 v[{r+h}:{r+h+1}], v[{r+h}:{r+h+1}], v[{rc}:{rc+1}] op_sel_hi:[1,0]")
        for h in range(4): e(f"v_cvt_pk_bf16_f32 v{r+h}, v{r+2*h}, v{r+2*h+1}")
        e(f"s_add_u32 s{S_T+4}, s{S_T+3}, {(j*13+mt)*1024}")
        e(f"buffer_store_dwordx4 {vr(r)}, v{V_T}, s[20:23], s{S_T+4} offen")
    e("s_waitcnt lgkmcnt(0)\ns_barrier")
    for i in range(4): e(f"ds_read_b128 {vr(192+4*i)}, v{V_T+2} offset:{i*1024}")
    e(f"ds_read_b128 {vr(208)}, v{V_T+2} offset:4096")
    for c in range(6):
        for j in range(4): norm_store(c * 32 + j * 8, R + 2 * c, j, mt_of(c))
    e(f"v_accvgpr_read_b32 v212, a{L_(6)}")
    e("v_add_f32 v212, v212, v208\nv_rcp_f32 v212, v212")
    for i in range(16):
        e(f"v_accvgpr_read_b32 v{236+(i%4)}, a{208+16*p+i}\nv_add_f32 v{192+i}, v{192+i}, v{236+(i%4)}")
    for jj in range(2): norm_store(192 + 8 * jj, 212, 2 * p + jj, 12)
    e("s_endpgm")
    seq += E.ins
    seq, lg, vm = finalize_straight(seq, out, lg, vm, tag=tag + "tail", verbose=verbose)
    out += seq
    return out
```

```python
from asmgen import *

WS_O_BYTES_PER_B = 128 * 13 * 1024

def mf(d, a, b, c):
    return f"v_mfma_f32_16x16x32_bf16 {d}, {a}, {b}, {c}"
def vr(i, n=4): return f"v[{i}:{i+n-1}]"
def ar(i, n=4): return f"a[{i}:{i+n-1}]"

def gen_k2(name="oproj_kernel", opt=None):
    opt = opt or {}
    P = Prog()
    e = P.e
    SLOT = 8448
    WREG = 4 * SLOT
    def acc(c, j2, u, half_local=True):
        if c < 6: return (c * 8 + j2 * 2 + u) * 4
        return (48 + j2 * 2 + u) * 4
    def Bf(i, c): return (i % 4) * 28 + c * 4
    def Af(i, j2, u): return 112 + (i % 2) * 32 + (j2 * 2 + u) * 4
    V_OA, V_OB, V_OC = 208, 209, 210
    V_W = 212
    V_RD = 216
    V_T = 220
    e(f".p2align 8\n.type {name},@function\n{name}:")
    e("s_cmp_ge_u32 s2, 256\ns_cbranch_scc1 L2_end")
    e("s_load_dwordx2 s[4:5], s[0:1], 32")
    e("s_load_dwordx2 s[6:7], s[0:1], 40")
    e("s_load_dwordx2 s[24:25], s[0:1], 56")
    e("v_lshrrev_b32 v220, 6, v0")
    e("v_and_b32 v221, 63, v0")
    e("v_readfirstlane_b32 s26, v220")
    e("s_and_b32 s27, s2, 7")
    e("s_lshr_b32 s28, s2, 3")
    e("s_lshr_b32 s29, s27, 1\ns_lshl_b32 s29, s29, 2\ns_lshr_b32 s30, s28, 3\ns_add_u32 s29, s29, s30")
    e("s_and_b32 s30, s27, 1\ns_lshl_b32 s30, s30, 2\ns_lshr_b32 s31, s28, 1\ns_and_b32 s31, s31, 3\ns_add_u32 s30, s30, s31")
    e("s_and_b32 s31, s28, 1")
    e("s_waitcnt lgkmcnt(0)")
    e(f"s_mul_i32 s32, s29, {WS_O_BYTES_PER_B}")
    e(f"s_add_u32 s8, s24, s32\ns_addc_u32 s9, s25, 0\ns_mov_b32 s10, {WS_O_BYTES_PER_B}\ns_mov_b32 s11, 0x20000")
    e("s_lshl_b32 s32, s30, 8")
    e("s_add_u32 s12, s4, s32\ns_addc_u32 s13, s5, 0\ns_sub_u32 s14, 8388608, s32\ns_mov_b32 s15, 0x20000")
    e("s_mul_i32 s32, s29, 425984")
    e("s_add_u32 s16, s6, s32\ns_addc_u32 s17, s7, 0\ns_mov_b32 s18, 425984\ns_mov_b32 s19, 0x20000")
    e(f"s_mul_i32 s32, s26, {32*13312}")
    e("s_mul_i32 s33, s31, 6144")
    e("s_add_u32 s33, s33, s32")
    e("v_lshlrev_b32 v222, 4, v221")
    e(f"v_add_u32 v{V_OA}, s33, v222")
    e(f"v_add_u32 v{V_OB}, 4096, v{V_OA}")
    e("s_add_u32 s33, s32, 12288")
    e(f"v_add_u32 v{V_OC}, s33, v222")
    e("v_lshrrev_b32 v223, 2, v221\nv_and_b32 v223, 3, v223\nv_lshlrev_b32 v223, 11, v223")
    e("v_lshrrev_b32 v224, 4, v221\nv_lshlrev_b32 v224, 6, v224")
    e("v_and_b32 v225, 3, v221\nv_lshlrev_b32 v225, 4, v225")
    e("v_add3_u32 v223, v223, v224, v225")
    e("s_lshl_b32 s32, s26, 21")
    e(f"v_add_u32 v{V_W}, s32, v223")
    for i in range(1, 4):
        e(f"v_add_u32 v{V_W+i}, {i*(8*2048-1024)}, v{V_W}")
    e("v_lshrrev_b32 v223, 4, v221")
    e("v_and_b32 v224, 1, v223\nv_mul_u32_u24 v224, 4104, v224")
    e("v_lshrrev_b32 v223, 1, v223\nv_lshlrev_b32 v223, 10, v223")
    e("v_and_b32 v225, 15, v221\nv_lshlrev_b32 v225, 4, v225")
    e("v_add3_u32 v223, v223, v224, v225")
    e(f"s_mul_i32 s34, s26, {WREG}")
    e(f"v_add_u32 v{V_RD}, s34, v223")
    e("s_lshl_b32 s32, s31, 9")
    e(f"v_add_u32 v{V_RD+1}, s32, v{V_RD}")
    e("s_sub_u32 s32, 512, s32")
    e(f"v_add_u32 v{V_RD+2}, s32, v{V_RD}")
    e("s_mov_b32 s36, 0\ns_mov_b32 s37, 0\ns_mov_b32 s38, 8192")
    for k in range(4):
        e(f"s_add_u32 s{40+2*k}, s34, {k*SLOT}\ns_add_u32 s{41+2*k}, s34, {k*SLOT+4104}")
    def loadO(i):
        L = []
        for c in range(7):
            if c < 4: L.append(f"buffer_load_dwordx4 {ar(Bf(i,c))}, v{V_OA}, s[8:11], s36 offen offset:{c*1024}")
            elif c < 6: L.append(f"buffer_load_dwordx4 {ar(Bf(i,c))}, v{V_OB}, s[8:11], s36 offen offset:{(c-4)*1024}")
            else: L.append(f"buffer_load_dwordx4 {ar(Bf(i,c))}, v{V_OC}, s[8:11], s36 offen")
        L.append("s_add_u32 s36, s36, 13312")
        return L
    def loadW(i):
        k = i % 4
        L = [f"s_mov_b32 m0, s{40+2*k}"]
        for q in range(4): L.append(f"buffer_load_dwordx4 v{V_W+q}, s[12:15], s37 offen offset:{q*1024} lds")
        L.append(f"s_mov_b32 m0, s{41+2*k}")
        for q in range(4): L.append(f"buffer_load_dwordx4 v{V_W+q}, s[12:15], s38 offen offset:{q*1024} lds")
        L.append("s_add_u32 s37, s37, 65536\ns_add_u32 s38, s38, 65536")
        return L
    def readA(i):
        L = []
        for jl in range(4):
            for u in range(2):
                for uk in range(2):
                    a = Af(i, jl, u) + 2 * uk
                    off = (i % 4) * SLOT + uk * 2048 + (jl & 1) * 256 + u * 8
                    L.append(f"ds_read_b64_tr_b16 {ar(a,2)}, v{V_RD+1+(jl>>1)} offset:{off}")
        return L
    P.extend(loadW(0))
    for i in range(3):
        P.extend(loadO(i)); P.extend(loadW(i + 1))
    e("s_waitcnt vmcnt(45)")
    P.extend(readA(0))
    pro, lg, vm = finalize_straight(P.ins, tag="k2pro")
    out = list(pro)

    def kstep(i, first=False, loads=True, reads=True, vmw=30):
        S = Prog()
        S.e(f"s_waitcnt vmcnt({vmw}) lgkmcnt(0)")
        extras = []
        if reads: extras += readA(i + 1)
        ld = []
        if loads: ld = loadO(i + 3) + loadW(i + 4)
        mfs = []
        for jl in range(4):
            for u in range(2):
                for c in range(7):
                    if c == 6 and jl >= 2: continue
                    d = vr(acc(c, jl, u))
                    mfs.append(mf(d, ar(Af(i, jl, u)), ar(Bf(i, c)), "0" if first else d))
        gaps = [[] for _ in mfs]
        gi = 1
        for x in ld:
            gaps[min(gi, len(mfs)-1)].append(x)
            if x.startswith("buffer"): gi += 3
        gi = 2
        for k, x in enumerate(extras):
            gaps[gi].append(x); gi += (1 if k % 2 == 0 else 2)
        for m, g in zip(mfs, gaps):
            S.e(m); S.extend(g)
        return S.ins
    seq = []
    for i in range(4): seq += kstep(i, first=(i == 0))
    seq.append(Ins("s_mov_b32 s39, 6"))
    seq, lg, vm = finalize_straight(seq, out, lg, vm, tag="k2peel")
    out += seq
    body = [Ins(".p2align 6"), Ins("L2_loop:")]
    for i in range(4, 8): body += kstep(i)
    body += [Ins("s_sub_u32 s39, s39, 1"), Ins("s_cmp_lg_u32 s39, 0"), Ins("s_cbranch_scc1 L2_loop")]
    body, lg, vm = finalize_loop(body, out, lg, vm, tag="k2loop")
    out += body
    seq = []
    S = kstep(28)
    S = [x for x in S if not (x.kind == "dma" or "m0" in x.wr or x.text.startswith("s_add_u32 s37") or x.text.startswith("s_add_u32 s38"))]
    seq += S
    seq += kstep(29, loads=False, vmw=22)
    seq += kstep(30, loads=False, vmw=7)
    seq += kstep(31, loads=False, reads=False, vmw=0)
    seq, lg, vm = finalize_straight(seq, out, lg, vm, tag="k2tail")
    out += seq
    def owner(pt): return pt % 4 if pt < 24 else pt - 24
    E = Prog(); e = E.e
    e("s_barrier")
    e("v_lshlrev_b32 v222, 4, v221")
    e("v_add_u32 v223, 65536, v222\nv_add_u32 v224, 131072, v222")
    e("v_and_b32 v225, 15, v221\nv_lshlrev_b32 v225, 11, v225")
    e("v_lshrrev_b32 v226, 4, v221\nv_lshlrev_b32 v226, 4, v226")
    e("s_lshl_b32 s32, s30, 8")
    e("v_add3_u32 v225, v225, v226, s32")
    e("s_lshl_b32 s33, s31, 7")
    e("s_sub_u32 s35, 128, s33")
    e(f"s_mul_i32 s36, s31, {6*32768}")
    e("s_cmp_eq_u32 s26, 1\ns_cbranch_scc1 L2_e1\ns_cmp_eq_u32 s26, 2\ns_cbranch_scc1 L2_e2\ns_cmp_eq_u32 s26, 3\ns_cbranch_scc1 L2_e3")
    pre, lg, vm = finalize_straight(E.ins, out, lg, vm, tag="k2epre")
    out += pre
    def ldsaddr(pt, src, u):
        off = (pt * 3 + src) * 2048 + u * 1024
        return f"v{222 + off // 65536}", off % 65536
    for w in range(4):
        E = Prog(); e = E.e
        e(f"L2_e{w}:")
        for pt in range(26):
            o = owner(pt)
            if o == w: continue
            src = (w - o - 1) % 4
            c, jl = (pt // 4, pt % 4) if pt < 24 else (6, pt - 24)
            for u in range(2):
                a, off = ldsaddr(pt, src, u)
                e(f"ds_write_b128 {a}, {vr(acc(c,jl,u))} offset:{off}")
        e("s_waitcnt lgkmcnt(0)\ns_barrier")
        mine = [pt for pt in range(26) if owner(pt) == w]
        free = []
        for pt in range(26):
            if owner(pt) != w:
                c, jl = (pt // 4, pt % 4) if pt < 24 else (6, pt - 24)
                free += [acc(c, jl, 0), acc(c, jl, 1)]
        free += [228, 232, 236, 240]
        fi = 0
        tmp = {}
        for pt in mine:
            for src in range(3):
                for u in range(2):
                    a, off = ldsaddr(pt, src, u)
                    tmp[(pt, src, u)] = free[fi]; fi += 1
                    e(f"ds_read_b128 {vr(tmp[(pt,src,u)])}, {a} offset:{off}")
        for pt in mine:
            c, jl = (pt // 4, pt % 4) if pt < 24 else (6, pt - 24)
            for u in range(2):
                r = acc(c, jl, u)
                t0, t1, t2 = (tmp[(pt, s, u)] for s in range(3))
                for h in (0, 2):
                    e(f"v_pk_add_f32 v[{r+h}:{r+h+1}], v[{r+h}:{r+h+1}], v[{t0+h}:{t0+h+1}]")
                    e(f"v_pk_add_f32 v[{t1+h}:{t1+h+1}], v[{t1+h}:{t1+h+1}], v[{t2+h}:{t2+h+1}]")
                for h in (0, 2):
                    e(f"v_pk_add_f32 v[{r+h}:{r+h+1}], v[{r+h}:{r+h+1}], v[{t1+h}:{t1+h+1}]")
            r = acc(c, jl, 0)
            e(f"v_cvt_pk_bf16_f32 v{r}, v{r}, v{r+1}\nv_cvt_pk_bf16_f32 v{r+1}, v{r+2}, v{r+3}")
            e(f"v_cvt_pk_bf16_f32 v{r+2}, v{r+4}, v{r+5}\nv_cvt_pk_bf16_f32 v{r+3}, v{r+6}, v{r+7}")
            js = "s33" if jl < 2 else "s35"
            if c < 6: e(f"s_add_u32 s37, s36, {c*32768}\ns_add_u32 s37, s37, {js}")
            else: e(f"s_add_u32 s37, {js}, {12*32768}")
            e(f"buffer_store_dwordx4 {vr(r)}, v225, s[16:19], s37 offen offset:{(jl&1)*64}")
        e("s_endpgm")
        s2, _, _ = finalize_straight(E.ins, out, [], [], tag=f"k2e{w}")
        out += s2
    out.append(Ins("L2_end:")); out.append(Ins("s_endpgm"))
    Q = Prog(); Q.ins = out
    desc = f""".amdhsa_kernel {name}
  .amdhsa_next_free_vgpr 512
  .amdhsa_next_free_sgpr 102
  .amdhsa_accum_offset 256
  .amdhsa_group_segment_fixed_size 0
  .amdhsa_kernarg_size 64
  .amdhsa_user_sgpr_count 2
  .amdhsa_user_sgpr_kernarg_segment_ptr 1
  .amdhsa_system_sgpr_workgroup_id_x 1
.end_amdhsa_kernel
"""
    return Q.text(), desc
```

```python
import sys, json
import gen_k1, gen_k2
def build(path, opt=None):
    opt = opt or {}
    hdr = open("standalone__mha_block_cached__near_ridge.s.ref").read().split("; Override launch")[0]
    t1, d1 = gen_k1.gen_k1("attn_kernel", opt)
    t2, d2 = gen_k2.gen_k2("oproj_kernel", opt)
    s = hdr
    s += "; @launch kernel=attn_kernel grid=(256,1,1) block=(256,1,1) lds=163840\n"
    s += "; @launch kernel=oproj_kernel grid=(256,1,1) block=(256,1,1) lds=163840\n"
    s += '.amdgcn_target "amdgcn-amd-amdhsa--gfx950"\n.text\n.globl attn_kernel\n.globl oproj_kernel\n'
    s += t1 + t2 + 'L_code_end:\n'
    s += '.section .rodata,"a"\n.p2align 6\n' + d1 + ".p2align 6\n" + d2
    open(path, "w").write(s)
    return s
if __name__ == "__main__":
    path = sys.argv[1] if len(sys.argv) > 1 else "standalone__mha_block_cached__near_ridge.s"
    opt = json.loads(sys.argv[2]) if len(sys.argv) > 2 else {}
    s = build(path, opt)
    print("lines", len(s.splitlines()), "bytes", len(s))
```

```python
from asmgen import *
from gen_k2 import mf, vr, ar, WS_O_BYTES_PER_B
import struct, math

SLOT = 32768
NSLOT = 5
PI = (0, 3, 2, 1)
QSCALE = math.log2(math.e) / math.sqrt(128.0)
def f32bits(x): return struct.unpack("<I", struct.pack("<f", x))[0]

def O_(c, dt):
    return vr(c * 32 + dt * 4) if c < 6 else ar(208 + dt * 4)
def NEGM(c): return 192 + 4 * c
def S_(buf, kt): return 220 + buf * 8 + kt * 4
def P_(buf): return 236 + buf * 4
V_KA, V_VA0, V_VA1 = 244, 245, 246
V_KV = 248
V_LANE = 247
V_T = 252
V_QW = 208
V_QX = 212
V_QRW, V_QRX, V_QRX2 = 216, 217, 218
V_PF = 250
V_BW, V_BX = 219, 220
def Q_(c, ds): return c * 16 + ds * 4
def K_(kt, ds): return 112 + kt * 16 + ds * 4
def V_(dt): return 144 + dt * 4
def L_(c): return 176 + 4 * c
ONES = 204
def QA(buf, j2, u): return 112 + buf * 60 + (j2 * 2 + u) * 4
def QB(buf, c): return 112 + buf * 60 + 32 + c * 4
def QACC(c, j2, u, p):
    if c < 6: return (c * 8 + j2 * 2 + u) * 4
    return (48 + (j2 - 2 * p) * 2 + u) * 4
S_WAVE, S_HH, S_B, S_HP = 24, 25, 26, 27
S_CNT = 28
S_DST = 29
S_XO, S_WO = 30, 31
S_KO, S_KO2 = 32, 33
S_DELTA = 34
S_M0W, S_M0X, S_M0KV = 35, 36, 37
S_M0A = 38
S_RD = 39
S_T = 40
S_FLAG = 48
S_XO2, S_M0X2 = 49, 50
S_RDA, S_RDB = 51, 55
S_PFO = 96
S_PREV = 97

XREG = 16640

class Place:
    def __init__(self): self.m = []; self.g = []; self.cap = []
    def add(self, m, cap=2, fixed=()):
        self.m.append(m); self.g.append(list(fixed)); self.cap.append(cap)
    def put(self, pos, items, per=None):
        for it in items:
            while pos < len(self.m) - 1 and self.cap[pos] <= 0: pos += 1
            self.g[pos].append(it); self.cap[pos] -= 1 + it.count("\n")
        return pos
    def ins(self, lo=0, hi=None):
        out = []
        for k in range(lo, len(self.m) if hi is None else hi):
            if self.m[k]: out.append(Ins(self.m[k]))
            for x in self.g[k]:
                for line in x.split("\n"): out.append(Ins(line))
        return out

def stamp(k, opt):
    if not opt.get("prof"): return []
    return ["s_waitcnt lgkmcnt(0)", "s_memrealtime s[98:99]", "s_memtime s[100:101]", "s_waitcnt lgkmcnt(0)",
            f"v_writelane_b32 v251, s98, {2*k}", f"v_writelane_b32 v251, s100, {2*k+1}"]
def stamp_store(n, opt, wsreg, base, wave):
    if not opt.get("prof"): return []
    return [f"s_add_u32 s60, s{wsreg}, {base}", f"s_addc_u32 s61, s{wsreg+1}, 0", "s_mov_b32 s62, 0x100000", "s_mov_b32 s63, 0x20000",
         f"s_lshl_b32 s55, s2, 2", f"s_add_u32 s55, s55, s{wave}", "s_lshl_b32 s55, s55, 8",
         "v_mbcnt_lo_u32_b32 v250, -1, 0", "v_mbcnt_hi_u32_b32 v250, -1, v250", "v_lshlrev_b32 v250, 2, v250",
         "buffer_store_dword v251, v250, s[60:63], s55 offen"]

def ring_next(reg, tmp=S_T):
    return [f"s_add_u32 s{reg}, s{reg}, {SLOT}", f"s_cmp_eq_u32 s{reg}, {SLOT*NSLOT}\ns_cselect_b32 s{reg}, 0, s{reg}"]

def gen_k1(name="attn_kernel", opt=None):
    opt = opt or {}
    dbg = opt.get("dbg", None)
    P = Prog(); e = P.e
    e(f".p2align 8\n.type {name},@function\n{name}:")
    e("s_cmp_ge_u32 s2, 256\ns_cbranch_scc1 L1_end")
    P.extend(stamp(0, opt))
    e("s_load_dwordx4 s[40:43], s[0:1], 0")
    e("s_load_dwordx4 s[44:47], s[0:1], 16")
    e("s_load_dwordx2 s[4:5], s[0:1], 56")
    e("s_load_dwordx2 s[6:7], s[0:1], 32")
    e(f"v_lshrrev_b32 v{V_T}, 6, v0")
    e(f"v_and_b32 v{V_LANE}, 63, v0")
    e(f"v_readfirstlane_b32 s{S_WAVE}, v{V_T}")
    e("s_and_b32 s90, s2, 7\ns_lshr_b32 s91, s2, 3")
    e(f"s_lshr_b32 s{S_B}, s90, 1\ns_lshl_b32 s{S_B}, s{S_B}, 2\ns_lshr_b32 s52, s91, 3\ns_add_u32 s{S_B}, s{S_B}, s52")
    e(f"s_and_b32 s{S_HP}, s90, 1\ns_lshl_b32 s{S_HP}, s{S_HP}, 3\ns_and_b32 s52, s91, 7\ns_add_u32 s{S_HP}, s{S_HP}, s52")
    e(f"s_lshr_b32 s{S_HH}, s{S_WAVE}, 1")
    e("s_waitcnt lgkmcnt(0)")
    e(f"s_mul_i32 s52, s{S_B}, 425984")
    e("s_add_u32 s8, s40, s52\ns_addc_u32 s9, s41, 0\ns_mov_b32 s10, 425984\ns_mov_b32 s11, 0x20000")
    e(f"s_lshl_b32 s52, s{S_HP}, 9")
    e("s_add_u32 s12, s46, s52\ns_addc_u32 s13, s47, 0\ns_sub_u32 s12, s12, 4096\ns_subb_u32 s13, s13, 0")
    e(f"s_sub_u32 s14, {8388608+4096}, s52\ns_mov_b32 s15, 0x20000")
    e(f"s_and_b32 s53, s{S_WAVE}, 1\ns_cmp_eq_u32 s53, 0")
    e("s_cselect_b32 s16, s42, s44\ns_cselect_b32 s17, s43, s45")
    e(f"s_lshl_b32 s52, s{S_B}, 5\ns_lshl_b32 s54, s{S_HP}, 1\ns_add_u32 s52, s52, s54\ns_add_u32 s52, s52, s{S_HH}")
    e("s_lshl_b32 s54, s52, 18")
    e("s_add_u32 s16, s16, s54\ns_addc_u32 s17, s17, 0\ns_mov_b32 s18, 262144\ns_mov_b32 s19, 0x20000")
    e(f"s_mul_i32 s52, s{S_B}, {WS_O_BYTES_PER_B}")
    e(f"s_add_u32 s20, s4, s52\ns_addc_u32 s21, s5, 0\ns_mov_b32 s22, {WS_O_BYTES_PER_B}\ns_mov_b32 s23, 0x20000")
    e("s_mov_b32 s92, s46\ns_mov_b32 s93, s47\ns_mov_b32 s94, 8388608\ns_mov_b32 s95, 0x20000")
    e("s_mov_b32 s56, s6\ns_mov_b32 s57, s7\ns_mov_b32 s58, 8388608\ns_mov_b32 s59, 0x20000")
    if dbg:
        e("s_add_u32 s60, s4, 0x4000000\ns_addc_u32 s61, s5, 0\ns_mov_b32 s62, 0x4000000\ns_mov_b32 s63, 0x20000")
    L = V_LANE
    t0, t1, t2, t3 = V_T, V_T + 1, V_T + 2, V_T + 3
    e(f"v_lshrrev_b32 v{t0}, 2, v{L}\nv_and_b32 v{t0}, 3, v{t0}")
    e(f"v_lshrrev_b32 v{t1}, 4, v{L}")
    e(f"v_and_b32 v{t2}, 3, v{L}")
    e(f"v_lshlrev_b32 v{V_QW}, 13, v{t0}")
    e(f"v_lshl_add_u32 v{V_QW}, v{t1}, 6, v{V_QW}")
    e(f"v_lshl_add_u32 v{V_QW}, v{t2}, 4, v{V_QW}")
    e(f"s_lshl_b32 s52, s{S_WAVE}, 16\ns_add_u32 s52, s52, 4096")
    e(f"v_add_u32 v{V_QW}, s52, v{V_QW}")
    for i in range(1, 4):
        hh2, uk = i >> 1, i & 1
        d = uk * 4 * 8192 + hh2 * 256 - i * 1024
        if d >= 0: e(f"v_add_u32 v{V_QW+i}, {d}, v{V_QW}")
        else: e(f"v_subrev_u32 v{V_QW+i}, {-d}, v{V_QW}")
    e(f"v_lshrrev_b32 v{V_QX}, 2, v{L}\nv_and_b32 v{V_QX}, 7, v{V_QX}")
    e(f"v_lshrrev_b32 v{t3}, 2, v{V_QX}\nv_lshlrev_b32 v{t3}, 1, v{t3}\nv_xor_b32 v{t3}, v{t3}, v{t2}")
    e(f"v_lshlrev_b32 v{V_QX}, 11, v{V_QX}\nv_lshl_add_u32 v{V_QX}, v{t3}, 4, v{V_QX}")
    e(f"v_lshrrev_b32 v{t3}, 5, v{L}\nv_lshl_add_u32 v{V_QX}, v{t3}, 6, v{V_QX}")
    for i in range(1, 4): e(f"v_add_u32 v{V_QX+i}, {i*(16384-1024)}, v{V_QX}")
    e(f"s_lshl_b32 s52, s{S_WAVE}, 2\ns_lshr_b32 s52, 0xb480, s52\ns_and_b32 s52, s52, 15")
    e(f"s_lshl_b32 s{S_XO}, s52, 14")
    e(f"s_lshl_b32 s{S_M0X}, s52, 10\ns_add_u32 s{S_M0X}, s{S_M0X}, {XREG}")
    e(f"s_mul_i32 s52, s{S_WAVE}, 3")
    e(f"s_lshl_b32 s{S_XO2}, s52, 14\ns_add_u32 s{S_XO2}, s{S_XO2}, {14*16384}")
    e(f"s_lshl_b32 s{S_M0X2}, s52, 10\ns_add_u32 s{S_M0X2}, s{S_M0X2}, {XREG}")
    e(f"s_mul_i32 s{S_M0W}, s53, 8200\ns_lshl_b32 s54, s{S_HH}, 12\ns_add_u32 s{S_M0W}, s{S_M0W}, s54")
    e(f"s_lshl_b32 s{S_M0KV}, s{S_WAVE}, 13")
    e(f"v_and_b32 v{V_QRW}, 1, v{t1}\nv_mul_u32_u24 v{V_QRW}, 8200, v{V_QRW}")
    e(f"v_lshrrev_b32 v{V_QRX}, 1, v{t1}\nv_lshl_add_u32 v{V_QRW}, v{V_QRX}, 12, v{V_QRW}")
    e(f"v_and_b32 v{V_QRX}, 15, v{L}\nv_lshl_add_u32 v{V_QRW}, v{V_QRX}, 4, v{V_QRW}")
    e(f"s_lshl_b32 s54, s{S_HH}, 11\nv_add_u32 v{V_QRW}, s54, v{V_QRW}")
    e(f"v_and_b32 v{t3}, 1, v{t0}\nv_lshlrev_b32 v{t3}, 1, v{t3}\nv_xor_b32 v{t3}, v{t3}, v{t1}\nv_lshlrev_b32 v{t3}, 4, v{t3}")
    e(f"v_and_b32 v{V_QRX2}, 7, v{L}\nv_lshl_add_u32 v{V_QRX2}, v{V_QRX2}, 6, v{t3}")
    e(f"v_lshrrev_b32 v{V_QRX}, 3, v{V_QRX}\nv_lshl_add_u32 v{V_QRX}, v{V_QRX}, 10, v{V_QRX2}")
    e(f"v_add_u32 v{V_QRX}, {XREG}, v{V_QRX}")
    e(f"v_add_u32 v{V_QRX2}, {SLOT}, v{V_QRX}")
    e(f"v_lshl_add_u32 v{V_KA}, v{t0}, 10, v{t3}\nv_lshl_add_u32 v{V_KA}, v{t2}, 6, v{V_KA}")
    e(f"s_lshl_b32 s54, s{S_HH}, 14\ns_add_u32 s54, s54, {2*SLOT}")
    e(f"v_add_u32 v{V_KA}, s54, v{V_KA}")
    e(f"v_lshlrev_b32 v{V_VA0}, 10, v{t1}\nv_lshl_add_u32 v{V_VA0}, v{t0}, 6, v{V_VA0}\nv_lshl_add_u32 v{V_VA0}, v{t2}, 3, v{V_VA0}")
    e(f"s_add_u32 s54, s54, 8192\nv_add_u32 v{V_VA0}, s54, v{V_VA0}")
    e(f"v_and_b32 v{t3}, 1, v{t1}\nv_lshl_add_u32 v{V_VA0}, v{t3}, 5, v{V_VA0}")
    e(f"v_xor_b32 v{V_VA1}, 32, v{V_VA0}")
    e(f"v_lshlrev_b32 v{V_KV}, 8, v{t0}\nv_lshl_add_u32 v{V_KV}, v{t1}, 6, v{V_KV}\nv_lshl_add_u32 v{V_KV}, v{t2}, 4, v{V_KV}")
    e(f"s_mov_b32 s{S_DST}, 0\ns_mov_b32 s{S_RD}, 0\ns_mov_b32 s{S_WO}, 0\ns_mov_b32 s{S_KO}, 0\ns_mov_b32 s{S_KO2}, 4096\ns_mov_b32 s{S_FLAG}, 0\ns_mov_b32 s{S_PREV}, {4*SLOT}")
    e("s_cmp_eq_u32 s53, 1\ns_cbranch_scc1 L1_p1")
    head, _, _ = finalize_straight(P.ins, tag="k1head")
    out = list(head)
    for p in range(2):
        out += gen_path(p, head, opt)
    out.append(Ins("L1_end:")); out.append(Ins("s_endpgm"))
    Q = Prog(); Q.ins = out
    desc = f""".amdhsa_kernel {name}
  .amdhsa_next_free_vgpr 512
  .amdhsa_next_free_sgpr 102
  .amdhsa_accum_offset 256
  .amdhsa_group_segment_fixed_size 0
  .amdhsa_kernarg_size 64
  .amdhsa_user_sgpr_count 2
  .amdhsa_user_sgpr_kernarg_segment_ptr 1
  .amdhsa_system_sgpr_workgroup_id_x 1
.end_amdhsa_kernel
"""
    return Q.text(), desc

def gen_path(p, head, opt):
    dbg = opt.get("dbg", None)
    verbose = opt.get("verbose", False)
    KVF = opt.get("kvflags", "nt")
    nxa = 4 if p == 0 else 3
    tag = f"p{p}"
    out = []
    P = Prog(); e = P.e
    e(f"L1_p{p}:")
    vmq = []
    def vm_wait(tags):
        last = max((k for k, t in enumerate(vmq) if t in tags), default=-1)
        return len(vmq) - 1 - last
    def sl(x): return f"s{x}" if isinstance(x, int) and x < 128 else str(x)
    def dmaW(s, slot):
        L = [f"s_add_u32 m0, s{S_M0W}, {slot}"]
        for i in range(4): L.append(f"buffer_load_dwordx4 v{V_QW+i}, s[12:15], s{S_WO} offen offset:{i*1024} {opt.get('wqf','')} lds")
        L.append(f"s_add_u32 s{S_WO}, s{S_WO}, 262144")
        vmq.extend([("W", s)] * 4)
        return L
    def dmaX(which, sig, slot):
        n = nxa if which == "A" else 3
        m0r, so = (S_M0X, S_XO) if which == "A" else (S_M0X2, S_XO2)
        L = [f"s_add_u32 m0, s{m0r}, {slot}"]
        for i in range(n): L.append(f"buffer_load_dwordx4 v{V_QX+i}, s[8:11], s{so} offen offset:{i*1024} {opt.get('xf','')} lds")
        L.append(f"s_add_u32 s{so}, s{so}, 128")
        vmq.extend([("X" + which, sig)] * n)
        return L
    def dmaKV(base, t=None):
        L = [f"s_add_u32 m0, s{S_M0KV}, {base}"]
        for i in range(4): L.append(f"buffer_load_dwordx4 v{V_KV+(i&1)}, s[16:19], s{S_KO} offen offset:{i*1024} {KVF} lds")
        L.append("s_add_u32 m0, m0, 4096")
        for i in range(4): L.append(f"buffer_load_dwordx4 v{V_KV+(i&1)}, s[16:19], s{S_KO2} offen offset:{i*1024} {KVF} lds")
        L += [f"s_add_u32 s{S_KO}, s{S_KO}, 8192", f"s_add_u32 s{S_KO2}, s{S_KO2}, 8192"]
        vmq.extend([("KV", t)] * 8)
        return L
    def touchKV(t):
        vmq.append(("T", t))
        return [f"s_mov_b32 s{S_PFO}, {t*8192}", f"buffer_load_dword v255, v{V_PF}, s[16:19], s{S_PFO} offen {opt.get('kvtf','nt')}"]
    def mt_of(c): return 6 * p + c if c < 6 else 12
    def readQ(s):
        buf = s % 2; kh = s % 2
        order = []
        for j2 in range(4):
            for u in range(2):
                for uk in range(2):
                    order.append(f"ds_read_b64_tr_b16 {ar(QA(buf,j2,u)+2*uk,2)}, v{V_QRW} offset:{uk*1024+j2*256+u*8}")
        xs = []
        for c in range(7):
            mt = mt_of(c)
            if mt < 7: xs.append(f"ds_read_b128 {ar(QB(buf,c))}, v{V_QRX} offset:{mt*2048+kh*512}")
            else: xs.append(f"ds_read_b128 {ar(QB(buf,c))}, v{V_QRX2} offset:{(mt-7)*2048+kh*512}")
        return order[:2] + xs + order[2:]
    def adv_rd(s):
        L = ring_next(S_RD) + [f"v_add_u32 v{V_QRW}, s{S_RD}, v{V_BW}"]
        if (s + 1) % 2 == 0:
            L += [f"v_add_u32 v{V_QRX}, s{S_RD}, v{V_BX}", f"s_add_u32 s{S_T}, s{S_RD}, {SLOT}",
                  f"s_cmp_eq_u32 s{S_T}, {SLOT*NSLOT}\ns_cselect_b32 s{S_T}, 0, s{S_T}", f"v_add_u32 v{V_QRX2}, s{S_T}, v{V_BX}"]
        return L
    def need(s):
        return {("W", s), ("XA", s // 2), ("XB", s // 2)}
    P.extend(dmaW(0, 0)); P.extend(dmaX("A", 0, 0)); P.extend(dmaX("B", 0, SLOT)); P.extend(dmaW(1, SLOT))
    e(f"v_mov_b32 v{V_BW}, v{V_QRW}\nv_mov_b32 v{V_BX}, v{V_QRX}\nv_xor_b32 v{V_KV+1}, 32, v{V_KV}\nv_lshlrev_b32 v{V_PF}, 7, v{V_LANE}")
    e(f"s_waitcnt vmcnt({vm_wait(need(0))})\ns_barrier")
    P.extend(stamp(1, opt))
    P.extend(readQ(0))
    P.extend(adv_rd(0))
    P.extend(dmaW(2, 2 * SLOT)); P.extend(dmaX("A", 1, 2 * SLOT)); P.extend(dmaX("B", 1, 3 * SLOT))
    seq, lg, vm = finalize_straight(P.ins, head, tag=tag + "pro", verbose=verbose)
    out += seq
    kvt = opt.get("kvtouch", {})
    kvt = {int(k): v for k, v in kvt.items()}
    def qstage(s):
        buf = s % 2
        pl = Place()
        if s < 31: pre = [f"s_waitcnt vmcnt({vm_wait(need(s+1))}) lgkmcnt(0)", "s_barrier"]
        else: pre = ["s_waitcnt lgkmcnt(0)", "s_barrier"]
        pl.add(None, 0, pre)
        for j2 in range(4):
            for u in range(2):
                for c in range(7):
                    if c == 6 and (j2 >> 1) != p: continue
                    d = vr(QACC(c, j2, u, p))
                    pl.add(mf(d, ar(QA(buf, j2, u)), ar(QB(buf, c)), "0" if s == 0 else d), cap=2)
        dm = []
        cur, prev = f"s{S_DST}", f"s{S_PREV}"
        if s == 0:
            dm += dmaW(3, 3 * SLOT) + dmaW(4, 4 * SLOT)
        sig = (s + 4) // 2
        if sig <= 15: dm += dmaX("A" if s % 2 == 0 else "B", sig, prev)
        if s + 5 <= 31: dm += dmaW(s + 5, cur)
        if s == 27: dm += dmaKV(cur, 0)
        if s == 29: dm += dmaKV(prev, 1) + dmaKV(cur, 2)
        if s == 31: dm += dmaKV(prev, 3)
        if s == 0 and opt.get("xwtouch", True):
            dm += [f"s_lshl_b32 s{S_PFO}, s2, 2\ns_add_u32 s{S_PFO}, s{S_PFO}, s{S_WAVE}", f"s_lshl_b32 s{S_PFO}, s{S_PFO}, 13",
                   f"buffer_load_dword v255, v{V_PF}, s[92:95], s{S_PFO} offen"]
            vmq.append(("T", "w"))
            dm += [f"s_lshl_b32 s{S_PFO}, s{S_HP}, 2\ns_add_u32 s{S_PFO}, s{S_PFO}, s{S_WAVE}", f"s_mul_i32 s{S_PFO}, s{S_PFO}, 6656",
                   f"buffer_load_dword v255, v{V_PF}, s[8:11], s{S_PFO} offen"]
            vmq.append(("T", "x"))
        for t in kvt.get(s, []): dm += touchKV(t)
        nb = sum(1 for x in dm if x.startswith("buffer"))
        if nb:
            step = max(1, 50 // nb)
            pos = 1
            for x in dm:
                pl.g[pos].append(x); pl.cap[pos] -= 1 + x.count("\n")
                if x.startswith("buffer"): pos = min(pos + step - 1, 52)
                elif x.startswith("s_add_u32 m0"): pos = min(pos + 1, 52)
                if x.startswith("buffer") : pos = min(pos + 1, 52) if step == 1 else pos
        if s < 31:
            pos = 1
            for x in readQ(s + 1):
                pos = pl.put(pos, [x]) + 1
            pl.put(pos, adv_rd(s + 1))
        lastm0 = max([k for k in range(53) if any("m0" in x for x in pl.g[k])], default=0)
        pl.put(max(lastm0 + 1, 44), [f"s_mov_b32 s{S_PREV}, s{S_DST}"] + ring_next(S_DST))
        return pl.ins()
    stages = [qstage(s) for s in range(32)]
    txt = lambda L: [i.text for i in L]
    LO = 4
    HI = LO
    while HI + 2 <= 32 and txt(stages[HI]) == txt(stages[LO]) and txt(stages[HI + 1]) == txt(stages[LO + 1]): HI += 2
    if verbose or p == 0: print("qproj loop stages", LO, HI)
    seq = []
    for s in range(LO): seq += stages[s]
    seq += [Ins(x) for x in stamp(2, opt)]
    seq += [Ins(f"s_mov_b32 s{S_CNT}, {(HI-LO)//2}")]
    seq, lg, vm = finalize_straight(seq, out, lg, vm, tag=tag + "q01", verbose=verbose)
    out += seq
    body = [Ins(".p2align 6"), Ins(f"L1_q{p}:")] + stages[LO] + stages[LO + 1] + \
           [Ins(f"s_sub_u32 s{S_CNT}, s{S_CNT}, 1"), Ins(f"s_cmp_lg_u32 s{S_CNT}, 0"), Ins(f"s_cbranch_scc1 L1_q{p}")]
    body, lg, vm = finalize_loop(body, out, lg, vm, tag=tag + "qloop", verbose=verbose)
    out += body
    seq = [Ins(x) for x in stamp(3, opt)]
    for s in range(HI, 32): seq += stages[s]
    E = Prog(); e = E.e
    E.extend(stamp(4, opt))
    e(f"s_mov_b32 s{S_T}, {f32bits(QSCALE):#x}\ns_mov_b32 s{S_T+1}, {f32bits(QSCALE):#x}")
    e(f"v_lshlrev_b32 v{V_T}, 4, v{V_LANE}")
    e(f"s_lshl_b32 s{S_T+2}, s{S_WAVE}, 11\ns_add_u32 s{S_T+2}, s{S_T+2}, {SLOT*1}")
    e(f"v_add_u32 v{V_T}, s{S_T+2}, v{V_T}")
    e(f"v_xor_b32 v{V_T+1}, 2048, v{V_T}")
    for c in [6, 0, 1, 2, 3, 4, 5]:
        for j2 in range(4):
            if c == 6 and (j2 >> 1) != p: continue
            r = QACC(c, j2, 0, p)
            for h in range(0, 8, 2): e(f"v_pk_mul_f32 v[{r+h}:{r+h+1}], v[{r+h}:{r+h+1}], s[{S_T}:{S_T+1}]")
            for h in range(4): e(f"v_cvt_pk_bf16_f32 v{r+h}, v{r+2*h}, v{r+2*h+1}")
            if c == 6: e(f"ds_write_b128 v{V_T}, {vr(r)} offset:{(j2&1)*1024}")
            for h in range(4): e(f"v_accvgpr_write_b32 a{Q_(c,j2)+h}, v{r+h}")
    e(f"v_mov_b32 v{V_T+2}, 0x3f803f80")
    for h in range(4): e(f"v_accvgpr_write_b32 a{ONES+h}, v{V_T+2}")
    for t in kvt.get(32, []): E.extend(touchKV(t))
    e(f"s_waitcnt vmcnt({vm_wait({('KV',0)})}) lgkmcnt(0)\ns_barrier")
    E.extend(stamp(5, opt))
    for i in range(2): e(f"ds_read_b128 {ar(Q_(6, 2*(1-p)+i))}, v{V_T+1} offset:{i*1024}")
    e(f"s_mov_b32 s{S_DST}, {2*SLOT}")
    def readK(kts=(0, 1)):
        return [f"ds_read_b128 {ar(K_(kt,ds))}, v{V_KA} offset:{kt*4096+ds*256}" for kt in kts for ds in range(4)]
    def readV(dt):
        return [f"ds_read_b64_tr_b16 {ar(V_(dt)+2*kt,2)}, v{V_VA0+(dt&1)} offset:{kt*4096+(dt>>1)*256}" for kt in range(2)]
    E.extend(readK())
    for dt in range(8): E.extend(readV(dt))
    if dbg == "q":
        e("s_waitcnt lgkmcnt(0)")
        e(f"v_lshlrev_b32 v{V_T+2}, 4, v{V_LANE}")
        e(f"s_lshl_b32 s{S_T+3}, s2, 2\ns_add_u32 s{S_T+3}, s{S_T+3}, s{S_WAVE}\ns_mul_i32 s{S_T+3}, s{S_T+3}, {28*1024}")
        for k in range(28):
            e(f"buffer_store_dwordx4 {ar(4*k)}, v{V_T+2}, s[60:63], s{S_T+3} offen\ns_add_u32 s{S_T+3}, s{S_T+3}, 1024")
        e("s_waitcnt vmcnt(0)")
    for c in range(7):
        for kt in range(2):
            for ds in range(4):
                d = vr(c * 8 + kt * 4)
                e(mf(d, ar(K_(kt, ds)), ar(Q_(c, ds)), "0" if ds == 0 else d))
    for c in range(7):
        r = c * 8
        e(f"v_max3_f32 v{r}, v{r}, v{r+1}, v{r+2}\nv_max3_f32 v{r+3}, v{r+3}, v{r+4}, v{r+5}\nv_max3_f32 v{r}, v{r}, v{r+6}, v{r+7}\nv_max_f32 v{r}, v{r}, v{r+3}")
        e(f"v_mov_b32 v{r+1}, v{r}")
    for c in range(7): e(f"v_permlane32_swap_b32 v{c*8}, v{c*8+1}")
    for c in range(7): e(f"v_max_f32 v{c*8}, v{c*8}, v{c*8+1}\nv_mov_b32 v{c*8+1}, v{c*8}")
    for c in range(7): e(f"v_permlane16_swap_b32 v{c*8}, v{c*8+1}")
    for c in range(7):
        e(f"v_max_f32 v{c*8}, v{c*8}, v{c*8+1}")
    for c in range(7):
        for h in range(4): e(f"v_sub_f32 v{NEGM(c)+h}, 0, v{c*8}")
    if opt.get("wopf", True):
        e(f"s_lshl_b32 s{S_T+3}, s2, 2\ns_add_u32 s{S_T+3}, s{S_T+3}, s{S_WAVE}\ns_lshl_b32 s{S_T+3}, s{S_T+3}, 13")
        e(f"buffer_load_dword v255, v{V_PF}, s[56:59], s{S_T+3} offen {opt.get('wopff','')}")
        vmq.append(("T", "wo"))
    E.extend(stamp(6, opt))
    seq += E.ins
    seq, lg, vm = finalize_straight(seq, out, lg, vm, tag=tag + "qtail", verbose=verbose)
    out += seq

    units = []
    for t in range(32):
        if t % 2 == p: units.append((t, 6))
        for c in range(6): units.append((t, c))
    N = len(units)
    first_pv = set()
    pl = Place()
    slot_start = []
    for n in range(N + 2):
        slot_start.append(len(pl.m))
        qk = units[n] if n < N else None
        sm = units[n - 1] if 1 <= n <= N else None
        pv = units[n - 2] if n >= 2 else None
        def Qm(kt, ds):
            if not qk: return None
            d = vr(S_(n % 2, kt))
            return mf(d, ar(K_(kt, ds)), ar(Q_(qk[1], ds)), vr(NEGM(qk[1])) if ds == 0 else d)
        fst = pv is not None and pv[1] not in first_pv
        def Pm(dt):
            if not pv: return None
            d = O_(pv[1], dt)
            return mf(d, ar(V_(dt)), vr(P_(n % 2)), "0" if fst else d)
        def Lm():
            if not pv: return None
            d = ar(L_(pv[1]))
            return mf(d, ar(ONES), vr(P_(n % 2)), "0" if fst else d)
        if pv: first_pv.add(pv[1])
        sb = (n - 1) % 2
        def Ex(i): return [f"v_exp_f32 v{S_(sb,0)+i}, v{S_(sb,0)+i}"] if sm else []
        def Cv(i): return [f"v_cvt_pk_bf16_f32 v{P_(sb)+i}, v{S_(sb,0)+2*i}, v{S_(sb,0)+2*i+1}"] if sm else []
        pl.add(None, 0)
        for ds in range(4): pl.add(Qm(0, ds), 0, Ex(ds))
        pl.add(Pm(0), 0, Cv(0) + Cv(1))
        pl.add(Pm(1), 2); pl.add(Pm(2), 2)
        pl.add(Pm(3), 0, Ex(4))
        pl.add(None, 0)
        for ds in range(3): pl.add(Qm(1, ds), 0, Ex(5 + ds))
        pl.add(Qm(1, 3), 2)
        pl.add(Pm(4), 0, Cv(2) + Cv(3))
        pl.add(Pm(5), 2); pl.add(Pm(6), 2); pl.add(Pm(7), 2)
        pl.add(Lm(), 2)
    slot_start.append(len(pl.m))
    G = lambda n, k: slot_start[n] + k
    last_of = {}
    for n, (t, c) in enumerate(units): last_of[t] = n
    for t in range(31):
        n = last_of[t]
        pl.put(G(n, 6), readK((0,)))
        pl.put(G(n, 13), readK((1,)))
        m = n + 2
        pl.put(G(m, 6), readV(0) + readV(1))
        pl.put(G(m, 13), readV(2) + readV(3) + readV(4) + readV(5) + readV(6) + readV(7))
    for t in range(31):
        n = last_of[t]
        upd = [f"s_add_u32 s{S_T+4}, s{S_RD}, {SLOT}", f"s_cmp_eq_u32 s{S_T+4}, {SLOT*NSLOT}\ns_cselect_b32 s{S_T+4}, 0, s{S_T+4}", f"s_sub_u32 s{S_DELTA}, s{S_T+4}, s{S_RD}", f"s_mov_b32 s{S_RD}, s{S_T+4}",
               f"v_add_u32 v{V_KA}, s{S_DELTA}, v{V_KA}"]
        last = pl.put(G(n - 1, 6), upd)
        assert last < G(n, 6)
        last = pl.put(G(n + 1, 6), [f"v_add_u32 v{V_VA0}, s{S_DELTA}, v{V_VA0}", f"v_add_u32 v{V_VA1}, s{S_DELTA}, v{V_VA1}"])
        assert last < G(n + 2, 6)
    for j in range(32):
        D = j // 2
        g = G(13 * D + 5, 0) if j % 2 == 0 else G(13 * D + 11, 9)
        pl.g[g] += [f"s_waitcnt vmcnt({min(24, vm_wait({('KV', j+1)}))})", "s_barrier"]
        if j == 0:
            dm = dmaKV(SLOT, 4) + dmaKV(f"s{S_DST}", 5) + ring_next(S_DST)
        else:
            dm = dmaKV(f"s{S_DST}", j + 5) + ring_next(S_DST)
        last = pl.put(g, dm)
        nxt = G(13 * D + 11, 9) if j % 2 == 0 else (G(13 * D + 18, 0) if D < 15 else len(pl.m))
        assert last < nxt, (j, last, nxt)
    seq = [Ins(f"s_mov_b32 s{S_RD}, {2*SLOT}")] + pl.ins(0, G(13, 0)) + [Ins(x) for x in stamp(7, opt)] + [Ins(f"s_mov_b32 s{S_CNT}, 7")]
    seq, lg, vm = finalize_straight(seq, out, lg, vm, tag=tag + "a0", verbose=verbose)
    out += seq
    per = G(39, 0) - G(13, 0)
    for it in range(1, 7):
        for k in range(per):
            a, b = G(13, 0) + k, G(13, 0) + it * per + k
            assert pl.m[a] == pl.m[b] and pl.g[a] == pl.g[b], (it, k, pl.m[a], pl.m[b], pl.g[a], pl.g[b])
    body = [Ins(".p2align 6"), Ins(f"L1_a{p}:")] + pl.ins(G(13, 0), G(39, 0)) + \
           [Ins(f"s_sub_u32 s{S_CNT}, s{S_CNT}, 1"), Ins(f"s_cmp_lg_u32 s{S_CNT}, 0"), Ins(f"s_cbranch_scc1 L1_a{p}")]
    body, lg, vm = finalize_loop(body, out, lg, vm, tag=tag + "aloop", verbose=verbose)
    out += body
    seq = [Ins(x) for x in stamp(8, opt)] + pl.ins(G(195, 0), len(pl.m))
    E = Prog(); e = E.e
    E.extend(stamp(9, opt))
    xs = ((32 + 30) % 5) * SLOT
    e(f"v_lshlrev_b32 v{V_T}, 4, v{V_LANE}")
    e(f"s_add_u32 s{S_T+2}, s{S_M0KV}, {xs}")
    e(f"v_add_u32 v{V_T+1}, s{S_T+2}, v{V_T}")
    e(f"v_xor_b32 v{V_T+2}, 8192, v{V_T+1}")
    e("s_waitcnt vmcnt(0)")
    for i in range(4): e(f"ds_write_b128 v{V_T+1}, {O_(6, 4*(1-p)+i)} offset:{i*1024}")
    e(f"ds_write_b128 v{V_T+1}, {ar(L_(6))} offset:4096")
    e(f"s_lshl_b32 s{S_T+3}, s{S_HP}, 1\ns_add_u32 s{S_T+3}, s{S_T+3}, s{S_HH}\ns_mul_i32 s{S_T+3}, s{S_T+3}, {4*13*1024}")
    R = 220
    for c in range(6): e(f"v_accvgpr_read_b32 v{R+2*c}, a{L_(c)}")
    for c in range(6): e(f"v_rcp_f32 v{R+2*c}, v{R+2*c}")
    def norm_store(r, rc, j, mt):
        for h in range(0, 8, 2): e(f"v_pk_mul_f32 v[{r+h}:{r+h+1}], v[{r+h}:{r+h+1}], v[{rc}:{rc+1}] op_sel_hi:[1,0]")
        for h in range(4): e(f"v_cvt_pk_bf16_f32 v{r+h}, v{r+2*h}, v{r+2*h+1}")
        e(f"s_add_u32 s{S_T+4}, s{S_T+3}, {(j*13+mt)*1024}")
        e(f"buffer_store_dwordx4 {vr(r)}, v{V_T}, s[20:23], s{S_T+4} offen {opt.get('osf','')}")
    e("s_waitcnt lgkmcnt(0)\ns_barrier")
    for i in range(4): e(f"ds_read_b128 {vr(192+4*i)}, v{V_T+2} offset:{i*1024}")
    e(f"ds_read_b128 {vr(208)}, v{V_T+2} offset:4096")
    for c in range(6):
        for j in range(4): norm_store(c * 32 + j * 8, R + 2 * c, j, mt_of(c))
    e(f"v_accvgpr_read_b32 v212, a{L_(6)}")
    e("v_add_f32 v212, v212, v208\nv_rcp_f32 v212, v212")
    for i in range(16):
        e(f"v_accvgpr_read_b32 v{236+(i%4)}, a{208+16*p+i}\nv_add_f32 v{192+i}, v{192+i}, v{236+(i%4)}")
    for jj in range(2): norm_store(192 + 8 * jj, 212, 2 * p + jj, 12)
    E.extend(stamp(10, opt))
    if opt.get("prof"): e("s_waitcnt vmcnt(0)")
    E.extend(stamp(11, opt))
    E.extend(stamp_store(8, opt, 4, 0x8000000, S_WAVE))
    e("s_endpgm")
    seq += E.ins
    seq, lg, vm = finalize_straight(seq, out, lg, vm, tag=tag + "tail", verbose=verbose)
    out += seq
    return out
```

```python
from asmgen import *

WS_O_BYTES_PER_B = 128 * 13 * 1024

def mf(d, a, b, c):
    return f"v_mfma_f32_16x16x32_bf16 {d}, {a}, {b}, {c}"
def vr(i, n=4): return f"v[{i}:{i+n-1}]"
def ar(i, n=4): return f"a[{i}:{i+n-1}]"

def gen_k2(name="oproj_kernel", opt=None):
    opt = opt or {}
    P = Prog()
    e = P.e
    SLOT = 8448
    WREG = 4 * SLOT
    def acc(c, j2, u, half_local=True):
        if c < 6: return (c * 8 + j2 * 2 + u) * 4
        return (48 + j2 * 2 + u) * 4
    def Bf(i, c): return (i % 4) * 28 + c * 4
    def Af(i, j2, u): return 112 + (i % 2) * 32 + (j2 * 2 + u) * 4
    V_OA, V_OB, V_OC = 208, 209, 210
    V_W = 212
    V_RD = 216
    V_T = 220
    e(f".p2align 8\n.type {name},@function\n{name}:")
    e("s_cmp_ge_u32 s2, 256\ns_cbranch_scc1 L2_end")
    from gen_k1 import stamp, stamp_store
    P.extend(stamp(0, opt))
    e("s_load_dwordx2 s[4:5], s[0:1], 32")
    e("s_load_dwordx2 s[6:7], s[0:1], 40")
    e("s_load_dwordx2 s[24:25], s[0:1], 56")
    e("v_lshrrev_b32 v220, 6, v0")
    e("v_and_b32 v221, 63, v0")
    e("v_readfirstlane_b32 s26, v220")
    e("s_and_b32 s27, s2, 7")
    e("s_lshr_b32 s28, s2, 3")
    e("s_lshr_b32 s29, s27, 1\ns_lshl_b32 s29, s29, 2\ns_lshr_b32 s30, s28, 3\ns_add_u32 s29, s29, s30")
    e("s_and_b32 s30, s27, 1\ns_lshl_b32 s30, s30, 2\ns_lshr_b32 s31, s28, 1\ns_and_b32 s31, s31, 3\ns_add_u32 s30, s30, s31")
    e("s_and_b32 s31, s28, 1")
    e("s_waitcnt lgkmcnt(0)")
    e(f"s_mul_i32 s32, s29, {WS_O_BYTES_PER_B}")
    e(f"s_add_u32 s8, s24, s32\ns_addc_u32 s9, s25, 0\ns_mov_b32 s10, {WS_O_BYTES_PER_B}\ns_mov_b32 s11, 0x20000")
    e("s_lshl_b32 s32, s30, 8")
    e("s_add_u32 s12, s4, s32\ns_addc_u32 s13, s5, 0\ns_sub_u32 s14, 8388608, s32\ns_mov_b32 s15, 0x20000")
    e("s_mul_i32 s32, s29, 425984")
    e("s_add_u32 s16, s6, s32\ns_addc_u32 s17, s7, 0\ns_mov_b32 s18, 425984\ns_mov_b32 s19, 0x20000")
    e(f"s_mul_i32 s32, s26, {32*13312}")
    e("s_mul_i32 s33, s31, 6144")
    e("s_add_u32 s33, s33, s32")
    e("v_lshlrev_b32 v222, 4, v221")
    e(f"v_add_u32 v{V_OA}, s33, v222")
    e(f"v_add_u32 v{V_OB}, 4096, v{V_OA}")
    e("s_add_u32 s33, s32, 12288")
    e(f"v_add_u32 v{V_OC}, s33, v222")
    e("v_lshrrev_b32 v223, 2, v221\nv_and_b32 v223, 3, v223\nv_lshlrev_b32 v223, 11, v223")
    e("v_lshrrev_b32 v224, 4, v221\nv_lshlrev_b32 v224, 6, v224")
    e("v_and_b32 v225, 3, v221\nv_lshlrev_b32 v225, 4, v225")
    e("v_add3_u32 v223, v223, v224, v225")
    e("s_lshl_b32 s32, s26, 21")
    e(f"v_add_u32 v{V_W}, s32, v223")
    for i in range(1, 4):
        e(f"v_add_u32 v{V_W+i}, {i*(8*2048-1024)}, v{V_W}")
    e("v_lshrrev_b32 v223, 4, v221")
    e("v_and_b32 v224, 1, v223\nv_mul_u32_u24 v224, 4104, v224")
    e("v_lshrrev_b32 v223, 1, v223\nv_lshlrev_b32 v223, 10, v223")
    e("v_and_b32 v225, 15, v221\nv_lshlrev_b32 v225, 4, v225")
    e("v_add3_u32 v223, v223, v224, v225")
    e(f"s_mul_i32 s34, s26, {WREG}")
    e(f"v_add_u32 v{V_RD}, s34, v223")
    e("s_lshl_b32 s32, s31, 9")
    e(f"v_add_u32 v{V_RD+1}, s32, v{V_RD}")
    e("s_sub_u32 s32, 512, s32")
    e(f"v_add_u32 v{V_RD+2}, s32, v{V_RD}")
    e("s_mov_b32 s36, 0\ns_mov_b32 s37, 0\ns_mov_b32 s38, 8192")
    for k in range(4):
        e(f"s_add_u32 s{40+2*k}, s34, {k*SLOT}\ns_add_u32 s{41+2*k}, s34, {k*SLOT+4104}")
    def loadO(i):
        L = []
        for c in range(7):
            if c < 4: L.append(f"buffer_load_dwordx4 {ar(Bf(i,c))}, v{V_OA}, s[8:11], s36 offen offset:{c*1024} {opt.get('olf','')}")
            elif c < 6: L.append(f"buffer_load_dwordx4 {ar(Bf(i,c))}, v{V_OB}, s[8:11], s36 offen offset:{(c-4)*1024} {opt.get('olf','')}")
            else: L.append(f"buffer_load_dwordx4 {ar(Bf(i,c))}, v{V_OC}, s[8:11], s36 offen {opt.get('olf','')}")
        L.append("s_add_u32 s36, s36, 13312")
        return L
    def loadW(i):
        k = i % 4
        L = [f"s_mov_b32 m0, s{40+2*k}"]
        for q in range(4): L.append(f"buffer_load_dwordx4 v{V_W+q}, s[12:15], s37 offen offset:{q*1024} {opt.get('wof','')} lds")
        L.append(f"s_mov_b32 m0, s{41+2*k}")
        for q in range(4): L.append(f"buffer_load_dwordx4 v{V_W+q}, s[12:15], s38 offen offset:{q*1024} {opt.get('wof','')} lds")
        L.append("s_add_u32 s37, s37, 65536\ns_add_u32 s38, s38, 65536")
        return L
    def readA(i):
        L = []
        for jl in range(4):
            for u in range(2):
                for uk in range(2):
                    a = Af(i, jl, u) + 2 * uk
                    off = (i % 4) * SLOT + uk * 2048 + (jl & 1) * 256 + u * 8
                    L.append(f"ds_read_b64_tr_b16 {ar(a,2)}, v{V_RD+1+(jl>>1)} offset:{off}")
        return L
    P.extend(loadW(0))
    for i in range(3):
        P.extend(loadO(i)); P.extend(loadW(i + 1))
    e("s_waitcnt vmcnt(45)")
    P.extend(stamp(1, opt))
    P.extend(readA(0))
    pro, lg, vm = finalize_straight(P.ins, tag="k2pro")
    out = list(pro)

    def kstep(i, first=False, loads=True, reads=True, vmw=30):
        S = Prog()
        S.e(f"s_waitcnt vmcnt({vmw}) lgkmcnt(0)")
        extras = []
        if reads: extras += readA(i + 1)
        ld = []
        if loads: ld = loadO(i + 3) + loadW(i + 4)
        mfs = []
        for jl in range(4):
            for u in range(2):
                for c in range(7):
                    if c == 6 and jl >= 2: continue
                    d = vr(acc(c, jl, u))
                    mfs.append(mf(d, ar(Af(i, jl, u)), ar(Bf(i, c)), "0" if first else d))
        gaps = [[] for _ in mfs]
        gi = 1
        for x in ld:
            gaps[min(gi, len(mfs)-1)].append(x)
            if x.startswith("buffer"): gi += 3
        gi = 2
        for k, x in enumerate(extras):
            gaps[gi].append(x); gi += (1 if k % 2 == 0 else 2)
        for m, g in zip(mfs, gaps):
            S.e(m); S.extend(g)
        return S.ins
    seq = []
    for i in range(4): seq += kstep(i, first=(i == 0))
    seq.append(Ins("s_mov_b32 s39, 6"))
    seq, lg, vm = finalize_straight(seq, out, lg, vm, tag="k2peel")
    out += seq
    body = [Ins(".p2align 6"), Ins("L2_loop:")]
    for i in range(4, 8): body += kstep(i)
    body += [Ins("s_sub_u32 s39, s39, 1"), Ins("s_cmp_lg_u32 s39, 0"), Ins("s_cbranch_scc1 L2_loop")]
    body, lg, vm = finalize_loop(body, out, lg, vm, tag="k2loop")
    out += body
    seq = []
    S = kstep(28)
    S = [x for x in S if not (x.kind == "dma" or "m0" in x.wr or x.text.startswith("s_add_u32 s37") or x.text.startswith("s_add_u32 s38"))]
    seq += S
    seq += kstep(29, loads=False, vmw=22)
    seq += kstep(30, loads=False, vmw=7)
    seq += kstep(31, loads=False, reads=False, vmw=0)
    seq, lg, vm = finalize_straight(seq, out, lg, vm, tag="k2tail")
    out += seq
    def owner(pt): return pt % 4 if pt < 24 else pt - 24
    E = Prog(); e = E.e
    E.extend(stamp(2, opt))
    e("s_barrier")
    e("v_lshlrev_b32 v222, 4, v221")
    e("v_add_u32 v223, 65536, v222\nv_add_u32 v224, 131072, v222")
    e("v_and_b32 v225, 15, v221\nv_lshlrev_b32 v225, 11, v225")
    e("v_lshrrev_b32 v226, 4, v221\nv_lshlrev_b32 v226, 4, v226")
    e("s_lshl_b32 s32, s30, 8")
    e("v_add3_u32 v225, v225, v226, s32")
    e("s_lshl_b32 s33, s31, 7")
    e("s_sub_u32 s35, 128, s33")
    e(f"s_mul_i32 s36, s31, {6*32768}")
    e("s_cmp_eq_u32 s26, 1\ns_cbranch_scc1 L2_e1\ns_cmp_eq_u32 s26, 2\ns_cbranch_scc1 L2_e2\ns_cmp_eq_u32 s26, 3\ns_cbranch_scc1 L2_e3")
    pre, lg, vm = finalize_straight(E.ins, out, lg, vm, tag="k2epre")
    out += pre
    def ldsaddr(pt, src, u):
        off = (pt * 3 + src) * 2048 + u * 1024
        return f"v{222 + off // 65536}", off % 65536
    for w in range(4):
        E = Prog(); e = E.e
        e(f"L2_e{w}:")
        for pt in range(26):
            o = owner(pt)
            if o == w: continue
            src = (w - o - 1) % 4
            c, jl = (pt // 4, pt % 4) if pt < 24 else (6, pt - 24)
            for u in range(2):
                a, off = ldsaddr(pt, src, u)
                e(f"ds_write_b128 {a}, {vr(acc(c,jl,u))} offset:{off}")
        e("s_waitcnt lgkmcnt(0)\ns_barrier")
        E.extend(stamp(3, opt))
        mine = [pt for pt in range(26) if owner(pt) == w]
        free = []
        for pt in range(26):
            if owner(pt) != w:
                c, jl = (pt // 4, pt % 4) if pt < 24 else (6, pt - 24)
                free += [acc(c, jl, 0), acc(c, jl, 1)]
        free += [228, 232, 236, 240]
        fi = 0
        tmp = {}
        for pt in mine:
            for src in range(3):
                for u in range(2):
                    a, off = ldsaddr(pt, src, u)
                    tmp[(pt, src, u)] = free[fi]; fi += 1
                    e(f"ds_read_b128 {vr(tmp[(pt,src,u)])}, {a} offset:{off}")
        for pt in mine:
            c, jl = (pt // 4, pt % 4) if pt < 24 else (6, pt - 24)
            for u in range(2):
                r = acc(c, jl, u)
                t0, t1, t2 = (tmp[(pt, s, u)] for s in range(3))
                for h in (0, 2):
                    e(f"v_pk_add_f32 v[{r+h}:{r+h+1}], v[{r+h}:{r+h+1}], v[{t0+h}:{t0+h+1}]")
                    e(f"v_pk_add_f32 v[{t1+h}:{t1+h+1}], v[{t1+h}:{t1+h+1}], v[{t2+h}:{t2+h+1}]")
                for h in (0, 2):
                    e(f"v_pk_add_f32 v[{r+h}:{r+h+1}], v[{r+h}:{r+h+1}], v[{t1+h}:{t1+h+1}]")
            r = acc(c, jl, 0)
            e(f"v_cvt_pk_bf16_f32 v{r}, v{r}, v{r+1}\nv_cvt_pk_bf16_f32 v{r+1}, v{r+2}, v{r+3}")
            e(f"v_cvt_pk_bf16_f32 v{r+2}, v{r+4}, v{r+5}\nv_cvt_pk_bf16_f32 v{r+3}, v{r+6}, v{r+7}")
            js = "s33" if jl < 2 else "s35"
            if c < 6: e(f"s_add_u32 s37, s36, {c*32768}\ns_add_u32 s37, s37, {js}")
            else: e(f"s_add_u32 s37, {js}, {12*32768}")
            e(f"buffer_store_dwordx4 {vr(r)}, v225, s[16:19], s37 offen offset:{(jl&1)*64} {opt.get('outf','')}")
        E.extend(stamp(4, opt))
        if opt.get("prof"): e("s_waitcnt vmcnt(0)")
        E.extend(stamp(5, opt))
        E.extend(stamp_store(6, opt, 24, 0x8100000, 26))
        e("s_endpgm")
        s2, _, _ = finalize_straight(E.ins, out, [], [], tag=f"k2e{w}")
        out += s2
    out.append(Ins("L2_end:")); out.append(Ins("s_endpgm"))
    Q = Prog(); Q.ins = out
    desc = f""".amdhsa_kernel {name}
  .amdhsa_next_free_vgpr 512
  .amdhsa_next_free_sgpr 102
  .amdhsa_accum_offset 256
  .amdhsa_group_segment_fixed_size 0
  .amdhsa_kernarg_size 64
  .amdhsa_user_sgpr_count 2
  .amdhsa_user_sgpr_kernarg_segment_ptr 1
  .amdhsa_system_sgpr_workgroup_id_x 1
.end_amdhsa_kernel
"""
    return Q.text(), desc
```

```python
from asmgen import *
from gen_k2 import mf, vr, ar, WS_O_BYTES_PER_B
import struct, math

SLOT = 32768
NSLOT = 5
QSCALE = math.log2(math.e) / math.sqrt(128.0)
def f32bits(x): return struct.unpack("<I", struct.pack("<f", x))[0]

def O_(c, dt): return vr(c * 32 + dt * 4) if c < 6 else ar(208 + dt * 4)
def NEGM(c): return 192 + 4 * c
def S_(buf, kt): return 220 + buf * 8 + kt * 4
def P_(buf): return 236 + buf * 4
V_KA, V_VA0, V_VA1, V_LANE = 244, 245, 246, 247
V_KV = 248
V_PF = 250
V_T = 252
V_QW, V_QX = 208, 212
V_QRW, V_QRX, V_QRX2, V_BW, V_BX = 216, 217, 218, 219, 220
V_RW = 221
def Q_(c, ds): return c * 16 + ds * 4
def K_(kt, ds): return 112 + kt * 16 + ds * 4
def V_(dt): return 144 + dt * 4
def L_(c): return 176 + 4 * c
ONES = 204
def QA(buf, j2, u): return 112 + buf * 60 + (j2 * 2 + u) * 4
def QB(buf, c): return 112 + buf * 60 + 32 + c * 4
def QACC(c, j2, u, p):
    if c < 6: return (c * 8 + j2 * 2 + u) * 4
    return (48 + (j2 - 2 * p) * 2 + u) * 4
def RREG(t, i):
    k = t * 8 + i
    return 4 * k if k < 28 else 232 + 4 * (k - 28)
S_WAVE, S_HH, S_B, S_HP, S_CNT, S_DST = 24, 25, 26, 27, 28, 29
S_XO, S_WO, S_KO, S_KO2, S_DELTA = 30, 31, 32, 33, 34
S_M0W, S_M0X, S_M0KV, S_RD = 35, 36, 37, 39
S_T = 40
S_FLAG, S_XO2, S_M0X2, S_PREV, S_PFO = 48, 49, 50, 51, 55
S_KA, S_KX = 64, 65
XREG = 16640

def stamp(k, opt):
    if not opt.get("prof"): return []
    return ["s_waitcnt lgkmcnt(0)", "s_memrealtime s[98:99]", "s_memtime s[100:101]", "s_waitcnt lgkmcnt(0)",
            f"v_writelane_b32 v251, s98, {2*k}", f"v_writelane_b32 v251, s100, {2*k+1}"]
def stamp_store(n, opt, wsreg, base, wave):
    if not opt.get("prof"): return []
    return [f"s_add_u32 s60, s{wsreg}, {base}", f"s_addc_u32 s61, s{wsreg+1}, 0", "s_mov_b32 s62, 0x100000", "s_mov_b32 s63, 0x20000",
         f"s_lshl_b32 s55, s2, 2", f"s_add_u32 s55, s55, s{wave}", "s_lshl_b32 s55, s55, 8",
         "v_mbcnt_lo_u32_b32 v250, -1, 0", "v_mbcnt_hi_u32_b32 v250, -1, v250", "v_lshlrev_b32 v250, 2, v250",
         "buffer_store_dword v251, v250, s[60:63], s55 offen"]

def code_pf(lo, hi, idx_sgpr, va, lane128, tmp=S_T+6):
    return [f"s_getpc_b64 s[{tmp}:{tmp+1}]\ns_add_u32 s{tmp}, s{tmp}, {lo}-.-4+4\ns_addc_u32 s{tmp+1}, s{tmp+1}, 0" if False else
            f"s_getpc_b64 s[{tmp}:{tmp+1}]\ns_sub_u32 s{tmp}, s{tmp}, .-{lo}\ns_subb_u32 s{tmp+1}, s{tmp+1}, 0",
            f"v_lshl_add_u32 v{va}, s{idx_sgpr}, 13, v{lane128}",
            f"v_min_u32 v{va}, {hi}-{lo}-4, v{va}",
            f"v_mov_b32 v{va+1}, s{tmp+1}",
            f"v_add_co_u32 v{va}, vcc, s{tmp}, v{va}\ns_nop 1\nv_addc_co_u32 v{va+1}, vcc, 0, v{va+1}, vcc",
            f"global_load_dword v255, v[{va}:{va+1}], off"]
def cost(x): return 1 + x.count("\n")
def isvm(x): return x.startswith("buffer") or x.startswith("global")

class Place:
    def __init__(self): self.m = []; self.g = []; self.cap = []
    def add(self, m, cap=2, fixed=()):
        self.m.append(m); self.g.append(list(fixed)); self.cap.append(cap)
    def at(self, g, items):
        for it in items:
            self.g[g].append(it); self.cap[g] -= cost(it)
    def put(self, pos, items, hi=None, step=0):
        hi = len(self.m) - 1 if hi is None else hi
        for it in items:
            while pos < hi and self.cap[pos] < cost(it): pos += 1
            self.at(pos, [it])
            last = pos
            pos = min(pos + step, hi)
        return last
    def spread(self, lo, hi, items, vmcap=2, group=1):
        nb = sum(1 for x in items if isvm(x))
        cand = [k for k in range(lo + 1, hi) if self.cap[k] >= vmcap]
        assert len(cand) >= nb, (len(cand), nb)
        ng = -(-nb // group)
        pick = []
        for gi in range(ng):
            st = (gi * len(cand)) // ng
            for q in range(min(group, nb - gi * group)): pick.append(cand[st + q])
        assert pick == sorted(set(pick)), pick
        bi = 0; prev = lo
        for idx, x in enumerate(items):
            if isvm(x):
                g = pick[bi]; bi += 1
                self.g[g].append(x); self.cap[g] -= vmcap; prev = g
            else:
                lim = pick[bi] if bi < nb else hi
                q = prev
                while q < lim - 1 and (self.cap[q] < cost(x) or q in pick[bi:]): q += 1
                if self.cap[q] < cost(x): q = prev if bi > 0 or True else q
                self.at(q, [x]); prev = q
        return prev
    def ins(self, lo=0, hi=None):
        out = []
        for k in range(lo, len(self.m) if hi is None else hi):
            if self.m[k]: out.append(Ins(self.m[k]))
            for x in self.g[k]:
                for line in x.split("\n"): out.append(Ins(line))
        return out

def ring_next(reg):
    return [f"s_add_u32 s{reg}, s{reg}, {SLOT}", f"s_cmp_eq_u32 s{reg}, {SLOT*NSLOT}\ns_cselect_b32 s{reg}, 0, s{reg}"]
def I(lst): return [Ins(l) for x in lst for l in x.split("\n")]

DESC = """.amdhsa_kernel {name}
  .amdhsa_next_free_vgpr 512
  .amdhsa_next_free_sgpr 102
  .amdhsa_accum_offset 256
  .amdhsa_group_segment_fixed_size 0
  .amdhsa_kernarg_size 64
  .amdhsa_user_sgpr_count 2
  .amdhsa_user_sgpr_kernarg_segment_ptr 1
  .amdhsa_system_sgpr_workgroup_id_x 1
.end_amdhsa_kernel
"""

def gen_k1(name="attn_kernel", opt=None):
    opt = opt or {}
    P = Prog(); e = P.e
    e(f".p2align 8\n.type {name},@function\n{name}:")
    e("s_cmp_ge_u32 s2, 256\ns_cbranch_scc1 L1_end")
    P.extend(stamp(0, opt))
    e("s_load_dwordx4 s[40:43], s[0:1], 0")
    e("s_load_dwordx4 s[44:47], s[0:1], 16")
    e("s_load_dwordx2 s[4:5], s[0:1], 56")
    e("s_load_dwordx2 s[6:7], s[0:1], 32")
    L = V_LANE
    t0, t1, t2, t3 = V_T, V_T + 1, V_T + 2, V_T + 3
    e(f"v_lshrrev_b32 v{t0}, 6, v0")
    e(f"v_and_b32 v{L}, 63, v0")
    e(f"v_readfirstlane_b32 s{S_WAVE}, v{t0}")
    e("s_and_b32 s90, s2, 7\ns_lshr_b32 s91, s2, 3")
    e(f"s_lshr_b32 s{S_B}, s90, 1\ns_lshl_b32 s{S_B}, s{S_B}, 2\ns_lshr_b32 s52, s91, 3\ns_add_u32 s{S_B}, s{S_B}, s52")
    e(f"s_and_b32 s{S_HP}, s90, 1\ns_lshl_b32 s{S_HP}, s{S_HP}, 3\ns_and_b32 s52, s91, 7\ns_add_u32 s{S_HP}, s{S_HP}, s52")
    e(f"s_lshr_b32 s{S_HH}, s{S_WAVE}, 1\ns_and_b32 s53, s{S_WAVE}, 1")
    e(f"v_lshrrev_b32 v{t0}, 2, v{L}\nv_and_b32 v{t0}, 3, v{t0}")
    e(f"v_lshrrev_b32 v{t1}, 4, v{L}")
    e(f"v_and_b32 v{t2}, 3, v{L}")
    e(f"v_lshlrev_b32 v{V_QW}, 13, v{t0}\nv_lshl_add_u32 v{V_QW}, v{t1}, 6, v{V_QW}\nv_lshl_add_u32 v{V_QW}, v{t2}, 4, v{V_QW}")
    e(f"s_lshl_b32 s52, s{S_WAVE}, 16\ns_add_u32 s52, s52, 4096\nv_add_u32 v{V_QW}, s52, v{V_QW}")
    for i in range(1, 4):
        d = (i & 1) * 4 * 8192 + (i >> 1) * 256 - i * 1024
        e(f"v_add_u32 v{V_QW+i}, {d}, v{V_QW}" if d >= 0 else f"v_subrev_u32 v{V_QW+i}, {-d}, v{V_QW}")
    e(f"v_lshrrev_b32 v{V_QX}, 2, v{L}\nv_and_b32 v{V_QX}, 7, v{V_QX}")
    e(f"v_lshrrev_b32 v{t3}, 2, v{V_QX}\nv_lshlrev_b32 v{t3}, 1, v{t3}\nv_xor_b32 v{t3}, v{t3}, v{t2}")
    e(f"v_lshlrev_b32 v{V_QX}, 11, v{V_QX}\nv_lshl_add_u32 v{V_QX}, v{t3}, 4, v{V_QX}")
    e(f"v_lshrrev_b32 v{t3}, 5, v{L}\nv_lshl_add_u32 v{V_QX}, v{t3}, 6, v{V_QX}")
    for i in range(1, 4): e(f"v_add_u32 v{V_QX+i}, {i*(16384-1024)}, v{V_QX}")
    e(f"s_lshl_b32 s52, s{S_WAVE}, 2\ns_lshr_b32 s52, 0xb480, s52\ns_and_b32 s52, s52, 15")
    e(f"s_lshl_b32 s{S_XO}, s52, 14\ns_lshl_b32 s{S_M0X}, s52, 10\ns_add_u32 s{S_M0X}, s{S_M0X}, {XREG}")
    e(f"s_mul_i32 s52, s{S_WAVE}, 3")
    e(f"s_lshl_b32 s{S_XO2}, s52, 14\ns_add_u32 s{S_XO2}, s{S_XO2}, {14*16384}")
    e(f"s_lshl_b32 s{S_M0X2}, s52, 10\ns_add_u32 s{S_M0X2}, s{S_M0X2}, {XREG}")
    e(f"s_mul_i32 s{S_M0W}, s53, 8200\ns_lshl_b32 s54, s{S_HH}, 12\ns_add_u32 s{S_M0W}, s{S_M0W}, s54")
    e(f"s_mov_b32 s{S_WO}, 0")
    if opt.get("qrole"):
        e(f"s_mul_i32 s52, s{S_HH}, 7\ns_lshl_b32 s{S_XO}, s52, 14\ns_lshl_b32 s{S_M0X}, s52, 10\ns_add_u32 s{S_M0X}, s{S_M0X}, {XREG}")
        e(f"s_mul_i32 s52, s{S_HH}, 6\ns_lshl_b32 s{S_XO2}, s52, 14\ns_add_u32 s{S_XO2}, s{S_XO2}, {14*16384}")
        e(f"s_lshl_b32 s{S_M0X2}, s52, 10\ns_add_u32 s{S_M0X2}, s{S_M0X2}, {XREG}")
    e(f"s_mul_i32 s52, s{S_B}, 425984\ns_lshl_b32 s54, s{S_HP}, 9")
    e("s_mov_b32 s10, 425984\ns_mov_b32 s11, 0x20000\ns_mov_b32 s15, 0x20000")
    e(f"s_sub_u32 s14, {8388608+4096}, s54")
    e("s_waitcnt lgkmcnt(0)")
    e("s_add_u32 s8, s40, s52\ns_addc_u32 s9, s41, 0")
    e("s_add_u32 s12, s46, s54\ns_addc_u32 s13, s47, 0\ns_sub_u32 s12, s12, 4096\ns_subb_u32 s13, s13, 0")
    e("s_cmp_eq_u32 s53, 1\ns_cbranch_scc1 L1_p1")
    head, _, _ = finalize_straight(P.ins, tag="k1head")
    out = list(head)
    for p in range(2):
        out += gen_path(p, head, opt)
    out.append(Ins("L1_end:")); out.append(Ins("s_endpgm"))
    Q = Prog(); Q.ins = out
    return Q.text(), DESC.format(name=name)

def setup2(p, opt):
    P = Prog(); e = P.e
    L = V_LANE
    t0, t1, t2, t3 = V_T, V_T + 1, V_T + 2, V_T + 3
    kv = (42, 43) if p == 0 else (44, 45)
    e(f"s_lshl_b32 s52, s{S_B}, 5\ns_lshl_b32 s54, s{S_HP}, 1\ns_add_u32 s52, s52, s54\ns_add_u32 s52, s52, s{S_HH}")
    if opt.get("kvrot", 1) == 1: e(f"s_lshr_b32 s54, s52, 5\ns_mul_i32 s54, s54, 11\ns_add_u32 s54, s54, s52\ns_and_b32 s54, s54, 31\ns_lshl_b32 s{S_KX}, s54, 13")
    else: e(f"s_mov_b32 s{S_KX}, 0")
    if opt.get("kvsame"): e(f"s_mov_b32 s52, s{S_HH}")
    e("s_lshl_b32 s54, s52, 18")
    e("s_add_u32 s72, s42, s54\ns_addc_u32 s73, s43, 0\ns_mov_b32 s74, 262144\ns_mov_b32 s75, 0x20000")
    e(f"s_add_u32 s16, s{kv[0]}, s54\ns_addc_u32 s17, s{kv[1]}, 0\ns_mov_b32 s18, 262144\ns_mov_b32 s19, 0x20000")
    e(f"s_mul_i32 s52, s{S_B}, {WS_O_BYTES_PER_B}")
    e(f"s_add_u32 s20, s4, s52\ns_addc_u32 s21, s5, 0\ns_mov_b32 s22, {WS_O_BYTES_PER_B}\ns_mov_b32 s23, 0x20000")
    e("s_mov_b32 s56, s6\ns_mov_b32 s57, s7\ns_mov_b32 s58, 8388608\ns_mov_b32 s59, 0x20000")
    e(f"s_lshl_b32 s{S_M0KV}, s{S_WAVE}, 13")
    e(f"v_and_b32 v{V_QRW}, 1, v{t1}\nv_mul_u32_u24 v{V_QRW}, 8200, v{V_QRW}")
    e(f"v_lshrrev_b32 v{V_QRX}, 1, v{t1}\nv_lshl_add_u32 v{V_QRW}, v{V_QRX}, 12, v{V_QRW}")
    e(f"v_and_b32 v{V_QRX}, 15, v{L}\nv_lshl_add_u32 v{V_QRW}, v{V_QRX}, 4, v{V_QRW}")
    e(f"s_lshl_b32 s54, s{S_HH}, 11\nv_add_u32 v{V_QRW}, s54, v{V_QRW}")
    e(f"v_and_b32 v{t3}, 1, v{t0}\nv_lshlrev_b32 v{t3}, 1, v{t3}\nv_xor_b32 v{t3}, v{t3}, v{t1}\nv_lshlrev_b32 v{t3}, 4, v{t3}")
    e(f"v_and_b32 v{V_QRX2}, 7, v{L}\nv_lshl_add_u32 v{V_QRX2}, v{V_QRX2}, 6, v{t3}")
    e(f"v_lshrrev_b32 v{V_QRX}, 3, v{V_QRX}\nv_lshl_add_u32 v{V_QRX}, v{V_QRX}, 10, v{V_QRX2}")
    e(f"v_add_u32 v{V_QRX}, {XREG}, v{V_QRX}\nv_add_u32 v{V_QRX2}, {SLOT}, v{V_QRX}")
    e(f"v_mov_b32 v{V_BW}, v{V_QRW}\nv_mov_b32 v{V_BX}, v{V_QRX}")
    e(f"v_lshl_add_u32 v{V_KA}, v{t0}, 10, v{t3}\nv_lshl_add_u32 v{V_KA}, v{t2}, 6, v{V_KA}")
    e(f"s_lshl_b32 s54, s{S_HH}, 14\ns_add_u32 s54, s54, {2*SLOT}\nv_add_u32 v{V_KA}, s54, v{V_KA}")
    e(f"v_lshlrev_b32 v{V_VA0}, 10, v{t1}\nv_lshl_add_u32 v{V_VA0}, v{t0}, 6, v{V_VA0}\nv_lshl_add_u32 v{V_VA0}, v{t2}, 3, v{V_VA0}")
    e(f"s_add_u32 s54, s54, 8192\nv_add_u32 v{V_VA0}, s54, v{V_VA0}")
    e(f"v_and_b32 v{t3}, 1, v{t1}\nv_lshl_add_u32 v{V_VA0}, v{t3}, 5, v{V_VA0}\nv_xor_b32 v{V_VA1}, 32, v{V_VA0}")
    e(f"v_lshlrev_b32 v{V_KV}, 8, v{t0}\nv_lshl_add_u32 v{V_KV}, v{t1}, 6, v{V_KV}\nv_lshl_add_u32 v{V_KV}, v{t2}, 4, v{V_KV}")
    e(f"v_xor_b32 v{V_KV+1}, 32, v{V_KV}\nv_lshlrev_b32 v{V_PF}, 7, v{L}")
    e(f"v_lshlrev_b32 v{t3}, 4, v{L}\nv_add_u32 v{t3}, s{S_M0KV}, v{t3}")
    for t in range(4): e(f"v_add_u32 v{V_RW+t}, {((2+t)%5)*SLOT}, v{t3}")
    e(f"s_mov_b32 s{S_DST}, 0\ns_mov_b32 s{S_RD}, 0\ns_mov_b32 s{S_KA}, 0\ns_mov_b32 s{S_KO}, s{S_KX}\ns_or_b32 s{S_KO2}, s{S_KX}, 4096\ns_mov_b32 s{S_FLAG}, 0\ns_mov_b32 s{S_PREV}, {4*SLOT}")
    return [i.text for i in P.ins]

def gen_path(p, head, opt):
    verbose = opt.get("verbose", False)
    KVF = opt.get("kvflags", "nt")
    NR = opt.get("nr", 4)
    nxa = 4 if p == 0 else 3
    tag = f"p{p}"
    out = []
    vmq = []
    def vm_wait(tags):
        last = max((k for k, t in enumerate(vmq) if t in tags), default=None)
        if last is None: return 63
        return min(63, len(vmq) - 1 - last)
    role = opt.get("qrole")
    def dmaW(s, slot):
        if role and p == 1: return []
        L = [f"s_add_u32 m0, s{S_M0W}, {slot}"]
        for i in range(4): L.append(f"buffer_load_dwordx4 v{V_QW+i}, s[12:15], s{S_WO} offen offset:{i*1024} {opt.get('wqf','')} lds")
        vmq.extend([("W", s)] * 4)
        if role:
            L += [f"s_add_u32 m0, m0, 8200", f"s_add_u32 s70, s{S_WO}, 65536"]
            for i in range(4): L.append(f"buffer_load_dwordx4 v{V_QW+i}, s[12:15], s70 offen offset:{i*1024} {opt.get('wqf','')} lds")
            vmq.extend([("W", s)] * 4)
        L.append(f"s_add_u32 s{S_WO}, s{S_WO}, 262144")
        return L
    def dmaX(which, sig, slot):
        if role and p == 1: return []
        n = nxa if which == "A" else 3
        if role: n = 7 if which == "A" else 6
        m0r, so = (S_M0X, S_XO) if which == "A" else (S_M0X2, S_XO2)
        L = [f"s_add_u32 m0, s{m0r}, {slot}"]
        for i in range(min(n, 4)): L.append(f"buffer_load_dwordx4 v{V_QX+i}, s[8:11], s{so} offen offset:{i*1024} {opt.get('xf','')} lds")
        if n > 4:
            L += [f"s_add_u32 m0, m0, 4096", f"s_add_u32 s70, s{so}, 65536"]
            for i in range(n - 4): L.append(f"buffer_load_dwordx4 v{V_QX+i}, s[8:11], s70 offen offset:{i*1024} {opt.get('xf','')} lds")
        L.append(f"s_add_u32 s{so}, s{so}, 128")
        vmq.extend([("X" + which, sig)] * n)
        return L
    KVADV = [f"s_add_u32 s{S_KA}, s{S_KA}, 8192", f"s_xor_b32 s{S_KO}, s{S_KA}, s{S_KX}", f"s_or_b32 s{S_KO2}, s{S_KO}, 4096"]
    KVRST = f"s_mov_b32 s{S_KA}, 0\ns_mov_b32 s{S_KO}, s{S_KX}\ns_or_b32 s{S_KO2}, s{S_KX}, 4096"
    def dmaKV(base, t, track=True):
        L = [f"s_add_u32 m0, s{S_M0KV}, {base}"]
        for i in range(4): L.append(f"buffer_load_dwordx4 v{V_KV+(i&1)}, s[16:19], s{S_KO} offen offset:{i*1024} {KVF} lds")
        L.append("s_add_u32 m0, m0, 4096")
        for i in range(4): L.append(f"buffer_load_dwordx4 v{V_KV+(i&1)}, s[16:19], s{S_KO2} offen offset:{i*1024} {KVF} lds")
        L += KVADV
        if track: vmq.extend([("KV", t)] * 8)
        return L
    def regKV(k):
        t, i = divmod(k, 8)
        L = [f"buffer_load_dwordx4 {ar(RREG(t,i))}, v{V_KV+(i&1)}, s[16:19], s{S_KO if i < 4 else S_KO2} offen offset:{(i&3)*1024} {KVF}"]
        if i == 7: L += KVADV
        vmq.append(("R", t))
        return L
    def wrKV(t): return [f"ds_write_b128 v{V_RW+t}, {ar(RREG(t,i))} offset:{i*1024}" for i in range(8)]
    def mt_of(c): return 6 * p + c if c < 6 else 12
    def readQ(s):
        buf = s % 2; kh = s % 2
        order = [f"ds_read_b64_tr_b16 {ar(QA(buf,j2,u)+2*uk,2)}, v{V_QRW} offset:{uk*1024+j2*256+u*8}"
                 for j2 in range(4) for u in range(2) for uk in range(2)]
        xs = []
        for c in range(7):
            mt = mt_of(c)
            if mt < 7: xs.append(f"ds_read_b128 {ar(QB(buf,c))}, v{V_QRX} offset:{mt*2048+kh*512}")
            else: xs.append(f"ds_read_b128 {ar(QB(buf,c))}, v{V_QRX2} offset:{(mt-7)*2048+kh*512}")
        return order[:2] + xs + order[2:]
    def adv_rd(s):
        L = ring_next(S_RD) + [f"v_add_u32 v{V_QRW}, s{S_RD}, v{V_BW}"]
        if (s + 1) % 2 == 0:
            L += [f"v_add_u32 v{V_QRX}, s{S_RD}, v{V_BX}", f"s_add_u32 s{S_T}, s{S_RD}, {SLOT}",
                  f"s_cmp_eq_u32 s{S_T}, {SLOT*NSLOT}\ns_cselect_b32 s{S_T}, 0, s{S_T}", f"v_add_u32 v{V_QRX2}, s{S_T}, v{V_BX}"]
        return L
    def need(s): return {("W", s), ("XA", s // 2), ("XB", s // 2)}
    P = Prog(); e = P.e
    e(f"L1_p{p}:")
    P.extend(dmaW(0, 0)); P.extend(dmaX("A", 0, 0)); P.extend(dmaX("B", 0, SLOT)); P.extend(dmaW(1, SLOT))
    P.extend(setup2(p, opt))
    if opt.get("qpf"):
        e(f"s_mov_b32 s69, {opt.get('qpf0',5)*8192}\ns_xor_b32 s68, s69, s{S_KX}\nv_lshlrev_b32 v228, 6, v{V_LANE}")
    if opt.get("early", 1) >= 1:
        P.extend(dmaW(2, 2 * SLOT)); P.extend(dmaX("A", 1, 2 * SLOT)); P.extend(dmaX("B", 1, 3 * SLOT))
    w0 = vm_wait(need(0))
    if opt.get("cpf", True):
        e(f"s_lshr_b32 s{S_PFO}, s2, 3\ns_lshl_b32 s{S_PFO}, s{S_PFO}, 2\ns_add_u32 s{S_PFO}, s{S_PFO}, s{S_WAVE}\ns_and_b32 s{S_PFO}, s{S_PFO}, 15")
        P.extend(code_pf("attn_kernel", "L_code_end", S_PFO, 226, V_PF))
        vmq.append(("T", "code")); w0 = min(63, w0 + 1)
    e(f"s_waitcnt vmcnt({w0})\ns_barrier")
    P.extend(stamp(1, opt))
    P.extend(readQ(0)); P.extend(adv_rd(0))
    if opt.get("early", 1) < 1:
        P.extend(dmaW(2, 2 * SLOT)); P.extend(dmaX("A", 1, 2 * SLOT)); P.extend(dmaX("B", 1, 3 * SLOT))
    seq, lg, vm = finalize_straight(P.ins, head, tag=tag + "pro", verbose=verbose)
    out += seq
    rs0, rs1 = opt.get("rstages", (10, 26))
    rsched = {}
    for k in range(NR * 8): rsched.setdefault(rs0 + (k * (rs1 - rs0)) // (NR * 8), []).append(k)
    kv_at = {0: (27, "cur"), 1: (29, "prev"), 2: (29, "cur"), 3: (31, "prev")}
    def qstage(s):
        buf = s % 2
        pl = Place()
        wtags = need(s + 1) if s < 31 else set()
        wr = []
        for t, (st, which) in kv_at.items():
            if st == s and t < NR: wtags = wtags | {("R", t)}; wr += wrKV(t)
        pl.add(None, 0, [f"s_waitcnt vmcnt({vm_wait(wtags)}) lgkmcnt(0)", "s_barrier"])
        for j2 in range(4):
            for u in range(2):
                for c in range(7):
                    if c == 6 and (j2 >> 1) != p: continue
                    d = vr(QACC(c, j2, u, p))
                    pl.add(mf(d, ar(QA(buf, j2, u)), ar(QB(buf, c)), "0" if s == 0 else d), cap=2)
        dm = []
        cur, prev = f"s{S_DST}", f"s{S_PREV}"
        if s == 0: dm += dmaW(3, 3 * SLOT) + dmaW(4, 4 * SLOT)
        sig = (s + 4) // 2
        if sig <= 15: dm += dmaX("A" if s % 2 == 0 else "B", sig, prev)
        if s + 5 <= 31: dm += dmaW(s + 5, cur)
        for k in rsched.get(s, []): dm += regKV(k)
        for t, (st, which) in kv_at.items():
            if st == s and t >= NR: dm += dmaKV(cur if which == "cur" else prev, t)
        q0, q1 = opt.get("qpfr", (2, 24))
        if opt.get("qpf") and role and p == 1 and q0 <= s < q1:
            n = opt["qpf"]
            for q in range(n):
                isv = (s % 2) if n == 1 else (q % 2)
                srd = "s[16:19]" if isv else "s[72:75]"
                dm += [f"buffer_load_dword v255, v228, {srd}, s68 offen {opt.get('qpff','')}"]; vmq.append(("T", "kv"))
                if isv: dm += [f"s_add_u32 s69, s69, 4096", f"s_xor_b32 s68, s69, s{S_KX}"]
        if s in opt.get("cpf2", []):
            dm += ["global_load_dword v255, v[226:227], off"]; vmq.append(("T", "code"))
        dm += [f"s_mov_b32 s{S_PREV}, s{S_DST}"] + ring_next(S_DST)
        if any(isvm(x) for x in dm): pl.spread(1, 50, dm, vmcap=1)
        else: pl.put(40, dm)
        pos = 1
        if s < 31:
            pos = pl.put(1, readQ(s + 1), step=1)
            pos = pl.put(pos + 1, adv_rd(s + 1))
        if wr: pl.put(pos + 1, wr, step=1)
        res = pl.ins()
        abl = opt.get("abl", "")
        if 4 <= s < 26:
            if "nodma" in abl: res = [x for x in res if x.kind != "dma"]
            if "noread" in abl: res = [x for x in res if x.kind != "dsr"]
            if "nobar" in abl: res = [x for x in res if x.op != "s_barrier"]
            if "chain" in abl:
                k = 0; r2 = []
                ch = int(abl.split("chain")[1][0])
                for x in res:
                    if x.kind == "mfma":
                        ops = x.text.split(None, 1)[1].split(", ")
                        if k % ch == 0: dkeep = ops[0]
                        x = Ins(mf(dkeep, ops[1], ops[2], dkeep)); k += 1
                    r2.append(x)
                res = r2
        return res
    stages = [qstage(s) for s in range(32)]
    txt = lambda L: [i.text for i in L]
    LO = opt.get('lo', 4); HI = LO
    while HI + 2 <= 32 and txt(stages[HI]) == txt(stages[LO]) and txt(stages[HI + 1]) == txt(stages[LO + 1]): HI += 2
    if opt.get("qunroll"): HI = LO + 2
    if p == 0: print("qproj loop stages", LO, HI)
    seq = []
    for s in range(LO): seq += stages[s]
    seq += I(stamp(2, opt)) + [Ins(f"s_mov_b32 s{S_CNT}, {(HI-LO)//2}")]
    stag = opt.get("stag", 0)
    if stag:
        if opt.get("stagall"):
            seq += I([f"s_mov_b32 s{S_CNT}, {(HI-LO)//2+stag}"])
        elif opt.get("stagl", 1) == 1:
            seq += I([f"s_bitcmp1_b32 s2, {opt.get('stagbit',3)}", f"s_cselect_b32 s{S_CNT}, {(HI-LO)//2+stag}, s{S_CNT}"])
        else:
            seq += I([f"s_lshr_b32 s66, s2, 3", f"s_and_b32 s66, s66, {opt['stagl']}", f"s_mul_i32 s66, s66, {stag}", f"s_add_u32 s{S_CNT}, s{S_CNT}, s66"])
        stages[LO + 1] = stages[LO + 1] + I([f"s_and_b32 s{S_WO}, s{S_WO}, 0x3fffff", f"s_and_b32 s{S_XO}, s{S_XO}, 0xfffffbff", f"s_and_b32 s{S_XO2}, s{S_XO2}, 0xfffffbff"])
    seq, lg, vm = finalize_straight(seq, out, lg, vm, tag=tag + "q01", verbose=verbose)
    out += seq
    body = [Ins(".p2align 6"), Ins(f"L1_q{p}:")] + stages[LO] + stages[LO + 1] + \
           I([f"s_sub_u32 s{S_CNT}, s{S_CNT}, 1", f"s_cmp_lg_u32 s{S_CNT}, 0", f"s_cbranch_scc1 L1_q{p}"])
    body, lg, vm = finalize_loop(body, out, lg, vm, tag=tag + "qloop", verbose=verbose)
    out += body
    seq = []
    for s in range(HI, 32):
        if s == 26: seq += I(stamp(3, opt))
        seq += stages[s]
    E = Prog(); e = E.e
    E.extend(stamp(4, opt))
    e(f"s_mov_b32 s{S_T}, {f32bits(QSCALE):#x}\ns_mov_b32 s{S_T+1}, {f32bits(QSCALE):#x}")
    e(f"v_subrev_u32 v{V_T+1}, {SLOT}, v{V_RW}")
    e(f"v_xor_b32 v{V_T}, 8192, v{V_T+1}")
    e("s_waitcnt lgkmcnt(0)")
    for c in [6, 0, 1, 2, 3, 4, 5]:
        for j2 in range(4):
            if c == 6 and (j2 >> 1) != p: continue
            r = QACC(c, j2, 0, p)
            for h in range(0, 8, 2): e(f"v_pk_mul_f32 v[{r+h}:{r+h+1}], v[{r+h}:{r+h+1}], s[{S_T}:{S_T+1}]")
            for h in range(4): e(f"v_cvt_pk_bf16_f32 v{r+h}, v{r+2*h}, v{r+2*h+1}")
            if c == 6: e(f"ds_write_b128 v{V_T}, {vr(r)} offset:{(j2&1)*1024}")
            for h in range(4): e(f"v_accvgpr_write_b32 a{Q_(c,j2)+h}, v{r+h}")
    e(f"v_mov_b32 v{V_T+2}, 0x3f803f80")
    for h in range(4): e(f"v_accvgpr_write_b32 a{ONES+h}, v{V_T+2}")
    e(f"s_waitcnt vmcnt({vm_wait({('KV',0)})}) lgkmcnt(0)\ns_barrier")
    E.extend(stamp(5, opt))
    for i in range(2): e(f"ds_read_b128 {ar(Q_(6, 2*(1-p)+i))}, v{V_T+1} offset:{i*1024}")
    def readK(kts=(0, 1)):
        return [f"ds_read_b128 {ar(K_(kt,ds))}, v{V_KA} offset:{kt*4096+ds*256}" for kt in kts for ds in range(4)]
    def readV(dt):
        return [f"ds_read_b64_tr_b16 {ar(V_(dt)+2*kt,2)}, v{V_VA0+(dt&1)} offset:{kt*4096+(dt>>1)*256}" for kt in range(2)]
    E.extend(readK())
    e("s_waitcnt lgkmcnt(8)")
    def qk_all():
        L = []
        for c in range(7):
            for kt in range(2):
                for ds in range(4):
                    d = vr(c * 8 + kt * 4)
                    L.append(mf(d, ar(K_(kt, ds)), ar(Q_(c, ds)), "0" if ds == 0 else d))
        return L
    pl = Place()
    for m in qk_all(): pl.add(m, 2)
    ex = dmaKV(SLOT, 4)
    ex += [f"s_lshl_b32 s{S_PFO}, s2, 2\ns_add_u32 s{S_PFO}, s{S_PFO}, s{S_WAVE}", f"s_lshl_b32 s{S_PFO}, s{S_PFO}, 13"]
    pl.spread(0, 40, ex, vmcap=1)
    pl.put(1, [x for dt in range(8) for x in readV(dt)], step=1)
    E.ins += pl.ins()
    for c in range(7):
        r = c * 8
        e(f"v_max3_f32 v{r}, v{r}, v{r+1}, v{r+2}\nv_max3_f32 v{r+3}, v{r+3}, v{r+4}, v{r+5}\nv_max3_f32 v{r}, v{r}, v{r+6}, v{r+7}\nv_max_f32 v{r}, v{r}, v{r+3}")
    seq += E.ins
    seq, lg, vm = finalize_straight(seq, out, lg, vm, tag=tag + "qtail", verbose=verbose)
    out += seq
    E = Prog(); e = E.e
    e(f"L1_m{p}:")
    e("s_waitcnt lgkmcnt(0)")
    for c in range(7): e(f"v_mov_b32 v{c*8+1}, v{c*8}")
    for c in range(7): e(f"v_permlane32_swap_b32 v{c*8}, v{c*8+1}")
    for c in range(7): e(f"v_max_f32 v{c*8}, v{c*8}, v{c*8+1}\nv_mov_b32 v{c*8+1}, v{c*8}")
    for c in range(7): e(f"v_permlane16_swap_b32 v{c*8}, v{c*8+1}")
    for c in range(7): e(f"v_max_f32 v{c*8}, v{c*8}, v{c*8+1}")
    for c in range(7):
        for h in range(4): e(f"v_sub_f32 v{NEGM(c)+h}, 0, v{c*8}")
    e(f"s_mov_b32 s{S_DST}, {2*SLOT}\ns_mov_b32 s{S_RD}, {2*SLOT}")
    E.extend(stamp(6, opt))
    pre_a = E.ins

    units = []
    for t in range(32):
        if t % 2 == p: units.append((t, 6))
        for c in range(6): units.append((t, c))
    N = len(units)
    first_pv = set()
    pl = Place()
    slot_start = []
    for n in range(N + 2):
        slot_start.append(len(pl.m))
        qk = units[n] if n < N else None
        sm = units[n - 1] if 1 <= n <= N else None
        pv = units[n - 2] if n >= 2 else None
        def Qm(kt, ds):
            if not qk: return None
            d = vr(S_(n % 2, kt))
            return mf(d, ar(K_(kt, ds)), ar(Q_(qk[1], ds)), vr(NEGM(qk[1])) if ds == 0 else d)
        fst = pv is not None and pv[1] not in first_pv
        def Pm(dt):
            if not pv: return None
            d = O_(pv[1], dt)
            return mf(d, ar(V_(dt)), vr(P_(n % 2)), "0" if fst else d)
        def Lm():
            if not pv: return None
            d = ar(L_(pv[1]))
            return mf(d, ar(ONES), vr(P_(n % 2)), "0" if fst else d)
        if pv: first_pv.add(pv[1])
        sb = (n - 1) % 2
        def Ex(i): return [f"v_exp_f32 v{S_(sb,0)+i}, v{S_(sb,0)+i}"] if sm else []
        def Cv(i): return [f"v_cvt_pk_bf16_f32 v{P_(sb)+i}, v{S_(sb,0)+2*i}, v{S_(sb,0)+2*i+1}"] if sm else []
        pl.add(None, 0)
        for ds in range(4): pl.add(Qm(0, ds), 0, Ex(ds))
        pl.add(Pm(0), 1, Cv(0)); pl.add(Pm(1), 1, Cv(1))
        pl.add(Pm(2), 2); pl.add(Pm(3), 2)
        pl.add(None, 0)
        for ds in range(4): pl.add(Qm(1, ds), 0, Ex(4 + ds))
        pl.add(Pm(4), 1, Cv(2)); pl.add(Pm(5), 1, Cv(3))
        pl.add(Pm(6), 2); pl.add(Pm(7), 2)
        pl.add(Lm(), 2)
    slot_start.append(len(pl.m))
    G = lambda n, k: slot_start[n] + k
    at = lambda n, k, items: pl.at(G(n, k), items)
    last_of = {}
    for n, (t, c) in enumerate(units): last_of[t] = n
    for t in range(31):
        n = last_of[t]
        k0 = readK((0,)); k1 = readK((1,))
        at(n, 7, k0[:2]); at(n, 8, k0[2:]); at(n, 16, k1[:2]); at(n, 17, k1[2:])
        at(n, 18, ["s_waitcnt lgkmcnt(4)"])
        at(n + 1, 8, ["s_waitcnt lgkmcnt(0)"])
        m = n + 2
        v = [readV(dt) for dt in range(8)]
        at(m, 5, v[0][:1]); at(m, 6, v[0][1:]); at(m, 7, v[1]); at(m, 8, v[2])
        at(m, 14, v[3][:1]); at(m, 15, v[3][1:]); at(m, 16, v[4]); at(m, 17, v[5]); at(m, 18, v[6])
        at(m + 1, 4, ["s_waitcnt lgkmcnt(6)"])
        at(m + 1, 5, v[7][:1]); at(m + 1, 6, v[7][1:])
        at(m + 1, 8, ["s_waitcnt lgkmcnt(2)"])
        at(m + 1, 16, ["s_waitcnt lgkmcnt(0)"])
        T4 = S_T + 4
        at(n - 1, 5, [f"s_add_u32 s{T4}, s{S_RD}, {SLOT}"])
        at(n - 1, 7, [f"s_cmp_eq_u32 s{T4}, {SLOT*NSLOT}\ns_cselect_b32 s{T4}, 0, s{T4}"])
        at(n - 1, 14, [f"s_sub_u32 s{S_DELTA}, s{T4}, s{S_RD}"]); at(n - 1, 15, [f"s_mov_b32 s{S_RD}, s{T4}"])
        at(n, 5, [f"v_add_u32 v{V_KA}, s{S_DELTA}, v{V_KA}"])
        at(n + 1, 14, [f"v_add_u32 v{V_VA0}, s{S_DELTA}, v{V_VA0}"]); at(n + 1, 15, [f"v_add_u32 v{V_VA1}, s{S_DELTA}, v{V_VA1}"])
    for j in range(32):
        D = j // 2
        g = G(13 * D + 5, 0) if j % 2 == 0 else G(13 * D + 11, 9)
        nxt = G(13 * D + 11, 9) if j % 2 == 0 else G(min(13 * D + 18, N + 2), 0)
        w = min(24, vm_wait({('KV', j + 1)})) if j < 31 else None
        if j >= 30:
            if j == 30:
                pl.g[g] += [f"s_waitcnt vmcnt(0)", "s_barrier"]
                if opt.get("wopf", True): pl.put(g + 1, [f"buffer_load_dword v255, v{V_PF}, s[56:59], s{S_PFO} offen"])
            continue
        pl.g[g] += [f"s_waitcnt vmcnt({w})", "s_barrier"]
        dm = dmaKV(f"s{S_DST}", j + 5) + ring_next(S_DST)
        pl.spread(g, nxt, dm, vmcap=opt.get("vmcap", 2), group=opt.get("dmagroup", 1))
    seq = pre_a + pl.ins(0, G(13, 0)) + I(stamp(7, opt)) + [Ins(f"s_mov_b32 s{S_CNT}, 7")]
    seq, lg, vm = finalize_straight(seq, out, lg, vm, tag=tag + "a0", verbose=verbose)
    out += seq
    per = G(39, 0) - G(13, 0)
    for it in range(1, 7):
        for k in range(per):
            a, b = G(13, 0) + k, G(13, 0) + it * per + k
            assert pl.m[a] == pl.m[b] and pl.g[a] == pl.g[b], (it, k, pl.m[a], pl.m[b], pl.g[a], pl.g[b])
    lst = []
    if opt.get("prof2"):
        lst = I(["s_waitcnt lgkmcnt(0)", "s_memrealtime s[98:99]", "s_memtime s[100:101]", f"s_lshl_b32 s66, s{S_CNT}, 1", "s_sub_u32 s66, 38, s66", "s_add_u32 s67, s66, 1",
                 "s_waitcnt lgkmcnt(0)", "v_mov_b32 v252, s98", f"v_cmp_eq_u32 vcc, s66, v{V_LANE}", "v_cndmask_b32 v251, v251, v252, vcc",
                 "v_mov_b32 v252, s100", f"v_cmp_eq_u32 vcc, s67, v{V_LANE}", "v_cndmask_b32 v251, v251, v252, vcc"])
    body = [Ins(".p2align 6"), Ins(f"L1_a{p}:")] + pl.ins(G(13, 0), G(39, 0)) + lst + \
           I([f"s_sub_u32 s{S_CNT}, s{S_CNT}, 1", f"s_cmp_lg_u32 s{S_CNT}, 0", f"s_cbranch_scc1 L1_a{p}"])
    ab2 = opt.get("abl2", "")
    if "noL" in ab2: body = [x for x in body if not (x.kind == "mfma" and f"a[{ONES}:" in x.text)]
    if "addL" in ab2:
        nb = []; k = 0
        for x in body:
            if x.kind == "mfma" and f"a[{ONES}:" in x.text: continue
            nb.append(x)
            if x.op.startswith("v_cvt_pk"):
                a, b = x.text.split(", ")[1:]
                nb.append(Ins(f"v_add_f32 v252, v252, {a}")); pend = b
            elif x.kind == "mfma" and k % 1 == 0 and "pend" in dir() and pend and nb[-2].kind == "mfma":
                nb.append(Ins(f"v_add_f32 v253, v253, {pend}")); nb.append(Ins(f"v_add_f32 v254, v254, {pend}")); pend = None
        body = nb
    if "pad" in ab2:
        k = int(ab2.split("pad")[1]); nb = []
        for x in body:
            nb.append(x)
            if x.kind == "mfma" and f"a[{ONES}:" in x.text: nb.append(Ins(f"s_nop {k}"))
        body = nb
    if "xm" in ab2:
        k = int(ab2.split("xm")[1]); nb = []
        for x in body:
            nb.append(x)
            if x.kind == "mfma" and f"a[{ONES}:" in x.text:
                for q in range(k): nb.append(Ins(mf(ar(240+4*q), ar(K_(0,q)), ar(Q_(q,q)), ar(240+4*q))))
        body = nb
    if "nocomp" in ab2: body = [x for x in body if x.kind not in ("mfma", "trans", "dsr") and not x.op.startswith("v_cvt")]
    if "noexp" in ab2: body = [x for x in body if x.kind != "trans"]
    if "nodma" in ab2: body = [x for x in body if x.kind != "dma"]
    if "noread" in ab2: body = [x for x in body if x.kind != "dsr"]
    if "nobar" in ab2: body = [x for x in body if x.op != "s_barrier"]
    body, lg, vm = finalize_loop(body, out, lg, vm, tag=tag + "aloop", verbose=verbose)
    out += body
    seq = I(stamp(8, opt)) + pl.ins(G(195, 0), len(pl.m))
    E = Prog(); e = E.e
    E.extend(stamp(9, opt))
    xs = ((32 + 29) % 5) * SLOT
    e(f"v_lshlrev_b32 v{V_T}, 4, v{V_LANE}")
    e(f"s_add_u32 s{S_T+2}, s{S_M0KV}, {xs}")
    e(f"v_add_u32 v{V_T+1}, s{S_T+2}, v{V_T}")
    e(f"v_xor_b32 v{V_T+2}, 8192, v{V_T+1}")
    for i in range(4): e(f"ds_write_b128 v{V_T+1}, {O_(6, 4*(1-p)+i)} offset:{i*1024}")
    e(f"ds_write_b128 v{V_T+1}, {ar(L_(6))} offset:4096")
    R = 220
    for c in range(7): e(f"v_accvgpr_read_b32 v{R+2*c}, a{L_(c)}")
    e(f"v_max3_f32 v234, v{R}, v{R+2}, v{R+4}\nv_max3_f32 v235, v{R+6}, v{R+8}, v{R+10}\nv_max3_f32 v234, v234, v235, v{R+12}")
    e(f"v_add_f32 v235, v{R}, v{R+2}\nv_add_f32 v236, v{R+4}, v{R+6}\nv_add_f32 v237, v{R+8}, v{R+10}\nv_add_f32 v235, v235, v{R+12}")
    e("v_add_f32 v236, v236, v237\nv_add_f32 v234, v234, v235\nv_add_f32 v234, v234, v236")
    e(f"ds_write_b32 v{V_T+1}, v234 offset:5120")
    for c in range(6): e(f"v_rcp_f32 v{R+2*c}, v{R+2*c}")
    e(f"s_lshl_b32 s{S_T+3}, s{S_HP}, 1\ns_add_u32 s{S_T+3}, s{S_T+3}, s{S_HH}\ns_mul_i32 s{S_T+3}, s{S_T+3}, {4*13*1024}")
    e(f"v_add_u32 v235, {xs}, v{V_T}")
    e("s_waitcnt lgkmcnt(0)\ns_barrier")
    for w in range(4): e(f"ds_read_b32 v{236+w}, v235 offset:{w*8192+5120}")
    for i in range(4): e(f"ds_read_b128 {vr(192+4*i)}, v{V_T+2} offset:{i*1024}")
    e(f"ds_read_b128 {vr(208)}, v{V_T+2} offset:4096")
    e("v_add_f32 v236, v236, v237\nv_add_f32 v238, v238, v239\nv_add_f32 v236, v236, v238")
    e(f"s_mov_b32 s{S_T+5}, 0x5f800000")
    e(f"v_cmp_ngt_f32 vcc, s{S_T+5}, v236")
    e(f"s_cmp_lg_u32 s{S_FLAG}, 0\ns_cbranch_scc1 L1_ok{p}")
    if not ab2 and not opt.get("abl") and not opt.get("stag"): e(f"s_cbranch_vccnz L1_fb{p}")
    e(f"L1_ok{p}:")
    def norm_store(r, rc, j, mt):
        for h in range(0, 8, 2): e(f"v_pk_mul_f32 v[{r+h}:{r+h+1}], v[{r+h}:{r+h+1}], v[{rc}:{rc+1}] op_sel_hi:[1,0]")
        for h in range(4): e(f"v_cvt_pk_bf16_f32 v{r+h}, v{r+2*h}, v{r+2*h+1}")
        e(f"s_add_u32 s{S_T+4}, s{S_T+3}, {(j*13+mt)*1024}")
        e(f"buffer_store_dwordx4 {vr(r)}, v{V_T}, s[20:23], s{S_T+4} offen {opt.get('osf','')}")
    for c in range(6):
        for j in range(4): norm_store(c * 32 + j * 8, R + 2 * c, j, mt_of(c))
    e(f"v_add_f32 v212, v{R+12}, v208\nv_rcp_f32 v212, v212")
    for i in range(16):
        e(f"v_accvgpr_read_b32 v{236+(i%4)}, a{208+16*p+i}\nv_add_f32 v{192+i}, v{192+i}, v{236+(i%4)}")
    for jj in range(2): norm_store(192 + 8 * jj, 212, 2 * p + jj, 12)
    E.extend(stamp(10, opt))
    if opt.get("prof"): e("s_waitcnt vmcnt(0)")
    E.extend(stamp(11, opt))
    E.extend(stamp_store(12, opt, 4, 0x8000000, S_WAVE))
    e("s_endpgm")
    seq += E.ins
    seq, lg, vm = finalize_straight(seq, out, lg, vm, tag=tag + "tail", verbose=verbose)
    out += seq
    F = Prog(); e = F.e
    e(f"L1_fb{p}:")
    e("s_waitcnt vmcnt(0) lgkmcnt(0)\ns_barrier")
    back = (2 - (2 + 31) % 5) * SLOT
    assert back < 0
    for r in (V_KA, V_VA0, V_VA1): e(f"v_subrev_u32 v{r}, {-back}, v{r}")
    for c in range(7): e(f"v_mov_b32 v{64+c}, 0xff800000")
    e(KVRST + f"\ns_mov_b32 s{S_CNT}, 32\ns_mov_b32 s{S_FLAG}, 1")
    fpre, _, _ = finalize_straight(F.ins, [], [], [], tag=tag + "fb0")
    F = Prog(); e = F.e
    e(f"L1_fl{p}:")
    F.extend(dmaKV(2 * SLOT, 0, track=False))
    e("s_waitcnt vmcnt(0)\ns_barrier")
    F.extend(readK())
    F.extend(qk_all())
    for c in range(7):
        r = c * 8
        e(f"v_max3_f32 v{r}, v{r}, v{r+1}, v{r+2}\nv_max3_f32 v{r+3}, v{r+3}, v{r+4}, v{r+5}\nv_max3_f32 v{r}, v{r}, v{r+6}, v{r+7}")
        e(f"v_max3_f32 v{64+c}, v{64+c}, v{r}, v{r+3}")
    e("s_barrier")
    e(f"s_sub_u32 s{S_CNT}, s{S_CNT}, 1\ns_cmp_lg_u32 s{S_CNT}, 0\ns_cbranch_scc1 L1_fl{p}")
    fl, _, _ = finalize_loop(F.ins, fpre, [], [], tag=tag + "fbl")
    F = Prog(); e = F.e
    e(KVRST)
    for t in range(5): F.extend(dmaKV(((2 + t) % 5) * SLOT, t, track=False))
    for c in range(7): e(f"v_mov_b32 v{c*8}, v{64+c}")
    e("s_waitcnt vmcnt(0)\ns_barrier")
    F.extend(readK())
    for dt in range(8): F.extend(readV(dt))
    e(f"s_branch L1_m{p}")
    fpost, _, _ = finalize_straight(F.ins, fl, [], [], tag=tag + "fb2")
    out += fpre + fl + fpost
    return out
```

```python
from asmgen import *
from gen_k2 import mf, vr, ar, WS_O_BYTES_PER_B
import struct, math

SLOT = 32768
NSLOT = 5
QSCALE = math.log2(math.e) / math.sqrt(128.0)
def f32bits(x): return struct.unpack("<I", struct.pack("<f", x))[0]

def O_(c, dt): return vr(c * 32 + dt * 4) if c < 6 else ar(208 + dt * 4)
def NEGM(c): return 192 + 4 * c
def S_(buf, kt): return 220 + buf * 8 + kt * 4
def P_(buf): return 236 + buf * 4
V_KA, V_VA0, V_VA1, V_LANE = 244, 245, 246, 247
V_KV = 248
V_PF = 250
V_T = 252
V_QW, V_QX = 208, 212
V_QRW, V_QRX, V_QRX2, V_BW, V_BX = 216, 217, 218, 219, 220
V_RW = 221
def Q_(c, ds): return c * 16 + ds * 4
def K_(kt, ds): return 112 + kt * 16 + ds * 4
def V_(dt): return 144 + dt * 4
def L_(c): return 176 + 4 * c
ONES = 204
def QA(buf, j2, u): return 112 + buf * 60 + (j2 * 2 + u) * 4
def QB(buf, c): return 112 + buf * 60 + 32 + c * 4
def QACC(c, j2, u, p):
    if c < 6: return (c * 8 + j2 * 2 + u) * 4
    return (48 + (j2 - 2 * p) * 2 + u) * 4
def RREG(t, i):
    k = t * 8 + i
    return 4 * k if k < 28 else 232 + 4 * (k - 28)
S_WAVE, S_HH, S_B, S_HP, S_CNT, S_DST = 24, 25, 26, 27, 28, 29
S_XO, S_WO, S_KO, S_KO2, S_DELTA = 30, 31, 32, 33, 34
S_M0W, S_M0X, S_M0KV, S_RD = 35, 36, 37, 39
S_T = 40
S_FLAG, S_XO2, S_M0X2, S_PREV, S_PFO = 48, 49, 50, 51, 55
S_KA, S_KX = 64, 65
XREG = 16640

def stamp(k, opt):
    if not opt.get("prof"): return []
    return ["s_waitcnt lgkmcnt(0)", "s_memrealtime s[98:99]", "s_memtime s[100:101]", "s_waitcnt lgkmcnt(0)",
            f"v_writelane_b32 v251, s98, {2*k}", f"v_writelane_b32 v251, s100, {2*k+1}"]
def stamp_store(n, opt, wsreg, base, wave):
    if not opt.get("prof"): return []
    return [f"s_add_u32 s60, s{wsreg}, {base}", f"s_addc_u32 s61, s{wsreg+1}, 0", "s_mov_b32 s62, 0x100000", "s_mov_b32 s63, 0x20000",
         f"s_lshl_b32 s55, s2, 2", f"s_add_u32 s55, s55, s{wave}", "s_lshl_b32 s55, s55, 8",
         "v_mbcnt_lo_u32_b32 v250, -1, 0", "v_mbcnt_hi_u32_b32 v250, -1, v250", "v_lshlrev_b32 v250, 2, v250",
         "buffer_store_dword v251, v250, s[60:63], s55 offen"]

def code_pf(lo, hi, idx_sgpr, va, lane128, tmp=S_T+6, fwd=False):
    return [f"s_getpc_b64 s[{tmp}:{tmp+1}]\ns_add_u32 s{tmp}, s{tmp}, {lo}-.\ns_addc_u32 s{tmp+1}, s{tmp+1}, 0" if fwd else
            f"s_getpc_b64 s[{tmp}:{tmp+1}]\ns_sub_u32 s{tmp}, s{tmp}, .-{lo}\ns_subb_u32 s{tmp+1}, s{tmp+1}, 0",
            f"v_lshl_add_u32 v{va}, s{idx_sgpr}, 13, v{lane128}",
            f"v_min_u32 v{va}, {hi}-{lo}-4, v{va}",
            f"v_mov_b32 v{va+1}, s{tmp+1}",
            f"v_add_co_u32 v{va}, vcc, s{tmp}, v{va}\ns_nop 1\nv_addc_co_u32 v{va+1}, vcc, 0, v{va+1}, vcc",
            f"global_load_dword v255, v[{va}:{va+1}], off"]
def cost(x): return 1 + x.count("\n")
def isvm(x): return x.startswith("buffer") or x.startswith("global")

class Place:
    def __init__(self): self.m = []; self.g = []; self.cap = []
    def add(self, m, cap=2, fixed=()):
        self.m.append(m); self.g.append(list(fixed)); self.cap.append(cap)
    def at(self, g, items):
        for it in items:
            self.g[g].append(it); self.cap[g] -= cost(it)
    def put(self, pos, items, hi=None, step=0):
        hi = len(self.m) - 1 if hi is None else hi
        for it in items:
            while pos < hi and self.cap[pos] < min(cost(it), 2): pos += 1
            self.at(pos, [it])
            last = pos
            pos = min(pos + step, hi)
        return last
    def spread(self, lo, hi, items, vmcap=2, group=1):
        nb = sum(1 for x in items if isvm(x))
        cand = [k for k in range(lo + 1, hi) if self.cap[k] >= vmcap]
        assert len(cand) >= nb, (len(cand), nb)
        ng = -(-nb // group)
        pick = []
        for gi in range(ng):
            st = (gi * len(cand)) // ng
            for q in range(min(group, nb - gi * group)): pick.append(cand[st + q])
        assert pick == sorted(set(pick)), pick
        bi = 0; prev = lo
        for idx, x in enumerate(items):
            if isvm(x):
                g = pick[bi]; bi += 1
                self.g[g].append(x); self.cap[g] -= vmcap; prev = g
            else:
                lim = pick[bi] if bi < nb else hi
                q = prev
                while q < lim - 1 and (self.cap[q] < cost(x) or q in pick[bi:]): q += 1
                if self.cap[q] < cost(x): q = prev if bi > 0 or True else q
                self.at(q, [x]); prev = q
        return prev
    def ins(self, lo=0, hi=None):
        out = []
        for k in range(lo, len(self.m) if hi is None else hi):
            if self.m[k]: out.append(Ins(self.m[k]))
            for x in self.g[k]:
                for line in x.split("\n"): out.append(Ins(line))
        return out

def ring_next(reg):
    return [f"s_add_u32 s{reg}, s{reg}, {SLOT}", f"s_cmp_eq_u32 s{reg}, {SLOT*NSLOT}\ns_cselect_b32 s{reg}, 0, s{reg}"]
def I(lst): return [Ins(l) for x in lst for l in x.split("\n")]

DESC = """.amdhsa_kernel {name}
  .amdhsa_next_free_vgpr 512
  .amdhsa_next_free_sgpr 102
  .amdhsa_accum_offset 256
  .amdhsa_group_segment_fixed_size 0
  .amdhsa_kernarg_size 64
  .amdhsa_user_sgpr_count 2
  .amdhsa_user_sgpr_kernarg_segment_ptr 1
  .amdhsa_system_sgpr_workgroup_id_x 1
.end_amdhsa_kernel
"""

def gen_k1(name="attn_kernel", opt=None):
    opt = opt or {}
    P = Prog(); e = P.e
    e(f".p2align 8\n.type {name},@function\n{name}:")
    e("s_cmp_ge_u32 s2, 256\ns_cbranch_scc1 L1_end")
    P.extend(stamp(0, opt))
    e("s_load_dwordx4 s[40:43], s[0:1], 0")
    e("s_load_dwordx4 s[44:47], s[0:1], 16")
    e("s_load_dwordx2 s[4:5], s[0:1], 56")
    e("s_load_dwordx2 s[6:7], s[0:1], 32")
    e("s_load_dwordx2 s[76:77], s[0:1], 48")
    L = V_LANE
    t0, t1, t2, t3 = V_T, V_T + 1, V_T + 2, V_T + 3
    e(f"v_lshrrev_b32 v{t0}, 6, v0")
    e(f"v_and_b32 v{L}, 63, v0")
    e(f"v_readfirstlane_b32 s{S_WAVE}, v{t0}")
    e("s_and_b32 s90, s2, 7\ns_lshr_b32 s91, s2, 3")
    if opt.get("map", 0) == 0:
        e(f"s_lshr_b32 s{S_B}, s90, 1\ns_lshl_b32 s{S_B}, s{S_B}, 2\ns_lshr_b32 s52, s91, 3\ns_add_u32 s{S_B}, s{S_B}, s52")
        e(f"s_and_b32 s{S_HP}, s90, 1\ns_lshl_b32 s{S_HP}, s{S_HP}, 3\ns_and_b32 s52, s91, 7\ns_add_u32 s{S_HP}, s{S_HP}, s52")
    else:
        e(f"s_lshl_b32 s{S_B}, s90, 1\ns_lshr_b32 s52, s91, 4\ns_add_u32 s{S_B}, s{S_B}, s52\ns_and_b32 s{S_HP}, s91, 15")
    if opt.get("hpx"): e(f"s_xor_b32 s{S_HP}, s{S_HP}, {opt['hpx']}")
    e(f"s_lshr_b32 s{S_HH}, s{S_WAVE}, 1\ns_and_b32 s53, s{S_WAVE}, 1")
    e(f"v_lshrrev_b32 v{t0}, 2, v{L}\nv_and_b32 v{t0}, 3, v{t0}")
    e(f"v_lshrrev_b32 v{t1}, 4, v{L}")
    e(f"v_and_b32 v{t2}, 3, v{L}")
    e(f"v_lshlrev_b32 v{V_QW}, 13, v{t0}\nv_lshl_add_u32 v{V_QW}, v{t1}, 6, v{V_QW}\nv_lshl_add_u32 v{V_QW}, v{t2}, 4, v{V_QW}")
    e(f"s_lshl_b32 s52, s{S_WAVE}, 16\ns_add_u32 s52, s52, 4096\nv_add_u32 v{V_QW}, s52, v{V_QW}")
    for i in range(1, 4):
        d = (i & 1) * 4 * 8192 + (i >> 1) * 256 - i * 1024
        e(f"v_add_u32 v{V_QW+i}, {d}, v{V_QW}" if d >= 0 else f"v_subrev_u32 v{V_QW+i}, {-d}, v{V_QW}")
    e(f"v_lshrrev_b32 v{V_QX}, 2, v{L}\nv_and_b32 v{V_QX}, 7, v{V_QX}")
    e(f"v_lshrrev_b32 v{t3}, 2, v{V_QX}\nv_lshlrev_b32 v{t3}, 1, v{t3}\nv_xor_b32 v{t3}, v{t3}, v{t2}")
    e(f"v_lshlrev_b32 v{V_QX}, 11, v{V_QX}\nv_lshl_add_u32 v{V_QX}, v{t3}, 4, v{V_QX}")
    e(f"v_lshrrev_b32 v{t3}, 5, v{L}\nv_lshl_add_u32 v{V_QX}, v{t3}, 6, v{V_QX}")
    for i in range(1, 4): e(f"v_add_u32 v{V_QX+i}, {i*(16384-1024)}, v{V_QX}")
    e(f"s_lshl_b32 s52, s{S_WAVE}, 2\ns_lshr_b32 s52, 0xb480, s52\ns_and_b32 s52, s52, 15")
    e(f"s_lshl_b32 s{S_XO}, s52, 14\ns_lshl_b32 s{S_M0X}, s52, 10\ns_add_u32 s{S_M0X}, s{S_M0X}, {XREG}")
    e(f"s_mul_i32 s52, s{S_WAVE}, 3")
    e(f"s_lshl_b32 s{S_XO2}, s52, 14\ns_add_u32 s{S_XO2}, s{S_XO2}, {14*16384}")
    e(f"s_lshl_b32 s{S_M0X2}, s52, 10\ns_add_u32 s{S_M0X2}, s{S_M0X2}, {XREG}")
    e(f"s_mul_i32 s{S_M0W}, s53, 8200\ns_lshl_b32 s54, s{S_HH}, 12\ns_add_u32 s{S_M0W}, s{S_M0W}, s54")
    e(f"s_mov_b32 s{S_WO}, 0")
    if opt.get("qrole"):
        e(f"s_mul_i32 s52, s{S_HH}, 7\ns_lshl_b32 s{S_XO}, s52, 14\ns_lshl_b32 s{S_M0X}, s52, 10\ns_add_u32 s{S_M0X}, s{S_M0X}, {XREG}")
        e(f"s_mul_i32 s52, s{S_HH}, 6\ns_lshl_b32 s{S_XO2}, s52, 14\ns_add_u32 s{S_XO2}, s{S_XO2}, {14*16384}")
        e(f"s_lshl_b32 s{S_M0X2}, s52, 10\ns_add_u32 s{S_M0X2}, s{S_M0X2}, {XREG}")
    e(f"s_mul_i32 s52, s{S_B}, 425984\ns_lshl_b32 s54, s{S_HP}, 9")
    e("s_mov_b32 s10, 425984\ns_mov_b32 s11, 0x20000\ns_mov_b32 s15, 0x20000")
    e(f"s_sub_u32 s14, {8388608+4096}, s54")
    e("s_waitcnt lgkmcnt(0)")
    e("s_add_u32 s8, s40, s52\ns_addc_u32 s9, s41, 0")
    e("s_add_u32 s12, s46, s54\ns_addc_u32 s13, s47, 0\ns_sub_u32 s12, s12, 4096\ns_subb_u32 s13, s13, 0")
    e("s_cmp_eq_u32 s53, 1\ns_cbranch_scc1 L1_p1")
    head, _, _ = finalize_straight(P.ins, tag="k1head")
    out = list(head)
    for p in range(2):
        out += gen_path(p, head, opt)
    out.append(Ins("L1_end:")); out.append(Ins("s_endpgm"))
    Q = Prog(); Q.ins = out
    return Q.text(), DESC.format(name=name)

def setup2(p, opt):
    P = Prog(); e = P.e
    L = V_LANE
    t0, t1, t2, t3 = V_T, V_T + 1, V_T + 2, V_T + 3
    kv = (42, 43) if p == 0 else (44, 45)
    e(f"s_lshl_b32 s52, s{S_B}, 5\ns_lshl_b32 s54, s{S_HP}, 1\ns_add_u32 s52, s52, s54\ns_add_u32 s52, s52, s{S_HH}")
    if opt.get("kvrot", 1) == 1: e(f"s_lshr_b32 s54, s52, 5\ns_mul_i32 s54, s54, 11\ns_add_u32 s54, s54, s52\ns_and_b32 s54, s54, 31\ns_lshl_b32 s{S_KX}, s54, 13")
    else: e(f"s_mov_b32 s{S_KX}, 0")
    if opt.get("kvsame"): e(f"s_mov_b32 s52, s{S_HH}")
    e("s_lshl_b32 s54, s52, 18")
    e("s_add_u32 s72, s42, s54\ns_addc_u32 s73, s43, 0\ns_mov_b32 s74, 262144\ns_mov_b32 s75, 0x20000")
    e(f"s_add_u32 s16, s{kv[0]}, s54\ns_addc_u32 s17, s{kv[1]}, 0\ns_mov_b32 s18, 262144\ns_mov_b32 s19, 0x20000")
    e(f"s_mul_i32 s52, s{S_B}, {WS_O_BYTES_PER_B}")
    e(f"s_add_u32 s20, s4, s52\ns_addc_u32 s21, s5, 0\ns_mov_b32 s22, {WS_O_BYTES_PER_B}\ns_mov_b32 s23, 0x20000")
    e("s_mov_b32 s56, s6\ns_mov_b32 s57, s7\ns_mov_b32 s58, 8388608\ns_mov_b32 s59, 0x20000")
    e(f"s_lshl_b32 s{S_M0KV}, s{S_WAVE}, 13")
    e(f"s_mov_b32 s78, 256\ns_mov_b32 s79, 0x20000\ns_lshl_b32 s80, s{S_B}, 4")
    e(f"v_and_b32 v{V_QRW}, 1, v{t1}\nv_mul_u32_u24 v{V_QRW}, 8200, v{V_QRW}")
    e(f"v_lshrrev_b32 v{V_QRX}, 1, v{t1}\nv_lshl_add_u32 v{V_QRW}, v{V_QRX}, 12, v{V_QRW}")
    e(f"v_and_b32 v{V_QRX}, 15, v{L}\nv_lshl_add_u32 v{V_QRW}, v{V_QRX}, 4, v{V_QRW}")
    e(f"s_lshl_b32 s54, s{S_HH}, 11\nv_add_u32 v{V_QRW}, s54, v{V_QRW}")
    e(f"v_and_b32 v{t3}, 1, v{t0}\nv_lshlrev_b32 v{t3}, 1, v{t3}\nv_xor_b32 v{t3}, v{t3}, v{t1}\nv_lshlrev_b32 v{t3}, 4, v{t3}")
    e(f"v_and_b32 v{V_QRX2}, 7, v{L}\nv_lshl_add_u32 v{V_QRX2}, v{V_QRX2}, 6, v{t3}")
    e(f"v_lshrrev_b32 v{V_QRX}, 3, v{V_QRX}\nv_lshl_add_u32 v{V_QRX}, v{V_QRX}, 10, v{V_QRX2}")
    e(f"v_add_u32 v{V_QRX}, {XREG}, v{V_QRX}\nv_add_u32 v{V_QRX2}, {SLOT}, v{V_QRX}")
    e(f"v_mov_b32 v{V_BW}, v{V_QRW}\nv_mov_b32 v{V_BX}, v{V_QRX}")
    e(f"v_lshl_add_u32 v{V_KA}, v{t0}, 10, v{t3}\nv_lshl_add_u32 v{V_KA}, v{t2}, 6, v{V_KA}")
    e(f"s_lshl_b32 s54, s{S_HH}, 14\ns_add_u32 s54, s54, {2*SLOT}\nv_add_u32 v{V_KA}, s54, v{V_KA}")
    e(f"v_lshlrev_b32 v{V_VA0}, 10, v{t1}\nv_lshl_add_u32 v{V_VA0}, v{t0}, 6, v{V_VA0}\nv_lshl_add_u32 v{V_VA0}, v{t2}, 3, v{V_VA0}")
    e(f"s_add_u32 s54, s54, 8192\nv_add_u32 v{V_VA0}, s54, v{V_VA0}")
    e(f"v_and_b32 v{t3}, 1, v{t1}\nv_lshl_add_u32 v{V_VA0}, v{t3}, 5, v{V_VA0}\nv_xor_b32 v{V_VA1}, 32, v{V_VA0}")
    e(f"v_lshlrev_b32 v{V_KV}, 8, v{t0}\nv_lshl_add_u32 v{V_KV}, v{t1}, 6, v{V_KV}\nv_lshl_add_u32 v{V_KV}, v{t2}, 4, v{V_KV}")
    e(f"v_xor_b32 v{V_KV+1}, 32, v{V_KV}\nv_lshlrev_b32 v{V_PF}, 7, v{L}")
    e(f"v_lshlrev_b32 v{t3}, 4, v{L}\nv_add_u32 v{t3}, s{S_M0KV}, v{t3}")
    for t in range(4): e(f"v_add_u32 v{V_RW+t}, {((2+t)%5)*SLOT}, v{t3}")
    e(f"s_mov_b32 s{S_DST}, 0\ns_mov_b32 s{S_RD}, 0\ns_mov_b32 s{S_KA}, 0\ns_mov_b32 s{S_KO}, s{S_KX}\ns_or_b32 s{S_KO2}, s{S_KX}, 4096\ns_mov_b32 s{S_FLAG}, 0\ns_mov_b32 s{S_PREV}, {4*SLOT}")
    return [i.text for i in P.ins]

def gen_path(p, head, opt):
    verbose = opt.get("verbose", False)
    KVF = opt.get("kvflags", "nt")
    NR = opt.get("nr", 4)
    nxa = 4 if p == 0 else 3
    tag = f"p{p}"
    out = []
    vmq = []
    def vm_wait(tags):
        last = max((k for k, t in enumerate(vmq) if t in tags), default=None)
        if last is None: return 63
        return min(63, len(vmq) - 1 - last)
    role = opt.get("qrole")
    def dmaW(s, slot):
        if role and p == 1: return []
        L = [f"s_add_u32 m0, s{S_M0W}, {slot}"]
        for i in range(4): L.append(f"buffer_load_dwordx4 v{V_QW+i}, s[12:15], s{S_WO} offen offset:{i*1024} {opt.get('wqf','')} lds")
        vmq.extend([("W", s)] * 4)
        if role:
            L += [f"s_add_u32 m0, m0, 8200", f"s_add_u32 s70, s{S_WO}, 65536"]
            for i in range(4): L.append(f"buffer_load_dwordx4 v{V_QW+i}, s[12:15], s70 offen offset:{i*1024} {opt.get('wqf','')} lds")
            vmq.extend([("W", s)] * 4)
        L.append(f"s_add_u32 s{S_WO}, s{S_WO}, 262144")
        return L
    def dmaX(which, sig, slot):
        if role == 1 and p == 1: return []
        if role == 2 and p == 0: return []
        n = nxa if which == "A" else 3
        if role: n = 7 if which == "A" else 6
        m0r, so = (S_M0X, S_XO) if which == "A" else (S_M0X2, S_XO2)
        L = [f"s_add_u32 m0, s{m0r}, {slot}"]
        for i in range(min(n, 4)): L.append(f"buffer_load_dwordx4 v{V_QX+i}, s[8:11], s{so} offen offset:{i*1024} {opt.get('xf','')} lds")
        if n > 4:
            L += [f"s_add_u32 m0, m0, 4096", f"s_add_u32 s70, s{so}, 65536"]
            for i in range(n - 4): L.append(f"buffer_load_dwordx4 v{V_QX+i}, s[8:11], s70 offen offset:{i*1024} {opt.get('xf','')} lds")
        L.append(f"s_add_u32 s{so}, s{so}, 128")
        vmq.extend([("X" + which, sig)] * n)
        return L
    KVADV = [f"s_add_u32 s{S_KA}, s{S_KA}, 8192", f"s_xor_b32 s{S_KO}, s{S_KA}, s{S_KX}", f"s_or_b32 s{S_KO2}, s{S_KO}, 4096"]
    KVRST = f"s_mov_b32 s{S_KA}, 0\ns_mov_b32 s{S_KO}, s{S_KX}\ns_or_b32 s{S_KO2}, s{S_KX}, 4096"
    def dmaKV(base, t, track=True):
        L = [f"s_add_u32 m0, s{S_M0KV}, {base}"]
        for i in range(4): L.append(f"buffer_load_dwordx4 v{V_KV+(i&1)}, s[16:19], s{S_KO} offen offset:{i*1024} {KVF} lds")
        L.append("s_add_u32 m0, m0, 4096")
        for i in range(4): L.append(f"buffer_load_dwordx4 v{V_KV+(i&1)}, s[16:19], s{S_KO2} offen offset:{i*1024} {KVF} lds")
        L += KVADV
        if track: vmq.extend([("KV", t)] * 8)
        return L
    def regKV(k):
        t, i = divmod(k, 8)
        L = [f"buffer_load_dwordx4 {ar(RREG(t,i))}, v{V_KV+(i&1)}, s[16:19], s{S_KO if i < 4 else S_KO2} offen offset:{(i&3)*1024} {KVF}"]
        if i == 7: L += KVADV
        vmq.append(("R", t))
        return L
    def wrKV(t): return [f"ds_write_b128 v{V_RW+t}, {ar(RREG(t,i))} offset:{i*1024}" for i in range(8)]
    def mt_of(c): return 6 * p + c if c < 6 else 12
    def readQ(s):
        buf = s % 2; kh = s % 2
        order = [f"ds_read_b64_tr_b16 {ar(QA(buf,j2,u)+2*uk,2)}, v{V_QRW} offset:{uk*1024+j2*256+u*8}"
                 for j2 in range(4) for u in range(2) for uk in range(2)]
        xs = []
        for c in range(7):
            mt = mt_of(c)
            if mt < 7: xs.append(f"ds_read_b128 {ar(QB(buf,c))}, v{V_QRX} offset:{mt*2048+kh*512}")
            else: xs.append(f"ds_read_b128 {ar(QB(buf,c))}, v{V_QRX2} offset:{(mt-7)*2048+kh*512}")
        return order[:2] + xs + order[2:]
    def adv_rd(s):
        L = ring_next(S_RD) + [f"v_add_u32 v{V_QRW}, s{S_RD}, v{V_BW}"]
        if (s + 1) % 2 == 0:
            L += [f"v_add_u32 v{V_QRX}, s{S_RD}, v{V_BX}", f"s_add_u32 s{S_T}, s{S_RD}, {SLOT}",
                  f"s_cmp_eq_u32 s{S_T}, {SLOT*NSLOT}\ns_cselect_b32 s{S_T}, 0, s{S_T}", f"v_add_u32 v{V_QRX2}, s{S_T}, v{V_BX}"]
        return L
    def need(s): return {("W", s), ("XA", s // 2), ("XB", s // 2)}
    P = Prog(); e = P.e
    e(f"L1_p{p}:")
    P.extend(dmaW(0, 0)); P.extend(dmaX("A", 0, 0)); P.extend(dmaX("B", 0, SLOT)); P.extend(dmaW(1, SLOT))
    P.extend(setup2(p, opt))
    if opt.get("qpf"):
        e(f"s_mov_b32 s69, {opt.get('qpf0',5)*8192}\ns_xor_b32 s68, s69, s{S_KX}\nv_lshlrev_b32 v228, 6, v{V_LANE}")
    if opt.get("early", 1) >= 1:
        P.extend(dmaW(2, 2 * SLOT)); P.extend(dmaX("A", 1, 2 * SLOT)); P.extend(dmaX("B", 1, 3 * SLOT))
    w0 = vm_wait(need(0))
    if opt.get("cpf", True):
        e(f"s_lshr_b32 s{S_PFO}, s2, 3\ns_lshl_b32 s{S_PFO}, s{S_PFO}, 2\ns_add_u32 s{S_PFO}, s{S_PFO}, s{S_WAVE}")
        if opt.get("thin", True):
            pf = code_pf(opt.get("kname", "attn_kernel"), "L_code_end", S_PFO, 226, V_KV)
            pf[1] = f"v_lshl_add_u32 v226, s{S_PFO}, 10, v{V_KV}"
            P.extend(pf)
        else:
            e(f"s_and_b32 s{S_PFO}, s{S_PFO}, 15")
            P.extend(code_pf(opt.get("kname", "attn_kernel"), "L_code_end", S_PFO, 226, V_PF))
        vmq.append(("T", "code")); w0 = min(63, w0 + 1)
    e(f"s_waitcnt vmcnt({w0})\ns_barrier")
    P.extend(stamp(1, opt))
    P.extend(readQ(0)); P.extend(adv_rd(0))
    if opt.get("early", 1) < 1:
        P.extend(dmaW(2, 2 * SLOT)); P.extend(dmaX("A", 1, 2 * SLOT)); P.extend(dmaX("B", 1, 3 * SLOT))
    seq, lg, vm = finalize_straight(P.ins, head, tag=tag + "pro", verbose=verbose)
    out += seq
    rs0, rs1 = opt.get("rstages", (10, 26))
    rsched = {}
    for k in range(NR * 8): rsched.setdefault(rs0 + (k * (rs1 - rs0)) // (NR * 8), []).append(k)
    LD = opt.get("lead", 4)
    kv_at = {0: (27, "cur"), 1: (29, "prev"), 2: (29, "cur"), 3: (31, "prev")}
    kv_at = {t: v for t, v in kv_at.items() if t <= LD}
    def qstage(s):
        buf = s % 2
        pl = Place()
        wtags = need(s + 1) if s < 31 else set()
        wr = []
        for t, (st, which) in kv_at.items():
            if st == s and t < NR: wtags = wtags | {("R", t)}; wr += wrKV(t)
        pl.add(None, 0, [f"s_waitcnt vmcnt({vm_wait(wtags)}) lgkmcnt(0)", "s_barrier"])
        for j2 in range(4):
            for u in range(2):
                for c in range(7):
                    if c == 6 and (j2 >> 1) != p: continue
                    d = vr(QACC(c, j2, u, p))
                    pl.add(mf(d, ar(QA(buf, j2, u)), ar(QB(buf, c)), "0" if s == 0 else d), cap=2)
        dm = []
        cur, prev = f"s{S_DST}", f"s{S_PREV}"
        if s == 0: dm += dmaW(3, 3 * SLOT) + dmaW(4, 4 * SLOT)
        sig = (s + 4) // 2
        if sig <= 15: dm += dmaX("A" if s % 2 == 0 else "B", sig, prev)
        if s + 5 <= 31: dm += dmaW(s + 5, cur)
        for k in rsched.get(s, []): dm += regKV(k)
        for t, (st, which) in kv_at.items():
            if st == s and t >= NR: dm += dmaKV(cur if which == "cur" else prev, t)
        q0, q1 = opt.get("qpfr", (2, 24))
        if opt.get("qpf") and role and p == 1 and q0 <= s < q1:
            n = opt["qpf"]
            for q in range(n):
                isv = (s % 2) if n == 1 else (q % 2)
                srd = "s[16:19]" if isv else "s[72:75]"
                dm += [f"buffer_load_dword v255, v228, {srd}, s68 offen {opt.get('qpff','')}"]; vmq.append(("T", "kv"))
                if isv: dm += [f"s_add_u32 s69, s69, 4096", f"s_xor_b32 s68, s69, s{S_KX}"]
        if s in opt.get("cpf2", []):
            dm += ["global_load_dword v255, v[226:227], off"]; vmq.append(("T", "code"))
        dm += [f"s_mov_b32 s{S_PREV}, s{S_DST}"] + ring_next(S_DST)
        if any(isvm(x) for x in dm): pl.spread(1, 50, dm, vmcap=1)
        else: pl.put(40, dm)
        pos = 1
        if s < 31:
            pos = pl.put(1, readQ(s + 1), step=1)
            pos = pl.put(pos + 1, adv_rd(s + 1))
        if wr: pl.put(pos + 1, wr, step=1)
        res = pl.ins()
        abl = opt.get("abl", "")
        if 4 <= s < 26:
            if "nodma" in abl: res = [x for x in res if x.kind != "dma"]
            if "noread" in abl: res = [x for x in res if x.kind != "dsr"]
            if "nobar" in abl: res = [x for x in res if x.op != "s_barrier"]
            if "chain" in abl:
                k = 0; r2 = []
                ch = int(abl.split("chain")[1][0])
                for x in res:
                    if x.kind == "mfma":
                        ops = x.text.split(None, 1)[1].split(", ")
                        if k % ch == 0: dkeep = ops[0]
                        x = Ins(mf(dkeep, ops[1], ops[2], dkeep)); k += 1
                    r2.append(x)
                res = r2
        return res
    stages = [qstage(s) for s in range(32)]
    txt = lambda L: [i.text for i in L]
    LO = opt.get('lo', 4); HI = LO
    while HI + 2 <= 32 and txt(stages[HI]) == txt(stages[LO]) and txt(stages[HI + 1]) == txt(stages[LO + 1]): HI += 2
    if opt.get("qunroll"): HI = LO + 2
    if p == 0: print("qproj loop stages", LO, HI)
    seq = []
    for s in range(LO): seq += stages[s]
    seq += I(stamp(2, opt)) + [Ins(f"s_mov_b32 s{S_CNT}, {(HI-LO)//2}")]
    stag = opt.get("stag", 0)
    if stag:
        if opt.get("emu"):
            seq += I([f"s_bitcmp1_b32 s2, 3", f"s_cselect_b32 s{S_CNT}, {(HI-LO)//2+opt['emu'][1]}, {(HI-LO)//2+opt['emu'][0]}",
                      "s_cselect_b32 s81, 4, 0", "s_add_u32 s82, s80, 4", "s_add_u32 s80, s80, s81"])
        elif opt.get("stagall"):
            seq += I([f"s_mov_b32 s{S_CNT}, {(HI-LO)//2+stag}"])
        elif opt.get("stagl", 1) == 1:
            seq += I([f"s_bitcmp1_b32 s2, {opt.get('stagbit',3)}", f"s_cselect_b32 s{S_CNT}, {(HI-LO)//2+stag}, s{S_CNT}"])
        else:
            seq += I([f"s_lshr_b32 s66, s2, 3", f"s_and_b32 s66, s66, {opt['stagl']}", f"s_mul_i32 s66, s66, {stag}", f"s_add_u32 s{S_CNT}, s{S_CNT}, s66"])
        stages[LO + 1] = stages[LO + 1] + I([f"s_and_b32 s{S_WO}, s{S_WO}, 0x3fffff", f"s_and_b32 s{S_XO}, s{S_XO}, 0xfffffbff", f"s_and_b32 s{S_XO2}, s{S_XO2}, 0xfffffbff"])
    seq, lg, vm = finalize_straight(seq, out, lg, vm, tag=tag + "q01", verbose=verbose)
    out += seq
    body = [Ins(".p2align 6"), Ins(f"L1_q{p}:")] + stages[LO] + stages[LO + 1] + \
           I([f"s_sub_u32 s{S_CNT}, s{S_CNT}, 1", f"s_cmp_lg_u32 s{S_CNT}, 0", f"s_cbranch_scc1 L1_q{p}"])
    body, lg, vm = finalize_loop(body, out, lg, vm, tag=tag + "qloop", verbose=verbose)
    out += body
    seq = []
    for s in range(HI, 32):
        if s == 26: seq += I(stamp(3, opt))
        seq += stages[s]
    E = Prog(); e = E.e
    E.extend(stamp(4, opt))
    e(f"s_mov_b32 s{S_T}, {f32bits(QSCALE):#x}\ns_mov_b32 s{S_T+1}, {f32bits(QSCALE):#x}")
    e(f"v_subrev_u32 v{V_T+1}, {SLOT}, v{V_RW}")
    e(f"v_xor_b32 v{V_T}, 8192, v{V_T+1}")
    e("s_waitcnt lgkmcnt(0)")
    for c in [6, 0, 1, 2, 3, 4, 5]:
        for j2 in range(4):
            if c == 6 and (j2 >> 1) != p: continue
            r = QACC(c, j2, 0, p)
            for h in range(0, 8, 2): e(f"v_pk_mul_f32 v[{r+h}:{r+h+1}], v[{r+h}:{r+h+1}], s[{S_T}:{S_T+1}]")
            for h in range(4): e(f"v_cvt_pk_bf16_f32 v{r+h}, v{r+2*h}, v{r+2*h+1}")
            if c == 6: e(f"ds_write_b128 v{V_T}, {vr(r)} offset:{(j2&1)*1024}")
            for h in range(4): e(f"v_accvgpr_write_b32 a{Q_(c,j2)+h}, v{r+h}")
    e(f"v_mov_b32 v{V_T+2}, 0x3f803f80")
    for h in range(4): e(f"v_accvgpr_write_b32 a{ONES+h}, v{V_T+2}")
    e(f"s_waitcnt vmcnt({vm_wait({('KV',0)})}) lgkmcnt(0)\ns_barrier")
    E.extend(stamp(5, opt))
    for i in range(2): e(f"ds_read_b128 {ar(Q_(6, 2*(1-p)+i))}, v{V_T+1} offset:{i*1024}")
    def readK(kts=(0, 1)):
        return [f"ds_read_b128 {ar(K_(kt,ds))}, v{V_KA} offset:{kt*4096+ds*256}" for kt in kts for ds in range(4)]
    def readV(dt):
        return [f"ds_read_b64_tr_b16 {ar(V_(dt)+2*kt,2)}, v{V_VA0+(dt&1)} offset:{kt*4096+(dt>>1)*256}" for kt in range(2)]
    E.extend(readK())
    e("s_waitcnt lgkmcnt(8)")
    def qk_all():
        L = []
        for c in range(7):
            for kt in range(2):
                for ds in range(4):
                    d = vr(c * 8 + kt * 4)
                    L.append(mf(d, ar(K_(kt, ds)), ar(Q_(c, ds)), "0" if ds == 0 else d))
        return L
    pl = Place()
    for m in qk_all(): pl.add(m, 2)
    ex = dmaKV(SLOT, 4) if LD == 4 else []
    ex += [f"s_lshl_b32 s{S_PFO}, s2, 2\ns_add_u32 s{S_PFO}, s{S_PFO}, s{S_WAVE}", f"s_lshl_b32 s{S_PFO}, s{S_PFO}, 13"]
    if LD == 4: pl.spread(0, 40, ex, vmcap=1)
    else: pl.put(20, ex)
    pl.put(1, [x for dt in range(8) for x in readV(dt)], step=1)
    E.ins += pl.ins()
    for c in range(7):
        r = c * 8
        e(f"v_max3_f32 v{r}, v{r}, v{r+1}, v{r+2}\nv_max3_f32 v{r+3}, v{r+3}, v{r+4}, v{r+5}\nv_max3_f32 v{r}, v{r}, v{r+6}, v{r+7}\nv_max_f32 v{r}, v{r}, v{r+3}")
    seq += E.ins
    seq, lg, vm = finalize_straight(seq, out, lg, vm, tag=tag + "qtail", verbose=verbose)
    out += seq
    E = Prog(); e = E.e
    e(f"L1_m{p}:")
    e("s_waitcnt lgkmcnt(0)")
    for c in range(7): e(f"v_mov_b32 v{c*8+1}, v{c*8}")
    for c in range(7): e(f"v_permlane32_swap_b32 v{c*8}, v{c*8+1}")
    for c in range(7): e(f"v_max_f32 v{c*8}, v{c*8}, v{c*8+1}\nv_mov_b32 v{c*8+1}, v{c*8}")
    for c in range(7): e(f"v_permlane16_swap_b32 v{c*8}, v{c*8+1}")
    for c in range(7): e(f"v_max_f32 v{c*8}, v{c*8}, v{c*8+1}")
    for c in range(7):
        for h in range(4): e(f"v_sub_f32 v{NEGM(c)+h}, 0, v{c*8}")
    e(f"s_mov_b32 s{S_DST}, {((3+LD)%5)*SLOT}\ns_mov_b32 s{S_RD}, {2*SLOT}")
    E.extend(stamp(6, opt))
    pre_a = E.ins

    units = []
    for t in range(32):
        if t % 2 == p: units.append((t, 6))
        for c in range(6): units.append((t, c))
    N = len(units)
    first_pv = set()
    pl = Place()
    slot_start = []
    for n in range(N + 2):
        slot_start.append(len(pl.m))
        qk = units[n] if n < N else None
        sm = units[n - 1] if 1 <= n <= N else None
        pv = units[n - 2] if n >= 2 else None
        def Qm(kt, ds):
            if not qk: return None
            d = vr(S_(n % 2, kt))
            return mf(d, ar(K_(kt, ds)), ar(Q_(qk[1], ds)), vr(NEGM(qk[1])) if ds == 0 else d)
        fst = pv is not None and pv[1] not in first_pv
        def Pm(dt):
            if not pv: return None
            d = O_(pv[1], dt)
            return mf(d, ar(V_(dt)), vr(P_(n % 2)), "0" if fst else d)
        def Lm():
            if not pv: return None
            d = ar(L_(pv[1]))
            return mf(d, ar(ONES), vr(P_(n % 2)), "0" if fst else d)
        if pv: first_pv.add(pv[1])
        sb = (n - 1) % 2
        def Ex(i): return [f"v_exp_f32 v{S_(sb,0)+i}, v{S_(sb,0)+i}"] if sm else []
        def Cv(i): return [f"v_cvt_pk_bf16_f32 v{P_(sb)+i}, v{S_(sb,0)+2*i}, v{S_(sb,0)+2*i+1}"] if sm else []
        pl.add(None, 0)
        for ds in range(4): pl.add(Qm(0, ds), 0, Ex(ds))
        pl.add(Pm(0), 1, Cv(0)); pl.add(Pm(1), 1, Cv(1))
        pl.add(Pm(2), 2); pl.add(Pm(3), 2)
        pl.add(None, 0)
        for ds in range(4): pl.add(Qm(1, ds), 0, Ex(4 + ds))
        pl.add(Pm(4), 1, Cv(2)); pl.add(Pm(5), 1, Cv(3))
        pl.add(Pm(6), 2); pl.add(Pm(7), 2)
        pl.add(Lm(), 2)
    slot_start.append(len(pl.m))
    G = lambda n, k: slot_start[n] + k
    at = lambda n, k, items: pl.at(G(n, k), items)
    last_of = {}
    for n, (t, c) in enumerate(units): last_of[t] = n
    for t in range(31):
        n = last_of[t]
        k0 = readK((0,)); k1 = readK((1,))
        at(n, 7, k0[:2]); at(n, 8, k0[2:]); at(n, 16, k1[:2]); at(n, 17, k1[2:])
        at(n, 18, ["s_waitcnt lgkmcnt(4)"])
        at(n + 1, 8, ["s_waitcnt lgkmcnt(0)"])
        m = n + 2
        v = [readV(dt) for dt in range(8)]
        at(m, 5, v[0][:1]); at(m, 6, v[0][1:]); at(m, 7, v[1]); at(m, 8, v[2])
        at(m, 14, v[3][:1]); at(m, 15, v[3][1:]); at(m, 16, v[4]); at(m, 17, v[5]); at(m, 18, v[6])
        at(m + 1, 4, ["s_waitcnt lgkmcnt(6)"])
        at(m + 1, 5, v[7][:1]); at(m + 1, 6, v[7][1:])
        at(m + 1, 8, ["s_waitcnt lgkmcnt(2)"])
        at(m + 1, 16, ["s_waitcnt lgkmcnt(0)"])
        T4 = S_T + 4
        at(n - 1, 5, [f"s_add_u32 s{T4}, s{S_RD}, {SLOT}"])
        at(n - 1, 7, [f"s_cmp_eq_u32 s{T4}, {SLOT*NSLOT}\ns_cselect_b32 s{T4}, 0, s{T4}"])
        at(n - 1, 14, [f"s_sub_u32 s{S_DELTA}, s{T4}, s{S_RD}"]); at(n - 1, 15, [f"s_mov_b32 s{S_RD}, s{T4}"])
        at(n, 5, [f"v_add_u32 v{V_KA}, s{S_DELTA}, v{V_KA}"])
        at(n + 1, 14, [f"v_add_u32 v{V_VA0}, s{S_DELTA}, v{V_VA0}"]); at(n + 1, 15, [f"v_add_u32 v{V_VA1}, s{S_DELTA}, v{V_VA1}"])
    woj = opt.get("woj")
    for j in range(32):
        D = j // 2
        g = G(13 * D + 5, 0) if j % 2 == 0 else G(13 * D + 11, 9)
        nxt = G(13 * D + 11, 9) if j % 2 == 0 else G(min(13 * D + 18, N + 2), 0)
        w = min(8 * (LD - 1), vm_wait({('KV', j + 1)})) if j < 31 else None
        if j >= 30:
            if j == 30:
                pl.g[g] += [f"s_waitcnt vmcnt(0)", "s_barrier"]
                if opt.get("wopf", True) and woj is None: pl.put(g + 1, [f"buffer_load_dword v255, v{V_PF}, s[56:59], s{S_PFO} offen"])
                if opt.get("cpf3") and opt.get("fused"):
                    pf = [f"s_lshr_b32 s66, s2, 3\ns_and_b32 s66, s66, 3"] + code_pf("L2_entry", "L_code_end", 66, 252, V_PF, fwd=True)
                    pl.put(g + 2, pf)
            continue
        pl.g[g] += [f"s_waitcnt vmcnt({w})", "s_barrier"]
        dm = dmaKV(f"s{S_DST}", j + LD + 1) + ring_next(S_DST)
        last = pl.spread(g, nxt, dm, vmcap=opt.get("vmcap", 2), group=opt.get("dmagroup", 1))
        if woj is not None and j >= 2 and j % 4 == woj[1]:
            q = pl.put(last + 1, [f"s_cmp_eq_u32 s{S_CNT}, {woj[0]}\ns_cselect_b32 s67, s{S_PFO}, 0x80000000", f"buffer_load_dword v255, v{V_PF}, s[56:59], s67 offen"])
            assert q < nxt and (j % 4 != 1 or q < G(13 * (D + 1), 0)), (q, nxt)
    seq = pre_a + pl.ins(0, G(13, 0)) + I(stamp(7, opt)) + [Ins(f"s_mov_b32 s{S_CNT}, 7")]
    seq, lg, vm = finalize_straight(seq, out, lg, vm, tag=tag + "a0", verbose=verbose)
    out += seq
    per = G(39, 0) - G(13, 0)
    for it in range(1, 7):
        for k in range(per):
            a, b = G(13, 0) + k, G(13, 0) + it * per + k
            assert pl.m[a] == pl.m[b] and pl.g[a] == pl.g[b], (it, k, pl.m[a], pl.m[b], pl.g[a], pl.g[b])
    lst = []
    if opt.get("prof2"):
        lst = I(["s_waitcnt lgkmcnt(0)", "s_memrealtime s[98:99]", "s_memtime s[100:101]", f"s_lshl_b32 s66, s{S_CNT}, 1", "s_sub_u32 s66, 38, s66", "s_add_u32 s67, s66, 1",
                 "s_waitcnt lgkmcnt(0)", "v_mov_b32 v252, s98", f"v_cmp_eq_u32 vcc, s66, v{V_LANE}", "v_cndmask_b32 v251, v251, v252, vcc",
                 "v_mov_b32 v252, s100", f"v_cmp_eq_u32 vcc, s67, v{V_LANE}", "v_cndmask_b32 v251, v251, v252, vcc"])
    body = [Ins(".p2align 6"), Ins(f"L1_a{p}:")] + pl.ins(G(13, 0), G(39, 0)) + lst + \
           I([f"s_sub_u32 s{S_CNT}, s{S_CNT}, 1", f"s_cmp_lg_u32 s{S_CNT}, 0", f"s_cbranch_scc1 L1_a{p}"])
    ab2 = opt.get("abl2", "")
    if "noL" in ab2: body = [x for x in body if not (x.kind == "mfma" and f"a[{ONES}:" in x.text)]
    if "addL" in ab2:
        nb = []; k = 0
        for x in body:
            if x.kind == "mfma" and f"a[{ONES}:" in x.text: continue
            nb.append(x)
            if x.op.startswith("v_cvt_pk"):
                a, b = x.text.split(", ")[1:]
                nb.append(Ins(f"v_add_f32 v252, v252, {a}")); pend = b
            elif x.kind == "mfma" and k % 1 == 0 and "pend" in dir() and pend and nb[-2].kind == "mfma":
                nb.append(Ins(f"v_add_f32 v253, v253, {pend}")); nb.append(Ins(f"v_add_f32 v254, v254, {pend}")); pend = None
        body = nb
    if "pad" in ab2:
        k = int(ab2.split("pad")[1]); nb = []
        for x in body:
            nb.append(x)
            if x.kind == "mfma" and f"a[{ONES}:" in x.text: nb.append(Ins(f"s_nop {k}"))
        body = nb
    if "xm" in ab2:
        k = int(ab2.split("xm")[1]); nb = []
        for x in body:
            nb.append(x)
            if x.kind == "mfma" and f"a[{ONES}:" in x.text:
                for q in range(k): nb.append(Ins(mf(ar(240+4*q), ar(K_(0,q)), ar(Q_(q,q)), ar(240+4*q))))
        body = nb
    if "nocomp" in ab2: body = [x for x in body if x.kind not in ("mfma", "trans", "dsr") and not x.op.startswith("v_cvt")]
    if "noexp" in ab2: body = [x for x in body if x.kind != "trans"]
    if "nodma" in ab2: body = [x for x in body if x.kind != "dma"]
    if "noread" in ab2: body = [x for x in body if x.kind != "dsr"]
    if "nobar" in ab2: body = [x for x in body if x.op != "s_barrier"]
    body, lg, vm = finalize_loop(body, out, lg, vm, tag=tag + "aloop", verbose=verbose)
    if opt.get("epad"):
        k, nA = opt["epad"]
        cp = []
        for x in body:
            t = x.text.replace(f"L1_a{p}", f"L1_z{p}").replace(f"s_cmp_lg_u32 s{S_CNT}, 0", f"s_cmp_lg_u32 s{S_CNT}, {7-nA}")
            cp.append(Ins(t))
            if x.kind == "mfma" and f"a[{ONES}:" in x.text: cp.append(Ins(f"s_nop {k}"))
        out += cp
    out += body
    seq = I(stamp(8, opt)) + pl.ins(G(195, 0), len(pl.m))
    E = Prog(); e = E.e
    E.extend(stamp(9, opt))
    xs = ((32 + 29) % 5) * SLOT
    e(f"v_lshlrev_b32 v{V_T}, 4, v{V_LANE}")
    e(f"s_add_u32 s{S_T+2}, s{S_M0KV}, {xs}")
    e(f"v_add_u32 v{V_T+1}, s{S_T+2}, v{V_T}")
    e(f"v_xor_b32 v{V_T+2}, 8192, v{V_T+1}")
    for i in range(4): e(f"ds_write_b128 v{V_T+1}, {O_(6, 4*(1-p)+i)} offset:{i*1024}")
    e(f"ds_write_b128 v{V_T+1}, {ar(L_(6))} offset:4096")
    R = 220
    for c in range(7): e(f"v_accvgpr_read_b32 v{R+2*c}, a{L_(c)}")
    e(f"v_max3_f32 v234, v{R}, v{R+2}, v{R+4}\nv_max3_f32 v235, v{R+6}, v{R+8}, v{R+10}\nv_max3_f32 v234, v234, v235, v{R+12}")
    e(f"v_add_f32 v235, v{R}, v{R+2}\nv_add_f32 v236, v{R+4}, v{R+6}\nv_add_f32 v237, v{R+8}, v{R+10}\nv_add_f32 v235, v235, v{R+12}")
    e("v_add_f32 v236, v236, v237\nv_add_f32 v234, v234, v235\nv_add_f32 v234, v234, v236")
    e(f"ds_write_b32 v{V_T+1}, v234 offset:5120")
    for c in range(6): e(f"v_rcp_f32 v{R+2*c}, v{R+2*c}")
    e(f"s_lshl_b32 s{S_T+3}, s{S_HP}, 1\ns_add_u32 s{S_T+3}, s{S_T+3}, s{S_HH}\ns_mul_i32 s{S_T+3}, s{S_T+3}, {4*13*1024}")
    e(f"v_add_u32 v235, {xs}, v{V_T}")
    e("s_waitcnt lgkmcnt(0)\ns_barrier")
    for w in range(4): e(f"ds_read_b32 v{236+w}, v235 offset:{w*8192+5120}")
    for i in range(4): e(f"ds_read_b128 {vr(192+4*i)}, v{V_T+2} offset:{i*1024}")
    e(f"ds_read_b128 {vr(208)}, v{V_T+2} offset:4096")
    e("v_add_f32 v236, v236, v237\nv_add_f32 v238, v238, v239\nv_add_f32 v236, v236, v238")
    e(f"s_mov_b32 s{S_T+5}, 0x5f800000")
    e(f"v_cmp_ngt_f32 vcc, s{S_T+5}, v236")
    e(f"s_cmp_lg_u32 s{S_FLAG}, 0\ns_cbranch_scc1 L1_ok{p}")
    if not ab2 and not opt.get("abl") and not opt.get("stag"): e(f"s_cbranch_vccnz L1_fb{p}")
    e(f"L1_ok{p}:")
    def norm_store(r, rc, j, mt):
        for h in range(0, 8, 2): e(f"v_pk_mul_f32 v[{r+h}:{r+h+1}], v[{r+h}:{r+h+1}], v[{rc}:{rc+1}] op_sel_hi:[1,0]")
        for h in range(4): e(f"v_cvt_pk_bf16_f32 v{r+h}, v{r+2*h}, v{r+2*h+1}")
        e(f"s_add_u32 s{S_T+4}, s{S_T+3}, {(j*13+mt)*1024}")
        e(f"buffer_store_dwordx4 {vr(r)}, v{V_T}, s[20:23], s{S_T+4} offen {opt.get('osf','')}")
    for c in range(6):
        for j in range(4): norm_store(c * 32 + j * 8, R + 2 * c, j, mt_of(c))
    e(f"v_add_f32 v212, v{R+12}, v208\nv_rcp_f32 v212, v212")
    for i in range(16):
        e(f"v_accvgpr_read_b32 v{236+(i%4)}, a{208+16*p+i}\nv_add_f32 v{192+i}, v{192+i}, v{236+(i%4)}")
    for jj in range(2): norm_store(192 + 8 * jj, 212, 2 * p + jj, 12)
    E.extend(stamp(10, opt))
    if opt.get("fused"):
        e("s_branch L2_entry")
    else:
        if opt.get("prof"): e("s_waitcnt vmcnt(0)")
        E.extend(stamp(11, opt))
        E.extend(stamp_store(12, opt, 4, 0x8000000, S_WAVE))
        e("s_endpgm")
    seq += E.ins
    seq, lg, vm = finalize_straight(seq, out, lg, vm, tag=tag + "tail", verbose=verbose)
    out += seq
    F = Prog(); e = F.e
    e(f"L1_fb{p}:")
    e("s_waitcnt vmcnt(0) lgkmcnt(0)\ns_barrier")
    back = (2 - (2 + 31) % 5) * SLOT
    assert back < 0
    for r in (V_KA, V_VA0, V_VA1): e(f"v_subrev_u32 v{r}, {-back}, v{r}")
    for c in range(7): e(f"v_mov_b32 v{64+c}, 0xff800000")
    e(KVRST + f"\ns_mov_b32 s{S_CNT}, 32\ns_mov_b32 s{S_FLAG}, 1")
    fpre, _, _ = finalize_straight(F.ins, [], [], [], tag=tag + "fb0")
    F = Prog(); e = F.e
    e(f"L1_fl{p}:")
    F.extend(dmaKV(2 * SLOT, 0, track=False))
    e("s_waitcnt vmcnt(0)\ns_barrier")
    F.extend(readK())
    F.extend(qk_all())
    for c in range(7):
        r = c * 8
        e(f"v_max3_f32 v{r}, v{r}, v{r+1}, v{r+2}\nv_max3_f32 v{r+3}, v{r+3}, v{r+4}, v{r+5}\nv_max3_f32 v{r}, v{r}, v{r+6}, v{r+7}")
        e(f"v_max3_f32 v{64+c}, v{64+c}, v{r}, v{r+3}")
    e("s_barrier")
    e(f"s_sub_u32 s{S_CNT}, s{S_CNT}, 1\ns_cmp_lg_u32 s{S_CNT}, 0\ns_cbranch_scc1 L1_fl{p}")
    fl, _, _ = finalize_loop(F.ins, fpre, [], [], tag=tag + "fbl")
    F = Prog(); e = F.e
    e(KVRST)
    for t in range(LD + 1): F.extend(dmaKV(((2 + t) % 5) * SLOT, t, track=False))
    for c in range(7): e(f"v_mov_b32 v{c*8}, v{64+c}")
    e("s_waitcnt vmcnt(0)\ns_barrier")
    F.extend(readK())
    for dt in range(8): F.extend(readV(dt))
    e(f"s_branch L1_m{p}")
    fpost, _, _ = finalize_straight(F.ins, fl, [], [], tag=tag + "fb2")
    out += fpre + fl + fpost
    return out
```

```python
from asmgen import *

WS_O_BYTES_PER_B = 128 * 13 * 1024

def mf(d, a, b, c):
    return f"v_mfma_f32_16x16x32_bf16 {d}, {a}, {b}, {c}"
def vr(i, n=4): return f"v[{i}:{i+n-1}]"
def ar(i, n=4): return f"a[{i}:{i+n-1}]"

def gen_k2(name="oproj_kernel", opt=None):
    opt = opt or {}
    P = Prog()
    e = P.e
    SLOT = 8448
    WREG = 4 * SLOT
    def acc(c, j2, u, half_local=True):
        if c < 6: return (c * 8 + j2 * 2 + u) * 4
        return (48 + j2 * 2 + u) * 4
    def Bf(i, c): return (i % 4) * 28 + c * 4
    def Af(i, j2, u): return 112 + (i % 2) * 32 + (j2 * 2 + u) * 4
    V_OA, V_OB, V_OC = 208, 209, 210
    V_W = 212
    V_RD = 216
    V_T = 220
    from gen_k1 import stamp as stamp0, stamp_store, V_LANE, S_WAVE
    fused = opt.get("fused", False)
    SB = 20 if fused else 0
    def stamp(k, o): return stamp0(k + SB, o)
    if fused:
        e("L2_entry:")
        e(f"s_mov_b32 s26, s{S_WAVE}\nv_mov_b32 v221, v{V_LANE}")
        e("v_mov_b32 v226, 0\nv_mov_b32 v227, 1")
        P.extend(stamp(0, opt))
        e("s_cmp_lg_u32 s26, 0\ns_cbranch_scc1 L2_pub")
        e("s_mov_b64 exec, 1")
        e("buffer_atomic_add v227, v226, s[76:79], s80 offen sc1")
        e("s_mov_b64 exec, -1")
        e("L2_pub:")
    else:
        e(f".p2align 8\n.type {name},@function\n{name}:")
        e("s_cmp_ge_u32 s2, 256\ns_cbranch_scc1 L2_end")
        P.extend(stamp(0, opt))
    e("s_load_dwordx2 s[4:5], s[0:1], 32")
    e("s_load_dwordx2 s[6:7], s[0:1], 40")
    e("s_load_dwordx2 s[24:25], s[0:1], 56")
    if not fused:
        e("v_lshrrev_b32 v220, 6, v0")
        e("v_and_b32 v221, 63, v0")
        e("v_readfirstlane_b32 s26, v220")
    e("s_and_b32 s27, s2, 7")
    e("s_lshr_b32 s28, s2, 3")
    if opt.get("map", 0) == 0:
        e("s_lshr_b32 s29, s27, 1\ns_lshl_b32 s29, s29, 2\ns_lshr_b32 s30, s28, 3\ns_add_u32 s29, s29, s30")
        e("s_and_b32 s30, s27, 1\ns_lshl_b32 s30, s30, 2\ns_lshr_b32 s31, s28, 1\ns_and_b32 s31, s31, 3\ns_add_u32 s30, s30, s31")
    else:
        e("s_lshl_b32 s29, s27, 1\ns_lshr_b32 s30, s28, 4\ns_add_u32 s29, s29, s30")
        e("s_lshr_b32 s30, s28, 1\ns_and_b32 s30, s30, 7")
    e("s_and_b32 s31, s28, 1")
    e("s_waitcnt lgkmcnt(0)")
    e(f"s_mul_i32 s32, s29, {WS_O_BYTES_PER_B}")
    e(f"s_add_u32 s8, s24, s32\ns_addc_u32 s9, s25, 0\ns_mov_b32 s10, {WS_O_BYTES_PER_B}\ns_mov_b32 s11, 0x20000")
    e("s_lshl_b32 s32, s30, 8")
    e("s_add_u32 s12, s4, s32\ns_addc_u32 s13, s5, 0\ns_sub_u32 s14, 8388608, s32\ns_mov_b32 s15, 0x20000")
    e("s_mul_i32 s32, s29, 425984")
    e("s_add_u32 s16, s6, s32\ns_addc_u32 s17, s7, 0\ns_mov_b32 s18, 425984\ns_mov_b32 s19, 0x20000")
    e(f"s_mul_i32 s32, s26, {32*13312}")
    e("s_mul_i32 s33, s31, 6144")
    e("s_add_u32 s33, s33, s32")
    e("v_lshlrev_b32 v222, 4, v221")
    e(f"v_add_u32 v{V_OA}, s33, v222")
    e(f"v_add_u32 v{V_OB}, 4096, v{V_OA}")
    e("s_add_u32 s33, s32, 12288")
    e(f"v_add_u32 v{V_OC}, s33, v222")
    e("v_lshrrev_b32 v223, 2, v221\nv_and_b32 v223, 3, v223\nv_lshlrev_b32 v223, 11, v223")
    e("v_lshrrev_b32 v224, 4, v221\nv_lshlrev_b32 v224, 6, v224")
    e("v_and_b32 v225, 3, v221\nv_lshlrev_b32 v225, 4, v225")
    e("v_add3_u32 v223, v223, v224, v225")
    e("s_lshl_b32 s32, s26, 21")
    e(f"v_add_u32 v{V_W}, s32, v223")
    for i in range(1, 4):
        e(f"v_add_u32 v{V_W+i}, {i*(8*2048-1024)}, v{V_W}")
    e("v_lshrrev_b32 v223, 4, v221")
    e("v_and_b32 v224, 1, v223\nv_mul_u32_u24 v224, 4104, v224")
    e("v_lshrrev_b32 v223, 1, v223\nv_lshlrev_b32 v223, 10, v223")
    e("v_and_b32 v225, 15, v221\nv_lshlrev_b32 v225, 4, v225")
    e("v_add3_u32 v223, v223, v224, v225")
    e(f"s_mul_i32 s34, s26, {WREG}")
    e(f"v_add_u32 v{V_RD}, s34, v223")
    e("s_lshl_b32 s32, s31, 9")
    e(f"v_add_u32 v{V_RD+1}, s32, v{V_RD}")
    e("s_sub_u32 s32, 512, s32")
    e(f"v_add_u32 v{V_RD+2}, s32, v{V_RD}")
    e("s_mov_b32 s36, 0\ns_mov_b32 s37, 0\ns_mov_b32 s38, 8192")
    for k in range(4):
        e(f"s_add_u32 s{40+2*k}, s34, {k*SLOT}\ns_add_u32 s{41+2*k}, s34, {k*SLOT+4104}")
    def loadO(i):
        L = []
        for c in range(7):
            if c < 4: L.append(f"buffer_load_dwordx4 {ar(Bf(i,c))}, v{V_OA}, s[8:11], s36 offen offset:{c*1024} {opt.get('olf','')}")
            elif c < 6: L.append(f"buffer_load_dwordx4 {ar(Bf(i,c))}, v{V_OB}, s[8:11], s36 offen offset:{(c-4)*1024} {opt.get('olf','')}")
            else: L.append(f"buffer_load_dwordx4 {ar(Bf(i,c))}, v{V_OC}, s[8:11], s36 offen {opt.get('olf','')}")
        L.append("s_add_u32 s36, s36, 13312")
        return L
    def loadW(i):
        k = i % 4
        L = [f"s_mov_b32 m0, s{40+2*k}"]
        for q in range(4): L.append(f"buffer_load_dwordx4 v{V_W+q}, s[12:15], s37 offen offset:{q*1024} {opt.get('wof','')} lds")
        L.append(f"s_mov_b32 m0, s{41+2*k}")
        for q in range(4): L.append(f"buffer_load_dwordx4 v{V_W+q}, s[12:15], s38 offen offset:{q*1024} {opt.get('wof','')} lds")
        L.append("s_add_u32 s37, s37, 65536\ns_add_u32 s38, s38, 65536")
        return L
    def readA(i):
        L = []
        for jl in range(4):
            for u in range(2):
                for uk in range(2):
                    a = Af(i, jl, u) + 2 * uk
                    off = (i % 4) * SLOT + uk * 2048 + (jl & 1) * 256 + u * 8
                    L.append(f"ds_read_b64_tr_b16 {ar(a,2)}, v{V_RD+1+(jl>>1)} offset:{off}")
        return L
    if not fused:
        P.extend(loadW(0))
        for i in range(3):
            P.extend(loadO(i)); P.extend(loadW(i + 1))
        e("s_waitcnt vmcnt(45)")
        P.extend(stamp(1, opt))
        P.extend(readA(0))
        vmw0 = [30, 30, 30, 30]
    else:
        for i in range(4): P.extend(loadW(i))
        e("s_cmp_lg_u32 s26, 0\ns_cbranch_scc1 L2_go")
        e("s_mov_b64 exec, 1")
        e("s_mov_b32 s53, 0x400000")
        e("L2_poll:")
        e("buffer_load_dword v228, v226, s[76:79], s80 offen sc1")
        e("s_waitcnt vmcnt(0)")
        e("v_readfirstlane_b32 s54, v228")
        e("s_sub_u32 s53, s53, 1\ns_cbranch_scc1 L2_polled")
        e(f"s_cmp_ge_u32 s54, {8 if opt.get('emu') else 16}\ns_cbranch_scc1 L2_polled")
        e("s_sleep 2\ns_branch L2_poll")
        e("L2_polled:")
        e("s_mov_b64 exec, -1")
        e("L2_go:")
        e("s_waitcnt vmcnt(24)")
        P.extend(readA(0))
        e("s_barrier")
        P.extend(stamp(1, opt))
        for i in range(3): P.extend(loadO(i))
        vmw0 = [14, 22, 30, 30]
    pro, lg, vm = finalize_straight(P.ins, tag="k2pro")
    out = list(pro)

    def kstep(i, first=False, loads=True, reads=True, vmw=30):
        S = Prog()
        S.e(f"s_waitcnt vmcnt({vmw}) lgkmcnt(0)")
        extras = []
        if reads: extras += readA(i + 1)
        ld = []
        if loads: ld = loadO(i + 3) + loadW(i + 4)
        mfs = []
        for jl in range(4):
            for u in range(2):
                for c in range(7):
                    if c == 6 and jl >= 2: continue
                    d = vr(acc(c, jl, u))
                    mfs.append(mf(d, ar(Af(i, jl, u)), ar(Bf(i, c)), "0" if first else d))
        gaps = [[] for _ in mfs]
        gi = 1
        for x in ld:
            gaps[min(gi, len(mfs)-1)].append(x)
            if x.startswith("buffer"): gi += 3
        gi = 2
        for k, x in enumerate(extras):
            gaps[gi].append(x); gi += (1 if k % 2 == 0 else 2)
        for m, g in zip(mfs, gaps):
            S.e(m); S.extend(g)
        return S.ins
    seq = []
    for i in range(4): seq += kstep(i, first=(i == 0), vmw=vmw0[i])
    seq.append(Ins("s_mov_b32 s39, 6"))
    emu = opt.get("emu")
    if emu:
        seq += [Ins("s_cmp_eq_u32 s81, 0"), Ins(f"s_cselect_b32 s39, {emu[2]}, {emu[4]}")]
    seq, lg, vm = finalize_straight(seq, out, lg, vm, tag="k2peel")
    out += seq
    body = [Ins(".p2align 6"), Ins("L2_loop:")]
    for i in range(4, 8): body += kstep(i)
    if emu:
        body += [Ins(f"s_cmp_ge_u32 s36, {24*13312}"), Ins("s_cselect_b32 s36, 0, s36"), Ins("s_cselect_b32 s37, 0, s37"), Ins("s_cselect_b32 s38, 8192, s38")]
    body += [Ins("s_sub_u32 s39, s39, 1"), Ins("s_cmp_lg_u32 s39, 0"), Ins("s_cbranch_scc1 L2_loop")]
    body, lg, vm = finalize_loop(body, out, lg, vm, tag="k2loop")
    out += body
    if emu:
        X = Prog(); x = X.e
        x("s_cmp_lg_u32 s81, 0\ns_cbranch_scc1 L2_x2")
        X.extend(stamp(6, opt))
        x("s_mov_b32 s81, 1\ns_mov_b64 exec, 1\ns_mov_b32 s53, 0x100000")
        x("L2_poll2:\nbuffer_load_dword v228, v226, s[76:79], s82 offen sc1\ns_waitcnt vmcnt(0)\nv_readfirstlane_b32 s54, v228")
        x("s_sub_u32 s53, s53, 1\ns_cbranch_scc1 L2_p2d\ns_cmp_ge_u32 s54, 8\ns_cbranch_scc1 L2_p2d\ns_sleep 2\ns_branch L2_poll2")
        x(f"L2_p2d:\ns_mov_b64 exec, -1")
        X.extend(stamp(7, opt))
        x(f"s_mov_b32 s39, {emu[3]}\ns_branch L2_loop\nL2_x2:")
        xs, _, _ = finalize_straight(X.ins, out, [], [], tag="emu")
        out += xs
    seq = []
    S = kstep(28)
    S = [x for x in S if not (x.kind == "dma" or "m0" in x.wr or x.text.startswith("s_add_u32 s37") or x.text.startswith("s_add_u32 s38"))]
    seq += S
    seq += kstep(29, loads=False, vmw=22)
    seq += kstep(30, loads=False, vmw=7)
    seq += kstep(31, loads=False, reads=False, vmw=0)
    seq, lg, vm = finalize_straight(seq, out, lg, vm, tag="k2tail")
    out += seq
    def owner(pt): return pt % 4 if pt < 24 else pt - 24
    E = Prog(); e = E.e
    E.extend(stamp(2, opt))
    e("s_barrier")
    e("v_lshlrev_b32 v222, 4, v221")
    e("v_add_u32 v223, 65536, v222\nv_add_u32 v224, 131072, v222")
    e("v_and_b32 v225, 15, v221\nv_lshlrev_b32 v225, 11, v225")
    e("v_lshrrev_b32 v226, 4, v221\nv_lshlrev_b32 v226, 4, v226")
    e("s_lshl_b32 s32, s30, 8")
    e("v_add3_u32 v225, v225, v226, s32")
    e("s_lshl_b32 s33, s31, 7")
    e("s_sub_u32 s35, 128, s33")
    e(f"s_mul_i32 s36, s31, {6*32768}")
    e("s_cmp_eq_u32 s26, 1\ns_cbranch_scc1 L2_e1\ns_cmp_eq_u32 s26, 2\ns_cbranch_scc1 L2_e2\ns_cmp_eq_u32 s26, 3\ns_cbranch_scc1 L2_e3")
    pre, lg, vm = finalize_straight(E.ins, out, lg, vm, tag="k2epre")
    out += pre
    def ldsaddr(pt, src, u):
        off = (pt * 3 + src) * 2048 + u * 1024
        return f"v{222 + off // 65536}", off % 65536
    for w in range(4):
        E = Prog(); e = E.e
        e(f"L2_e{w}:")
        for pt in range(26):
            o = owner(pt)
            if o == w: continue
            src = (w - o - 1) % 4
            c, jl = (pt // 4, pt % 4) if pt < 24 else (6, pt - 24)
            for u in range(2):
                a, off = ldsaddr(pt, src, u)
                e(f"ds_write_b128 {a}, {vr(acc(c,jl,u))} offset:{off}")
        e("s_waitcnt lgkmcnt(0)\ns_barrier")
        E.extend(stamp(3, opt))
        mine = [pt for pt in range(26) if owner(pt) == w]
        free = []
        for pt in range(26):
            if owner(pt) != w:
                c, jl = (pt // 4, pt % 4) if pt < 24 else (6, pt - 24)
                free += [acc(c, jl, 0), acc(c, jl, 1)]
        free += [228, 232, 236, 240]
        fi = 0
        tmp = {}
        for pt in mine:
            for src in range(3):
                for u in range(2):
                    a, off = ldsaddr(pt, src, u)
                    tmp[(pt, src, u)] = free[fi]; fi += 1
                    e(f"ds_read_b128 {vr(tmp[(pt,src,u)])}, {a} offset:{off}")
        for pt in mine:
            c, jl = (pt // 4, pt % 4) if pt < 24 else (6, pt - 24)
            for u in range(2):
                r = acc(c, jl, u)
                t0, t1, t2 = (tmp[(pt, s, u)] for s in range(3))
                for h in (0, 2):
                    e(f"v_pk_add_f32 v[{r+h}:{r+h+1}], v[{r+h}:{r+h+1}], v[{t0+h}:{t0+h+1}]")
                    e(f"v_pk_add_f32 v[{t1+h}:{t1+h+1}], v[{t1+h}:{t1+h+1}], v[{t2+h}:{t2+h+1}]")
                for h in (0, 2):
                    e(f"v_pk_add_f32 v[{r+h}:{r+h+1}], v[{r+h}:{r+h+1}], v[{t1+h}:{t1+h+1}]")
            r = acc(c, jl, 0)
            e(f"v_cvt_pk_bf16_f32 v{r}, v{r}, v{r+1}\nv_cvt_pk_bf16_f32 v{r+1}, v{r+2}, v{r+3}")
            e(f"v_cvt_pk_bf16_f32 v{r+2}, v{r+4}, v{r+5}\nv_cvt_pk_bf16_f32 v{r+3}, v{r+6}, v{r+7}")
            js = "s33" if jl < 2 else "s35"
            if c < 6: e(f"s_add_u32 s37, s36, {c*32768}\ns_add_u32 s37, s37, {js}")
            else: e(f"s_add_u32 s37, {js}, {12*32768}")
            e(f"buffer_store_dwordx4 {vr(r)}, v225, s[16:19], s37 offen offset:{(jl&1)*64} {opt.get('outf','')}")
        E.extend(stamp(4, opt))
        if opt.get("prof"): e("s_waitcnt vmcnt(0)")
        E.extend(stamp(5, opt))
        E.extend(stamp_store(6, opt, 24, 0x8000000 if fused else 0x8100000, 26))
        e("s_endpgm")
        s2, _, _ = finalize_straight(E.ins, out, [], [], tag=f"k2e{w}")
        out += s2
    if not fused:
        out.append(Ins("L2_end:")); out.append(Ins("s_endpgm"))
    Q = Prog(); Q.ins = out
    desc = f""".amdhsa_kernel {name}
  .amdhsa_next_free_vgpr 512
  .amdhsa_next_free_sgpr 102
  .amdhsa_accum_offset 256
  .amdhsa_group_segment_fixed_size 0
  .amdhsa_kernarg_size 64
  .amdhsa_user_sgpr_count 2
  .amdhsa_user_sgpr_kernarg_segment_ptr 1
  .amdhsa_system_sgpr_workgroup_id_x 1
.end_amdhsa_kernel
"""
    return Q.text(), desc
```

```python
import sys, json
import gen_k1, gen_k2, gen_op
def build(path, opt=None):
    opt = opt or {}
    hdr = open("standalone__mha_block_cached__near_ridge.s.ref").read().split("; Override launch")[0]
    s = hdr
    if opt.get("fused"):
        kn = "standalone__mha_block_cached__near_ridge_kernel"
        opt["kname"] = kn
        opt.setdefault("osf", "sc1"); opt.setdefault("olf", "sc1")
        t1, d1 = gen_k1.gen_k1(kn, opt)
        t2 = gen_op.gen_main(opt, gen_k1.stamp, gen_k1.stamp_store, gen_k1.V_LANE, gen_k1.S_WAVE)
        s += "; @launch grid=(256,1,1) block=(256,1,1) lds=163840\n"
        s += f'.amdgcn_target "amdgcn-amd-amdhsa--gfx950"\n.text\n.globl {kn}\n'
        s += t1 + t2 + 'L_code_end:\n'
        s += '.section .rodata,"a"\n.p2align 6\n' + d1
    else:
        t1, d1 = gen_k1.gen_k1("attn_kernel", opt)
        t2, d2 = gen_k2.gen_k2("oproj_kernel", opt)
        s += "; @launch kernel=attn_kernel grid=(256,1,1) block=(256,1,1) lds=163840\n"
        s += "; @launch kernel=oproj_kernel grid=(256,1,1) block=(256,1,1) lds=163840\n"
        s += '.amdgcn_target "amdgcn-amd-amdhsa--gfx950"\n.text\n.globl attn_kernel\n.globl oproj_kernel\n'
        s += t1 + t2 + 'L_code_end:\n'
        s += '.section .rodata,"a"\n.p2align 6\n' + d1 + ".p2align 6\n" + d2
    open(path, "w").write(s)
    return s
if __name__ == "__main__":
    path = sys.argv[1] if len(sys.argv) > 1 else "standalone__mha_block_cached__near_ridge.s"
    opt = json.loads(sys.argv[2]) if len(sys.argv) > 2 else {}
    s = build(path, opt)
    print("lines", len(s.splitlines()), "bytes", len(s))
```

```python
from asmgen import *
from gen_k2 import mf, vr, ar, WS_O_BYTES_PER_B
import struct, math

SLOT = 32768
NSLOT = 5
QSCALE = math.log2(math.e) / math.sqrt(128.0)
def f32bits(x): return struct.unpack("<I", struct.pack("<f", x))[0]

def O_(c, dt): return vr(c * 32 + dt * 4) if c < 6 else ar(208 + dt * 4)
def NEGM(c): return 192 + 4 * c
def S_(buf, kt): return 220 + buf * 8 + kt * 4
def P_(buf): return 236 + buf * 4
V_KA, V_VA0, V_VA1, V_LANE = 244, 245, 246, 247
V_KV = 248
V_PF = 250
V_T = 252
V_QW, V_QX = 208, 212
V_QRW, V_QRX, V_QRX2, V_BW, V_BX = 216, 217, 218, 219, 220
V_RW = 221
def Q_(c, ds): return c * 16 + ds * 4
def K_(kt, ds): return 112 + kt * 16 + ds * 4
def V_(dt): return 144 + dt * 4
def L_(c): return 176 + 4 * c
ONES = 204
def QA(buf, j2, u): return 112 + buf * 60 + (j2 * 2 + u) * 4
def QB(buf, c): return 112 + buf * 60 + 32 + c * 4
def QACC(c, j2, u, p):
    if c < 6: return (c * 8 + j2 * 2 + u) * 4
    return (48 + (j2 - 2 * p) * 2 + u) * 4
def RREG(t, i):
    k = t * 8 + i
    return 4 * k if k < 28 else 232 + 4 * (k - 28)
S_WAVE, S_HH, S_B, S_HP, S_CNT, S_DST = 24, 25, 26, 27, 28, 29
S_XO, S_WO, S_KO, S_KO2, S_DELTA = 30, 31, 32, 33, 34
S_M0W, S_M0X, S_M0KV, S_RD = 35, 36, 37, 39
S_T = 40
S_FLAG, S_XO2, S_M0X2, S_PREV, S_PFO = 48, 49, 50, 51, 55
S_KA, S_KX = 64, 65
XREG = 16640

def stamp(k, opt):
    if not opt.get("prof"): return []
    return ["s_waitcnt lgkmcnt(0)", "s_memrealtime s[98:99]", "s_memtime s[100:101]", "s_waitcnt lgkmcnt(0)",
            f"v_writelane_b32 v251, s98, {2*k}", f"v_writelane_b32 v251, s100, {2*k+1}"]
def stamp_store(n, opt, wsreg, base, wave):
    if not opt.get("prof"): return []
    return [f"s_add_u32 s60, s{wsreg}, {base}", f"s_addc_u32 s61, s{wsreg+1}, 0", "s_mov_b32 s62, 0x100000", "s_mov_b32 s63, 0x20000",
         f"s_lshl_b32 s55, s2, 2", f"s_add_u32 s55, s55, s{wave}", "s_lshl_b32 s55, s55, 8",
         "v_mbcnt_lo_u32_b32 v250, -1, 0", "v_mbcnt_hi_u32_b32 v250, -1, v250", "v_lshlrev_b32 v250, 2, v250",
         "buffer_store_dword v251, v250, s[60:63], s55 offen"]

def code_pf(lo, hi, idx_sgpr, va, lane128, tmp=S_T+6, fwd=False):
    return [f"s_getpc_b64 s[{tmp}:{tmp+1}]\ns_add_u32 s{tmp}, s{tmp}, {lo}-.\ns_addc_u32 s{tmp+1}, s{tmp+1}, 0" if fwd else
            f"s_getpc_b64 s[{tmp}:{tmp+1}]\ns_sub_u32 s{tmp}, s{tmp}, .-{lo}\ns_subb_u32 s{tmp+1}, s{tmp+1}, 0",
            f"v_lshl_add_u32 v{va}, s{idx_sgpr}, 13, v{lane128}",
            f"v_min_u32 v{va}, {hi}-{lo}-4, v{va}",
            f"v_mov_b32 v{va+1}, s{tmp+1}",
            f"v_add_co_u32 v{va}, vcc, s{tmp}, v{va}\ns_nop 1\nv_addc_co_u32 v{va+1}, vcc, 0, v{va+1}, vcc",
            f"global_load_dword v255, v[{va}:{va+1}], off"]
def cost(x): return 1 + x.count("\n")
def isvm(x): return x.startswith("buffer") or x.startswith("global")

class Place:
    def __init__(self): self.m = []; self.g = []; self.cap = []
    def add(self, m, cap=2, fixed=()):
        self.m.append(m); self.g.append(list(fixed)); self.cap.append(cap)
    def at(self, g, items):
        for it in items:
            self.g[g].append(it); self.cap[g] -= cost(it)
    def put(self, pos, items, hi=None, step=0):
        hi = len(self.m) - 1 if hi is None else hi
        for it in items:
            while pos < hi and self.cap[pos] < min(cost(it), 2): pos += 1
            self.at(pos, [it])
            last = pos
            pos = min(pos + step, hi)
        return last
    def spread(self, lo, hi, items, vmcap=2, group=1):
        nb = sum(1 for x in items if isvm(x))
        cand = [k for k in range(lo + 1, hi) if self.cap[k] >= vmcap]
        assert len(cand) >= nb, (len(cand), nb)
        ng = -(-nb // group)
        pick = []
        for gi in range(ng):
            st = (gi * len(cand)) // ng
            for q in range(min(group, nb - gi * group)): pick.append(cand[st + q])
        assert pick == sorted(set(pick)), pick
        bi = 0; prev = lo
        for idx, x in enumerate(items):
            if isvm(x):
                g = pick[bi]; bi += 1
                self.g[g].append(x); self.cap[g] -= vmcap; prev = g
            else:
                lim = pick[bi] if bi < nb else hi
                q = prev
                while q < lim - 1 and (self.cap[q] < cost(x) or q in pick[bi:]): q += 1
                if self.cap[q] < cost(x): q = prev if bi > 0 or True else q
                self.at(q, [x]); prev = q
        return prev
    def ins(self, lo=0, hi=None):
        out = []
        for k in range(lo, len(self.m) if hi is None else hi):
            if self.m[k]: out.append(Ins(self.m[k]))
            for x in self.g[k]:
                for line in x.split("\n"): out.append(Ins(line))
        return out

def ring_next(reg):
    return [f"s_add_u32 s{reg}, s{reg}, {SLOT}", f"s_cmp_eq_u32 s{reg}, {SLOT*NSLOT}\ns_cselect_b32 s{reg}, 0, s{reg}"]
def I(lst): return [Ins(l) for x in lst for l in x.split("\n")]

DESC = """.amdhsa_kernel {name}
  .amdhsa_next_free_vgpr 512
  .amdhsa_next_free_sgpr 102
  .amdhsa_accum_offset 256
  .amdhsa_group_segment_fixed_size 0
  .amdhsa_kernarg_size 64
  .amdhsa_user_sgpr_count 2
  .amdhsa_user_sgpr_kernarg_segment_ptr 1
  .amdhsa_system_sgpr_workgroup_id_x 1
.end_amdhsa_kernel
"""

def gen_k1(name="attn_kernel", opt=None):
    opt = opt or {}
    P = Prog(); e = P.e
    e(f".p2align 8\n.type {name},@function\n{name}:")
    e("s_cmp_ge_u32 s2, 256\ns_cbranch_scc1 L1_end")
    P.extend(stamp(0, opt))
    e("s_load_dwordx4 s[40:43], s[0:1], 0")
    e("s_load_dwordx4 s[44:47], s[0:1], 16")
    e("s_load_dwordx2 s[4:5], s[0:1], 56")
    e("s_load_dwordx2 s[6:7], s[0:1], 32")
    e("s_load_dwordx2 s[76:77], s[0:1], 48")
    L = V_LANE
    t0, t1, t2, t3 = V_T, V_T + 1, V_T + 2, V_T + 3
    e(f"v_lshrrev_b32 v{t0}, 6, v0")
    e(f"v_and_b32 v{L}, 63, v0")
    e(f"v_readfirstlane_b32 s{S_WAVE}, v{t0}")
    e("s_and_b32 s90, s2, 7\ns_lshr_b32 s91, s2, 3")
    if opt.get("map", 0) == 0:
        e(f"s_lshr_b32 s{S_B}, s90, 1\ns_lshl_b32 s{S_B}, s{S_B}, 2\ns_lshr_b32 s52, s91, 3\ns_add_u32 s{S_B}, s{S_B}, s52")
        e(f"s_and_b32 s{S_HP}, s90, 1\ns_lshl_b32 s{S_HP}, s{S_HP}, 3\ns_and_b32 s52, s91, 7\ns_add_u32 s{S_HP}, s{S_HP}, s52")
    else:
        e(f"s_lshl_b32 s{S_B}, s90, 1\ns_lshr_b32 s52, s91, 4\ns_add_u32 s{S_B}, s{S_B}, s52\ns_and_b32 s{S_HP}, s91, 15")
    if opt.get("hpx"): e(f"s_xor_b32 s{S_HP}, s{S_HP}, {opt['hpx']}")
    e(f"s_lshr_b32 s{S_HH}, s{S_WAVE}, 1\ns_and_b32 s53, s{S_WAVE}, 1")
    e(f"v_lshrrev_b32 v{t0}, 2, v{L}\nv_and_b32 v{t0}, 3, v{t0}")
    e(f"v_lshrrev_b32 v{t1}, 4, v{L}")
    e(f"v_and_b32 v{t2}, 3, v{L}")
    e(f"v_lshlrev_b32 v{V_QW}, 13, v{t0}\nv_lshl_add_u32 v{V_QW}, v{t1}, 6, v{V_QW}\nv_lshl_add_u32 v{V_QW}, v{t2}, 4, v{V_QW}")
    e(f"s_lshl_b32 s52, s{S_WAVE}, 16\ns_add_u32 s52, s52, 4096\nv_add_u32 v{V_QW}, s52, v{V_QW}")
    for i in range(1, 4):
        d = (i & 1) * 4 * 8192 + (i >> 1) * 256 - i * 1024
        e(f"v_add_u32 v{V_QW+i}, {d}, v{V_QW}" if d >= 0 else f"v_subrev_u32 v{V_QW+i}, {-d}, v{V_QW}")
    e(f"v_lshrrev_b32 v{V_QX}, 2, v{L}\nv_and_b32 v{V_QX}, 7, v{V_QX}")
    e(f"v_lshrrev_b32 v{t3}, 2, v{V_QX}\nv_lshlrev_b32 v{t3}, 1, v{t3}\nv_xor_b32 v{t3}, v{t3}, v{t2}")
    e(f"v_lshlrev_b32 v{V_QX}, 11, v{V_QX}\nv_lshl_add_u32 v{V_QX}, v{t3}, 4, v{V_QX}")
    e(f"v_lshrrev_b32 v{t3}, 5, v{L}\nv_lshl_add_u32 v{V_QX}, v{t3}, 6, v{V_QX}")
    for i in range(1, 4): e(f"v_add_u32 v{V_QX+i}, {i*(16384-1024)}, v{V_QX}")
    e(f"s_lshl_b32 s52, s{S_WAVE}, 2\ns_lshr_b32 s52, 0xb480, s52\ns_and_b32 s52, s52, 15")
    e(f"s_lshl_b32 s{S_XO}, s52, 14\ns_lshl_b32 s{S_M0X}, s52, 10\ns_add_u32 s{S_M0X}, s{S_M0X}, {XREG}")
    e(f"s_mul_i32 s52, s{S_WAVE}, 3")
    e(f"s_lshl_b32 s{S_XO2}, s52, 14\ns_add_u32 s{S_XO2}, s{S_XO2}, {14*16384}")
    e(f"s_lshl_b32 s{S_M0X2}, s52, 10\ns_add_u32 s{S_M0X2}, s{S_M0X2}, {XREG}")
    e(f"s_mul_i32 s{S_M0W}, s53, 8200\ns_lshl_b32 s54, s{S_HH}, 12\ns_add_u32 s{S_M0W}, s{S_M0W}, s54")
    e(f"s_mov_b32 s{S_WO}, 0")
    if opt.get("qrole"):
        e(f"s_mul_i32 s52, s{S_HH}, 7\ns_lshl_b32 s{S_XO}, s52, 14\ns_lshl_b32 s{S_M0X}, s52, 10\ns_add_u32 s{S_M0X}, s{S_M0X}, {XREG}")
        e(f"s_mul_i32 s52, s{S_HH}, 6\ns_lshl_b32 s{S_XO2}, s52, 14\ns_add_u32 s{S_XO2}, s{S_XO2}, {14*16384}")
        e(f"s_lshl_b32 s{S_M0X2}, s52, 10\ns_add_u32 s{S_M0X2}, s{S_M0X2}, {XREG}")
    e(f"s_mul_i32 s52, s{S_B}, 425984\ns_lshl_b32 s54, s{S_HP}, 9")
    e("s_mov_b32 s10, 425984\ns_mov_b32 s11, 0x20000\ns_mov_b32 s15, 0x20000")
    e(f"s_sub_u32 s14, {8388608+4096}, s54")
    e("s_waitcnt lgkmcnt(0)")
    e("s_add_u32 s8, s40, s52\ns_addc_u32 s9, s41, 0")
    e("s_add_u32 s12, s46, s54\ns_addc_u32 s13, s47, 0\ns_sub_u32 s12, s12, 4096\ns_subb_u32 s13, s13, 0")
    e("s_cmp_eq_u32 s53, 1\ns_cbranch_scc1 L1_p1")
    head, _, _ = finalize_straight(P.ins, tag="k1head")
    out = list(head)
    for p in range(2):
        out += gen_path(p, head, opt)
    out.append(Ins("L1_end:")); out.append(Ins("s_endpgm"))
    Q = Prog(); Q.ins = out
    return Q.text(), DESC.format(name=name)

def setup2(p, opt):
    P = Prog(); e = P.e
    L = V_LANE
    t0, t1, t2, t3 = V_T, V_T + 1, V_T + 2, V_T + 3
    kv = (42, 43) if p == 0 else (44, 45)
    e(f"s_lshl_b32 s52, s{S_B}, 5\ns_lshl_b32 s54, s{S_HP}, 1\ns_add_u32 s52, s52, s54\ns_add_u32 s52, s52, s{S_HH}")
    if opt.get("kvrot", 1) == 1: e(f"s_lshr_b32 s54, s52, 5\ns_mul_i32 s54, s54, 11\ns_add_u32 s54, s54, s52\ns_and_b32 s54, s54, 31\ns_lshl_b32 s{S_KX}, s54, 13")
    else: e(f"s_mov_b32 s{S_KX}, 0")
    if opt.get("kvsame"): e(f"s_mov_b32 s52, s{S_HH}")
    e("s_lshl_b32 s54, s52, 18")
    e("s_add_u32 s72, s42, s54\ns_addc_u32 s73, s43, 0\ns_mov_b32 s74, 262144\ns_mov_b32 s75, 0x20000")
    e(f"s_add_u32 s16, s{kv[0]}, s54\ns_addc_u32 s17, s{kv[1]}, 0\ns_mov_b32 s18, 262144\ns_mov_b32 s19, 0x20000")
    e(f"s_mul_i32 s52, s{S_B}, {WS_O_BYTES_PER_B}")
    e(f"s_add_u32 s20, s4, s52\ns_addc_u32 s21, s5, 0\ns_mov_b32 s22, {WS_O_BYTES_PER_B}\ns_mov_b32 s23, 0x20000")
    e("s_mov_b32 s56, s6\ns_mov_b32 s57, s7\ns_mov_b32 s58, 8388608\ns_mov_b32 s59, 0x20000")
    e(f"s_lshl_b32 s{S_M0KV}, s{S_WAVE}, 13")
    e(f"s_mov_b32 s78, 256\ns_mov_b32 s79, 0x20000\ns_lshl_b32 s80, s{S_B}, 4")
    e(f"v_and_b32 v{V_QRW}, 1, v{t1}\nv_mul_u32_u24 v{V_QRW}, 8200, v{V_QRW}")
    e(f"v_lshrrev_b32 v{V_QRX}, 1, v{t1}\nv_lshl_add_u32 v{V_QRW}, v{V_QRX}, 12, v{V_QRW}")
    e(f"v_and_b32 v{V_QRX}, 15, v{L}\nv_lshl_add_u32 v{V_QRW}, v{V_QRX}, 4, v{V_QRW}")
    e(f"s_lshl_b32 s54, s{S_HH}, 11\nv_add_u32 v{V_QRW}, s54, v{V_QRW}")
    e(f"v_and_b32 v{t3}, 1, v{t0}\nv_lshlrev_b32 v{t3}, 1, v{t3}\nv_xor_b32 v{t3}, v{t3}, v{t1}\nv_lshlrev_b32 v{t3}, 4, v{t3}")
    e(f"v_and_b32 v{V_QRX2}, 7, v{L}\nv_lshl_add_u32 v{V_QRX2}, v{V_QRX2}, 6, v{t3}")
    e(f"v_lshrrev_b32 v{V_QRX}, 3, v{V_QRX}\nv_lshl_add_u32 v{V_QRX}, v{V_QRX}, 10, v{V_QRX2}")
    e(f"v_add_u32 v{V_QRX}, {XREG}, v{V_QRX}\nv_add_u32 v{V_QRX2}, {SLOT}, v{V_QRX}")
    e(f"v_mov_b32 v{V_BW}, v{V_QRW}\nv_mov_b32 v{V_BX}, v{V_QRX}")
    e(f"v_lshl_add_u32 v{V_KA}, v{t0}, 10, v{t3}\nv_lshl_add_u32 v{V_KA}, v{t2}, 6, v{V_KA}")
    e(f"s_lshl_b32 s54, s{S_HH}, 14\ns_add_u32 s54, s54, {2*SLOT}\nv_add_u32 v{V_KA}, s54, v{V_KA}")
    e(f"v_lshlrev_b32 v{V_VA0}, 10, v{t1}\nv_lshl_add_u32 v{V_VA0}, v{t0}, 6, v{V_VA0}\nv_lshl_add_u32 v{V_VA0}, v{t2}, 3, v{V_VA0}")
    e(f"s_add_u32 s54, s54, 8192\nv_add_u32 v{V_VA0}, s54, v{V_VA0}")
    e(f"v_and_b32 v{t3}, 1, v{t1}\nv_lshl_add_u32 v{V_VA0}, v{t3}, 5, v{V_VA0}\nv_xor_b32 v{V_VA1}, 32, v{V_VA0}")
    e(f"v_lshlrev_b32 v{V_KV}, 8, v{t0}\nv_lshl_add_u32 v{V_KV}, v{t1}, 6, v{V_KV}\nv_lshl_add_u32 v{V_KV}, v{t2}, 4, v{V_KV}")
    e(f"v_xor_b32 v{V_KV+1}, 32, v{V_KV}\nv_lshlrev_b32 v{V_PF}, 7, v{L}")
    e(f"v_lshlrev_b32 v{t3}, 4, v{L}\nv_add_u32 v{t3}, s{S_M0KV}, v{t3}")
    for t in range(4): e(f"v_add_u32 v{V_RW+t}, {((2+t)%5)*SLOT}, v{t3}")
    e(f"s_mov_b32 s{S_DST}, 0\ns_mov_b32 s{S_RD}, 0\ns_mov_b32 s{S_KA}, 0\ns_mov_b32 s{S_KO}, s{S_KX}\ns_or_b32 s{S_KO2}, s{S_KX}, 4096\ns_mov_b32 s{S_FLAG}, 0\ns_mov_b32 s{S_PREV}, {4*SLOT}")
    return [i.text for i in P.ins]

def gen_path(p, head, opt):
    verbose = opt.get("verbose", False)
    KVF = opt.get("kvflags", "nt")
    NR = opt.get("nr", 4)
    nxa = 4 if p == 0 else 3
    tag = f"p{p}"
    out = []
    vmq = []
    def vm_wait(tags):
        last = max((k for k, t in enumerate(vmq) if t in tags), default=None)
        if last is None: return 63
        return min(63, len(vmq) - 1 - last)
    role = opt.get("qrole")
    def dmaW(s, slot):
        if role and p == 1: return []
        L = [f"s_add_u32 m0, s{S_M0W}, {slot}"]
        for i in range(4): L.append(f"buffer_load_dwordx4 v{V_QW+i}, s[12:15], s{S_WO} offen offset:{i*1024} {opt.get('wqf','')} lds")
        vmq.extend([("W", s)] * 4)
        if role:
            L += [f"s_add_u32 m0, m0, 8200", f"s_add_u32 s70, s{S_WO}, 65536"]
            for i in range(4): L.append(f"buffer_load_dwordx4 v{V_QW+i}, s[12:15], s70 offen offset:{i*1024} {opt.get('wqf','')} lds")
            vmq.extend([("W", s)] * 4)
        L.append(f"s_add_u32 s{S_WO}, s{S_WO}, 262144")
        return L
    def dmaX(which, sig, slot):
        if role == 1 and p == 1: return []
        if role == 2 and p == 0: return []
        n = nxa if which == "A" else 3
        if role: n = 7 if which == "A" else 6
        m0r, so = (S_M0X, S_XO) if which == "A" else (S_M0X2, S_XO2)
        L = [f"s_add_u32 m0, s{m0r}, {slot}"]
        for i in range(min(n, 4)): L.append(f"buffer_load_dwordx4 v{V_QX+i}, s[8:11], s{so} offen offset:{i*1024} {opt.get('xf','')} lds")
        if n > 4:
            L += [f"s_add_u32 m0, m0, 4096", f"s_add_u32 s70, s{so}, 65536"]
            for i in range(n - 4): L.append(f"buffer_load_dwordx4 v{V_QX+i}, s[8:11], s70 offen offset:{i*1024} {opt.get('xf','')} lds")
        L.append(f"s_add_u32 s{so}, s{so}, 128")
        vmq.extend([("X" + which, sig)] * n)
        return L
    KVADV = [f"s_add_u32 s{S_KA}, s{S_KA}, 8192", f"s_xor_b32 s{S_KO}, s{S_KA}, s{S_KX}", f"s_or_b32 s{S_KO2}, s{S_KO}, 4096"]
    KVRST = f"s_mov_b32 s{S_KA}, 0\ns_mov_b32 s{S_KO}, s{S_KX}\ns_or_b32 s{S_KO2}, s{S_KX}, 4096"
    def dmaKV(base, t, track=True):
        L = [f"s_add_u32 m0, s{S_M0KV}, {base}"]
        for i in range(4): L.append(f"buffer_load_dwordx4 v{V_KV+(i&1)}, s[16:19], s{S_KO} offen offset:{i*1024} {KVF} lds")
        L.append("s_add_u32 m0, m0, 4096")
        for i in range(4): L.append(f"buffer_load_dwordx4 v{V_KV+(i&1)}, s[16:19], s{S_KO2} offen offset:{i*1024} {KVF} lds")
        L += KVADV
        if track: vmq.extend([("KV", t)] * 8)
        return L
    def regKV(k):
        t, i = divmod(k, 8)
        L = [f"buffer_load_dwordx4 {ar(RREG(t,i))}, v{V_KV+(i&1)}, s[16:19], s{S_KO if i < 4 else S_KO2} offen offset:{(i&3)*1024} {KVF}"]
        if i == 7: L += KVADV
        vmq.append(("R", t))
        return L
    def wrKV(t): return [f"ds_write_b128 v{V_RW+t}, {ar(RREG(t,i))} offset:{i*1024}" for i in range(8)]
    def mt_of(c): return 6 * p + c if c < 6 else 12
    def readQ(s):
        buf = s % 2; kh = s % 2
        order = [f"ds_read_b64_tr_b16 {ar(QA(buf,j2,u)+2*uk,2)}, v{V_QRW} offset:{uk*1024+j2*256+u*8}"
                 for j2 in range(4) for u in range(2) for uk in range(2)]
        xs = []
        for c in range(7):
            mt = mt_of(c)
            if mt < 7: xs.append(f"ds_read_b128 {ar(QB(buf,c))}, v{V_QRX} offset:{mt*2048+kh*512}")
            else: xs.append(f"ds_read_b128 {ar(QB(buf,c))}, v{V_QRX2} offset:{(mt-7)*2048+kh*512}")
        return order[:2] + xs + order[2:]
    def adv_rd(s):
        L = ring_next(S_RD) + [f"v_add_u32 v{V_QRW}, s{S_RD}, v{V_BW}"]
        if (s + 1) % 2 == 0:
            L += [f"v_add_u32 v{V_QRX}, s{S_RD}, v{V_BX}", f"s_add_u32 s{S_T}, s{S_RD}, {SLOT}",
                  f"s_cmp_eq_u32 s{S_T}, {SLOT*NSLOT}\ns_cselect_b32 s{S_T}, 0, s{S_T}", f"v_add_u32 v{V_QRX2}, s{S_T}, v{V_BX}"]
        return L
    def need(s): return {("W", s), ("XA", s // 2), ("XB", s // 2)}
    P = Prog(); e = P.e
    e(f"L1_p{p}:")
    P.extend(dmaW(0, 0)); P.extend(dmaX("A", 0, 0)); P.extend(dmaX("B", 0, SLOT)); P.extend(dmaW(1, SLOT))
    P.extend(setup2(p, opt))
    if opt.get("qpf"):
        e(f"s_mov_b32 s69, {opt.get('qpf0',5)*8192}\ns_xor_b32 s68, s69, s{S_KX}\nv_lshlrev_b32 v228, 6, v{V_LANE}")
    if opt.get("early", 1) >= 1:
        P.extend(dmaW(2, 2 * SLOT)); P.extend(dmaX("A", 1, 2 * SLOT)); P.extend(dmaX("B", 1, 3 * SLOT))
    w0 = vm_wait(need(0))
    if opt.get("cpf", True):
        e(f"s_lshr_b32 s{S_PFO}, s2, 3\ns_lshl_b32 s{S_PFO}, s{S_PFO}, 2\ns_add_u32 s{S_PFO}, s{S_PFO}, s{S_WAVE}")
        if opt.get("thin", True):
            pf = code_pf(opt.get("kname", "attn_kernel"), "L_code_end", S_PFO, 226, V_KV)
            pf[1] = f"v_lshl_add_u32 v226, s{S_PFO}, 10, v{V_KV}"
            P.extend(pf)
        else:
            e(f"s_and_b32 s{S_PFO}, s{S_PFO}, 15")
            P.extend(code_pf(opt.get("kname", "attn_kernel"), "L_code_end", S_PFO, 226, V_PF))
        vmq.append(("T", "code")); w0 = min(63, w0 + 1)
    e(f"s_waitcnt vmcnt({w0})\ns_barrier")
    P.extend(stamp(1, opt))
    P.extend(readQ(0)); P.extend(adv_rd(0))
    if opt.get("early", 1) < 1:
        P.extend(dmaW(2, 2 * SLOT)); P.extend(dmaX("A", 1, 2 * SLOT)); P.extend(dmaX("B", 1, 3 * SLOT))
    seq, lg, vm = finalize_straight(P.ins, head, tag=tag + "pro", verbose=verbose)
    out += seq
    rs0, rs1 = opt.get("rstages", (10, 26))
    rsched = {}
    for k in range(NR * 8): rsched.setdefault(rs0 + (k * (rs1 - rs0)) // (NR * 8), []).append(k)
    LD = opt.get("lead", 4)
    kv_at = {0: (27, "cur"), 1: (29, "prev"), 2: (29, "cur"), 3: (31, "prev")}
    kv_at = {t: v for t, v in kv_at.items() if t <= LD}
    if opt.get("kvlate") and LD == 2: kv_at = {0: (27, "cur"), 1: (29, "prev"), 2: (30, "prev")}
    def qstage(s):
        buf = s % 2
        pl = Place()
        wtags = need(s + 1) if s < 31 else set()
        wr = []
        for t, (st, which) in kv_at.items():
            if st == s and t < NR: wtags = wtags | {("R", t)}; wr += wrKV(t)
        pl.add(None, 0, [f"s_waitcnt vmcnt({vm_wait(wtags)}) lgkmcnt(0)", "s_barrier"])
        for j2 in range(4):
            for u in range(2):
                for c in range(7):
                    if c == 6 and (j2 >> 1) != p: continue
                    d = vr(QACC(c, j2, u, p))
                    pl.add(mf(d, ar(QA(buf, j2, u)), ar(QB(buf, c)), "0" if s == 0 else d), cap=2)
        dm = []
        cur, prev = f"s{S_DST}", f"s{S_PREV}"
        if s == 0: dm += dmaW(3, 3 * SLOT) + dmaW(4, 4 * SLOT)
        sig = (s + 4) // 2
        if sig <= 15: dm += dmaX("A" if s % 2 == 0 else "B", sig, prev)
        if s + 5 <= 31: dm += dmaW(s + 5, cur)
        for k in rsched.get(s, []): dm += regKV(k)
        for t, (st, which) in kv_at.items():
            if st == s and t >= NR: dm += dmaKV(cur if which == "cur" else prev, t)
        q0, q1 = opt.get("qpfr", (2, 24))
        if opt.get("qpf") and role and p == 1 and q0 <= s < q1:
            n = opt["qpf"]
            for q in range(n):
                isv = (s % 2) if n == 1 else (q % 2)
                srd = "s[16:19]" if isv else "s[72:75]"
                dm += [f"buffer_load_dword v255, v228, {srd}, s68 offen {opt.get('qpff','')}"]; vmq.append(("T", "kv"))
                if isv: dm += [f"s_add_u32 s69, s69, 4096", f"s_xor_b32 s68, s69, s{S_KX}"]
        if s in opt.get("cpf2", []):
            dm += ["global_load_dword v255, v[226:227], off"]; vmq.append(("T", "code"))
        dm += [f"s_mov_b32 s{S_PREV}, s{S_DST}"] + ring_next(S_DST)
        if any(isvm(x) for x in dm): pl.spread(1, 50, dm, vmcap=1)
        else: pl.put(40, dm)
        pos = 1
        if s < 31:
            pos = pl.put(1, readQ(s + 1), step=1)
            pos = pl.put(pos + 1, adv_rd(s + 1))
        if wr: pl.put(pos + 1, wr, step=1)
        res = pl.ins()
        abl = opt.get("abl", "")
        if 4 <= s < 26:
            if "nodma" in abl: res = [x for x in res if x.kind != "dma"]
            if "noread" in abl: res = [x for x in res if x.kind != "dsr"]
            if "nobar" in abl: res = [x for x in res if x.op != "s_barrier"]
            if "chain" in abl:
                k = 0; r2 = []
                ch = int(abl.split("chain")[1][0])
                for x in res:
                    if x.kind == "mfma":
                        ops = x.text.split(None, 1)[1].split(", ")
                        if k % ch == 0: dkeep = ops[0]
                        x = Ins(mf(dkeep, ops[1], ops[2], dkeep)); k += 1
                    r2.append(x)
                res = r2
        return res
    stages = [qstage(s) for s in range(32)]
    txt = lambda L: [i.text for i in L]
    LO = opt.get('lo', 4); HI = LO
    while HI + 2 <= 32 and txt(stages[HI]) == txt(stages[LO]) and txt(stages[HI + 1]) == txt(stages[LO + 1]): HI += 2
    if opt.get("qunroll"): HI = LO + 2
    if p == 0: print("qproj loop stages", LO, HI)
    seq = []
    for s in range(LO): seq += stages[s]
    seq += I(stamp(2, opt)) + [Ins(f"s_mov_b32 s{S_CNT}, {(HI-LO)//2}")]
    stag = opt.get("stag", 0)
    if stag:
        if opt.get("emu"):
            seq += I([f"s_bitcmp1_b32 s2, 3", f"s_cselect_b32 s{S_CNT}, {(HI-LO)//2+opt['emu'][1]}, {(HI-LO)//2+opt['emu'][0]}",
                      "s_cselect_b32 s81, 4, 0", "s_add_u32 s82, s80, 4", "s_add_u32 s80, s80, s81"])
        elif opt.get("stagall"):
            seq += I([f"s_mov_b32 s{S_CNT}, {(HI-LO)//2+stag}"])
        elif opt.get("stagl", 1) == 1:
            seq += I([f"s_bitcmp1_b32 s2, {opt.get('stagbit',3)}", f"s_cselect_b32 s{S_CNT}, {(HI-LO)//2+stag}, s{S_CNT}"])
        else:
            seq += I([f"s_lshr_b32 s66, s2, 3", f"s_and_b32 s66, s66, {opt['stagl']}", f"s_mul_i32 s66, s66, {stag}", f"s_add_u32 s{S_CNT}, s{S_CNT}, s66"])
        stages[LO + 1] = stages[LO + 1] + I([f"s_and_b32 s{S_WO}, s{S_WO}, 0x3fffff", f"s_and_b32 s{S_XO}, s{S_XO}, 0xfffffbff", f"s_and_b32 s{S_XO2}, s{S_XO2}, 0xfffffbff"])
    seq, lg, vm = finalize_straight(seq, out, lg, vm, tag=tag + "q01", verbose=verbose)
    out += seq
    body = [Ins(".p2align 6"), Ins(f"L1_q{p}:")] + stages[LO] + stages[LO + 1] + \
           I([f"s_sub_u32 s{S_CNT}, s{S_CNT}, 1", f"s_cmp_lg_u32 s{S_CNT}, 0", f"s_cbranch_scc1 L1_q{p}"])
    body, lg, vm = finalize_loop(body, out, lg, vm, tag=tag + "qloop", verbose=verbose)
    out += body
    seq = []
    for s in range(HI, 32):
        if s == 26: seq += I(stamp(3, opt))
        seq += stages[s]
    TILES = [6, 0, 1, 2, 3, 4, 5] if p == 0 else [0, 1, 2, 3, 4, 5]
    U = len(TILES)
    E = Prog(); e = E.e
    E.extend(stamp(4, opt))
    e(f"s_mov_b32 s{S_T}, {f32bits(QSCALE):#x}\ns_mov_b32 s{S_T+1}, {f32bits(QSCALE):#x}")
    if p == 0: e(f"v_subrev_u32 v{V_T}, {SLOT}, v{V_RW}")
    else: e(f"v_subrev_u32 v{V_T}, {SLOT+8192}, v{V_RW}")
    for c in [6, 0, 1, 2, 3, 4, 5]:
        for j2 in range(4):
            if c == 6 and (j2 >> 1) != p: continue
            r = QACC(c, j2, 0, p)
            for h in range(0, 8, 2): e(f"v_pk_mul_f32 v[{r+h}:{r+h+1}], v[{r+h}:{r+h+1}], s[{S_T}:{S_T+1}]")
            for h in range(4): e(f"v_cvt_pk_bf16_f32 v{r+h}, v{r+2*h}, v{r+2*h+1}")
            if c == 6 and p == 1: e(f"ds_write_b128 v{V_T}, {vr(r)} offset:{(j2&1)*1024}")
            else:
                for h in range(4): e(f"v_accvgpr_write_b32 a{Q_(c,j2)+h}, v{r+h}")
    e(f"v_mov_b32 v{V_T+2}, 0x3f803f80")
    for h in range(4): e(f"v_accvgpr_write_b32 a{ONES+h}, v{V_T+2}")
    e(f"s_waitcnt vmcnt({vm_wait({('KV',0)})}) lgkmcnt(0)\ns_barrier")
    E.extend(stamp(5, opt))
    def readK(kts=(0, 1)):
        return [f"ds_read_b128 {ar(K_(kt,ds))}, v{V_KA} offset:{kt*4096+ds*256}" for kt in kts for ds in range(4)]
    def readV(dt):
        return [f"ds_read_b64_tr_b16 {ar(V_(dt)+2*kt,2)}, v{V_VA0+(dt&1)} offset:{kt*4096+(dt>>1)*256}" for kt in range(2)]
    if p == 0:
        for i in range(2): e(f"ds_read_b128 {ar(Q_(6, 2+i))}, v{V_T} offset:{i*1024}")
    E.extend(readK())
    if p == 0: e("s_waitcnt lgkmcnt(8)")
    MK = opt.get("mkeys", 2)
    def qk_all(nk):
        L = []
        for c in sorted(TILES):
            for kt in range(nk):
                for ds in range(4):
                    d = vr(c * 8 + kt * 4)
                    L.append(mf(d, ar(K_(kt, ds)), ar(Q_(c, ds)), "0" if ds == 0 else d))
        return L
    pl = Place()
    for m in qk_all(MK): pl.add(m, 2)
    ex = (dmaKV(SLOT, 4) if LD == 4 else []) + [f"s_lshl_b32 s{S_PFO}, s2, 2\ns_add_u32 s{S_PFO}, s{S_PFO}, s{S_WAVE}", f"s_lshl_b32 s{S_PFO}, s{S_PFO}, 13"]
    if LD == 4: pl.spread(0, len(pl.m) - 2, ex, vmcap=1)
    else: pl.put(18, ex)
    pl.put(1, [x for dt in range(8) for x in readV(dt)], step=1)
    E.ins += pl.ins()
    for c in sorted(TILES):
        r = c * 8
        if MK == 2: e(f"v_max3_f32 v{r}, v{r}, v{r+1}, v{r+2}\nv_max3_f32 v{r+3}, v{r+3}, v{r+4}, v{r+5}\nv_max3_f32 v{r}, v{r}, v{r+6}, v{r+7}\nv_max_f32 v{r}, v{r}, v{r+3}")
        else: e(f"v_max3_f32 v{r}, v{r}, v{r+1}, v{r+2}\nv_max_f32 v{r}, v{r}, v{r+3}")
    seq += E.ins
    seq, lg, vm = finalize_straight(seq, out, lg, vm, tag=tag + "qtail", verbose=verbose)
    out += seq
    E = Prog(); e = E.e
    e(f"L1_m{p}:")
    e("s_waitcnt lgkmcnt(0)")
    for c in TILES: e(f"v_mov_b32 v{c*8+1}, v{c*8}")
    for c in TILES: e(f"v_permlane32_swap_b32 v{c*8}, v{c*8+1}")
    for c in TILES: e(f"v_max_f32 v{c*8}, v{c*8}, v{c*8+1}\nv_mov_b32 v{c*8+1}, v{c*8}")
    for c in TILES: e(f"v_permlane16_swap_b32 v{c*8}, v{c*8+1}")
    for c in TILES: e(f"v_max_f32 v{c*8}, v{c*8}, v{c*8+1}")
    for c in TILES:
        for h in range(4): e(f"v_sub_f32 v{NEGM(c)+h}, 0, v{c*8}")
    e(f"s_mov_b32 s{S_DST}, {((3+LD)%5)*SLOT}\ns_mov_b32 s{S_RD}, {2*SLOT}")
    E.extend(stamp(6, opt))
    pre_a = E.ins

    units = [(t, c) for t in range(32) for c in TILES]
    N = len(units)
    pl = Place()
    slot_start = []
    for n in range(N + 2):
        slot_start.append(len(pl.m))
        qk = units[n] if n < N else None
        sm = units[n - 1] if 1 <= n <= N else None
        pv = units[n - 2] if n >= 2 else None
        def Qm(kt, ds):
            if not qk: return None
            d = vr(S_(n % 2, kt))
            return mf(d, ar(K_(kt, ds)), ar(Q_(qk[1], ds)), vr(NEGM(qk[1])) if ds == 0 else d)
        fst = pv is not None and pv[0] == 0
        def Pm(dt):
            if not pv: return None
            d = O_(pv[1], dt)
            return mf(d, ar(V_(dt)), vr(P_(n % 2)), "0" if fst else d)
        def Lm():
            if not pv: return None
            d = ar(L_(pv[1]))
            return mf(d, ar(ONES), vr(P_(n % 2)), "0" if fst else d)
        sb = (n - 1) % 2
        def Ex(i): return [f"v_exp_f32 v{S_(sb,0)+i}, v{S_(sb,0)+i}"] if sm else []
        def Cv(i): return [f"v_cvt_pk_bf16_f32 v{P_(sb)+i}, v{S_(sb,0)+2*i}, v{S_(sb,0)+2*i+1}"] if sm else []
        pl.add(None, 0)
        for ds in range(4): pl.add(Qm(0, ds), 0, Ex(ds))
        pl.add(Pm(0), 1, Cv(0)); pl.add(Pm(1), 1, Cv(1))
        pl.add(Pm(2), 2); pl.add(Pm(3), 2)
        pl.add(None, 0)
        for ds in range(4): pl.add(Qm(1, ds), 0, Ex(4 + ds))
        pl.add(Pm(4), 1, Cv(2)); pl.add(Pm(5), 1, Cv(3))
        pl.add(Pm(6), 2); pl.add(Pm(7), 2)
        pl.add(Lm(), 2)
    slot_start.append(len(pl.m))
    G = lambda n, k: slot_start[n] + k
    at = lambda n, k, items: pl.at(G(n, k), items)
    kx, vx = opt.get("kx", 0), opt.get("vx", 0)
    for t in range(31):
        n = U * t + U - 1
        k0 = readK((0,)); k1 = readK((1,))
        if kx == 0:
            at(n, 7, k0[:2]); at(n, 8, k0[2:]); at(n, 16, k1[:2]); at(n, 17, k1[2:])
            at(n, 18, ["s_waitcnt lgkmcnt(4)"])
            at(n + 1, 8, ["s_waitcnt lgkmcnt(0)"])
        else:
            at(n + 1, 0, k0 + k1 + [f"s_waitcnt lgkmcnt({4 if kx == 1 else 0})"])
            if kx == 1: at(n + 1, 8, ["s_waitcnt lgkmcnt(0)"])
        m = n + 2
        v = [readV(dt) for dt in range(8)]
        if vx == 0:
            at(m, 5, v[0][:1]); at(m, 6, v[0][1:]); at(m, 7, v[1]); at(m, 8, v[2])
            at(m, 14, v[3][:1]); at(m, 15, v[3][1:]); at(m, 16, v[4]); at(m, 17, v[5]); at(m, 18, v[6])
            at(m + 1, 4, ["s_waitcnt lgkmcnt(6)"])
            at(m + 1, 5, v[7][:1]); at(m + 1, 6, v[7][1:])
            at(m + 1, 8, ["s_waitcnt lgkmcnt(2)"])
            at(m + 1, 16, ["s_waitcnt lgkmcnt(0)"])
        else:
            at(m + 1, 0 if vx == 1 else 4, [x for f in v for x in f])
            at(m + 1, 4, [f"s_waitcnt lgkmcnt({8 if vx < 3 else 0})"])
            if vx < 3: at(m + 1, 8, ["s_waitcnt lgkmcnt(0)"])
        T4 = S_T + 4
        at(n - 1, 5, [f"s_add_u32 s{T4}, s{S_RD}, {SLOT}"])
        at(n - 1, 7, [f"s_cmp_eq_u32 s{T4}, {SLOT*NSLOT}\ns_cselect_b32 s{T4}, 0, s{T4}"])
        at(n - 1, 14, [f"s_sub_u32 s{S_DELTA}, s{T4}, s{S_RD}"]); at(n - 1, 15, [f"s_mov_b32 s{S_RD}, s{T4}"])
        at(n, 5, [f"v_add_u32 v{V_KA}, s{S_DELTA}, v{V_KA}"])
        at(n + 1, 14, [f"v_add_u32 v{V_VA0}, s{S_DELTA}, v{V_VA0}"]); at(n + 1, 15, [f"v_add_u32 v{V_VA1}, s{S_DELTA}, v{V_VA1}"])
    BP = opt.get("bp", 3)
    for j in range(31):
        g = G(U * j + BP, 0)
        nxt = G(U * (j + 1) + BP, 0)
        if j == 30:
            pl.g[g] += [f"s_waitcnt vmcnt(0)", "s_barrier"]
            pf = [f"buffer_load_dword v255, v{V_PF}, s[56:59], s{S_PFO} offen"]
            if opt.get("cpf3"):
                pf += [f"s_lshr_b32 s66, s2, 3\ns_lshl_b32 s66, s66, 2", f"s_add_u32 s66, s66, s{S_WAVE}\ns_and_b32 s66, s66, 31"]
                c3 = code_pf(f"L1_e{p}", "L_code_end", 66, 252, V_KV, fwd=True)
                c3[1] = f"v_lshl_add_u32 v252, s66, 10, v{V_KV}"
                pf += c3
            pl.put(g + 1, pf)
            continue
        pl.g[g] += [f"s_waitcnt vmcnt({min(8 * (LD - 1), vm_wait({('KV', j + 1)}))})", "s_barrier"]
        dm = dmaKV(f"s{S_DST}", j + LD + 1) + ring_next(S_DST)
        pl.spread(g, nxt, dm, vmcap=opt.get("vmcap", 2), group=opt.get("dmagroup", 8))
    seq = pre_a + pl.ins(0, G(2 * U, 0)) + I(stamp(7, opt)) + [Ins(f"s_mov_b32 s{S_CNT}, 14")]
    seq, lg, vm = finalize_straight(seq, out, lg, vm, tag=tag + "a0", verbose=verbose)
    out += seq
    per = G(4 * U, 0) - G(2 * U, 0)
    for it in range(1, 14):
        for k in range(per):
            a, b = G(2 * U, 0) + k, G(2 * U, 0) + it * per + k
            assert pl.m[a] == pl.m[b] and pl.g[a] == pl.g[b], (it, k, pl.m[a], pl.m[b], pl.g[a], pl.g[b])
    lst = []
    if opt.get("prof2"):
        lst = I(["s_waitcnt lgkmcnt(0)", "s_memrealtime s[98:99]", "s_memtime s[100:101]", f"s_add_u32 s66, s{S_CNT}, 1", "s_and_b32 s66, s66, 0xfe", "s_sub_u32 s66, 38, s66", "s_add_u32 s67, s66, 1",
                 "s_waitcnt lgkmcnt(0)", "v_mov_b32 v252, s98", f"v_cmp_eq_u32 vcc, s66, v{V_LANE}", "v_cndmask_b32 v251, v251, v252, vcc",
                 "v_mov_b32 v252, s100", f"v_cmp_eq_u32 vcc, s67, v{V_LANE}", "v_cndmask_b32 v251, v251, v252, vcc"])
    body = [Ins(".p2align 6"), Ins(f"L1_a{p}:")] + pl.ins(G(2 * U, 0), G(4 * U, 0)) + lst + \
           I([f"s_sub_u32 s{S_CNT}, s{S_CNT}, 1", f"s_cmp_lg_u32 s{S_CNT}, 0", f"s_cbranch_scc1 L1_a{p}"])
    body, lg, vm = finalize_loop(body, out, lg, vm, tag=tag + "aloop", verbose=verbose)
    out += body
    seq = I(stamp(8, opt)) + pl.ins(G(30 * U, 0), len(pl.m))
    E = Prog(); e = E.e
    e(f"L1_e{p}:")
    E.extend(stamp(9, opt))
    xs = 139264
    R = 220
    for c in TILES: e(f"v_accvgpr_read_b32 v{R+2*c}, a{L_(c)}")
    e(f"v_lshlrev_b32 v{V_T}, 4, v{V_LANE}")
    e(f"s_lshl_b32 s{S_T+3}, s{S_HP}, 1\ns_add_u32 s{S_T+3}, s{S_T+3}, s{S_HH}\ns_mul_i32 s{S_T+3}, s{S_T+3}, {4*13*1024}")
    e(f"v_add_f32 v235, v{R}, v{R+2}\nv_add_f32 v236, v{R+4}, v{R+6}\nv_add_f32 v237, v{R+8}, v{R+10}\nv_add_f32 v235, v235, v236")
    if p == 0: e(f"v_add_f32 v237, v237, v{R+12}")
    e("v_add_f32 v235, v235, v237")
    e(f"v_lshlrev_b32 v{V_T+1}, 2, v{V_LANE}\nv_add_u32 v{V_T+1}, {xs}, v{V_T+1}\ns_lshl_b32 s{S_T+2}, s{S_WAVE}, 8\nv_add_u32 v{V_T+2}, s{S_T+2}, v{V_T+1}")
    e(f"ds_write_b32 v{V_T+2}, v235")
    for c in TILES: e(f"v_rcp_f32 v{R+2*c}, v{R+2*c}")
    def norm_store(r, rc, j, mt):
        for h in range(0, 8, 2): e(f"v_pk_mul_f32 v[{r+h}:{r+h+1}], v[{r+h}:{r+h+1}], v[{rc}:{rc+1}] op_sel_hi:[1,0]")
        for h in range(4): e(f"v_cvt_pk_bf16_f32 v{r+h}, v{r+2*h}, v{r+2*h+1}")
        e(f"s_add_u32 s{S_T+4}, s{S_T+3}, {(j*13+mt)*1024}")
        e(f"buffer_store_dwordx4 {vr(r)}, v{V_T}, s[20:23], s{S_T+4} offen {opt.get('osf','')}")
    if p == 0:
        for j in range(3):
            for i in range(8): e(f"v_accvgpr_read_b32 v{192+8*j+i}, a{208+8*j+i}")
            norm_store(192 + 8 * j, R + 12, j, 12)
        for i in range(8): e(f"v_accvgpr_read_b32 v{236+i}, a{232+i}")
        norm_store(236, R + 12, 3, 12)
    for c in range(6):
        for j in range(4): norm_store(c * 32 + j * 8, R + 2 * c, j, mt_of(c))
    E.extend(stamp(10, opt))
    e("s_waitcnt vmcnt(0) lgkmcnt(0)\ns_barrier")
    for w in range(4): e(f"ds_read_b32 v{216+w}, v{V_T+1} offset:{w*256}")
    e(f"s_mov_b32 s{S_T+5}, 0x5f800000")
    e("v_add_f32 v216, v216, v217\nv_add_f32 v218, v218, v219\nv_add_f32 v216, v216, v218")
    e(f"v_cmp_ngt_f32 vcc, s{S_T+5}, v216")
    e(f"s_cmp_lg_u32 s{S_FLAG}, 0\ns_cbranch_scc1 L2_entry")
    e(f"s_cbranch_vccz L2_entry")
    seq += E.ins
    seq, lg, vm = finalize_straight(seq, out, lg, vm, tag=tag + "tail", verbose=verbose)
    out += seq
    F = Prog(); e = F.e
    e(f"L1_fb{p}:")
    e("s_waitcnt vmcnt(0) lgkmcnt(0)\ns_barrier")
    back = (2 - (2 + 31) % 5) * SLOT
    assert back < 0
    for r in (V_KA, V_VA0, V_VA1): e(f"v_subrev_u32 v{r}, {-back}, v{r}")
    for c in TILES: e(f"v_mov_b32 v{64+c}, 0xff800000")
    e(KVRST + f"\ns_mov_b32 s{S_CNT}, 32\ns_mov_b32 s{S_FLAG}, 1")
    fpre, _, _ = finalize_straight(F.ins, [], [], [], tag=tag + "fb0")
    F = Prog(); e = F.e
    e(f"L1_fl{p}:")
    F.extend(dmaKV(2 * SLOT, 0, track=False))
    e("s_waitcnt vmcnt(0)\ns_barrier")
    F.extend(readK())
    F.extend(qk_all(2))
    for c in sorted(TILES):
        r = c * 8
        e(f"v_max3_f32 v{r}, v{r}, v{r+1}, v{r+2}\nv_max3_f32 v{r+3}, v{r+3}, v{r+4}, v{r+5}\nv_max3_f32 v{r}, v{r}, v{r+6}, v{r+7}")
        e(f"v_max3_f32 v{64+c}, v{64+c}, v{r}, v{r+3}")
    e("s_barrier")
    e(f"s_sub_u32 s{S_CNT}, s{S_CNT}, 1\ns_cmp_lg_u32 s{S_CNT}, 0\ns_cbranch_scc1 L1_fl{p}")
    fl, _, _ = finalize_loop(F.ins, fpre, [], [], tag=tag + "fbl")
    F = Prog(); e = F.e
    e(KVRST)
    for t in range(LD + 1): F.extend(dmaKV(((2 + t) % 5) * SLOT, t, track=False))
    for c in TILES: e(f"v_mov_b32 v{c*8}, v{64+c}")
    e("s_waitcnt vmcnt(0)\ns_barrier")
    F.extend(readK())
    for dt in range(8): F.extend(readV(dt))
    e(f"s_branch L1_m{p}")
    fpost, _, _ = finalize_straight(F.ins, fl, [], [], tag=tag + "fb2")
    out += fpre + fl + fpost
    return out
```

```python
from asmgen import *
from gen_k2 import mf, vr, ar, WS_O_BYTES_PER_B
import struct, math

SLOT = 32768
NSLOT = 5
QSCALE = math.log2(math.e) / math.sqrt(128.0)
def f32bits(x): return struct.unpack("<I", struct.pack("<f", x))[0]

def O_(c, dt): return vr(c * 32 + dt * 4) if c < 6 else ar(208 + dt * 4)
def NEGM(c): return 192 + 4 * c
def S_(buf, kt): return 220 + buf * 8 + kt * 4
def P_(buf): return 236 + buf * 4
V_KA, V_VA0, V_VA1, V_LANE = 244, 245, 246, 247
V_KV = 248
V_PF = 250
V_T = 252
V_QW, V_QX = 208, 212
V_QRW, V_QRX, V_QRX2, V_BW, V_BX = 216, 217, 218, 219, 220
V_RW = 221
def Q_(c, ds): return c * 16 + ds * 4
def K_(kt, ds): return 112 + kt * 16 + ds * 4
def V_(dt): return 144 + dt * 4
def L_(c): return 176 + 4 * c
ONES = 204
def QA(buf, j2, u): return 112 + buf * 60 + (j2 * 2 + u) * 4
def QB(buf, c): return 112 + buf * 60 + 32 + c * 4
def QACC(c, j2, u, p):
    if c < 6: return (c * 8 + j2 * 2 + u) * 4
    return (48 + (j2 - 2 * p) * 2 + u) * 4
def RREG(t, i):
    k = t * 8 + i
    return 4 * k if k < 28 else 232 + 4 * (k - 28)
S_WAVE, S_HH, S_B, S_HP, S_CNT, S_DST = 24, 25, 26, 27, 28, 29
S_XO, S_WO, S_KO, S_KO2, S_DELTA = 30, 31, 32, 33, 34
S_M0W, S_M0X, S_M0KV, S_RD = 35, 36, 37, 39
S_T = 40
S_FLAG, S_XO2, S_M0X2, S_PREV, S_PFO = 48, 49, 50, 51, 55
S_KA, S_KX = 64, 65
XREG = 16640

def stamp(k, opt):
    if not opt.get("prof"): return []
    return ["s_waitcnt lgkmcnt(0)", "s_memrealtime s[98:99]", "s_memtime s[100:101]", "s_waitcnt lgkmcnt(0)",
            f"v_writelane_b32 v251, s98, {2*k}", f"v_writelane_b32 v251, s100, {2*k+1}"]
def stamp_store(n, opt, wsreg, base, wave):
    if not opt.get("prof"): return []
    return [f"s_add_u32 s60, s{wsreg}, {base}", f"s_addc_u32 s61, s{wsreg+1}, 0", "s_mov_b32 s62, 0x100000", "s_mov_b32 s63, 0x20000",
         f"s_lshl_b32 s55, s2, 2", f"s_add_u32 s55, s55, s{wave}", "s_lshl_b32 s55, s55, 8",
         "v_mbcnt_lo_u32_b32 v250, -1, 0", "v_mbcnt_hi_u32_b32 v250, -1, v250", "v_lshlrev_b32 v250, 2, v250",
         "buffer_store_dword v251, v250, s[60:63], s55 offen"]

def code_pf(lo, hi, idx_sgpr, va, lane128, tmp=S_T+6, fwd=False):
    return [f"s_getpc_b64 s[{tmp}:{tmp+1}]\ns_add_u32 s{tmp}, s{tmp}, {lo}-.\ns_addc_u32 s{tmp+1}, s{tmp+1}, 0" if fwd else
            f"s_getpc_b64 s[{tmp}:{tmp+1}]\ns_sub_u32 s{tmp}, s{tmp}, .-{lo}\ns_subb_u32 s{tmp+1}, s{tmp+1}, 0",
            f"v_lshl_add_u32 v{va}, s{idx_sgpr}, 13, v{lane128}",
            f"v_min_u32 v{va}, {hi}-{lo}-4, v{va}",
            f"v_mov_b32 v{va+1}, s{tmp+1}",
            f"v_add_co_u32 v{va}, vcc, s{tmp}, v{va}\ns_nop 1\nv_addc_co_u32 v{va+1}, vcc, 0, v{va+1}, vcc",
            f"global_load_dword v255, v[{va}:{va+1}], off"]
def cost(x): return 1 + x.count("\n")
def isvm(x): return x.startswith("buffer") or x.startswith("global")

class Place:
    def __init__(self): self.m = []; self.g = []; self.cap = []
    def add(self, m, cap=2, fixed=()):
        self.m.append(m); self.g.append(list(fixed)); self.cap.append(cap)
    def at(self, g, items):
        for it in items:
            self.g[g].append(it); self.cap[g] -= cost(it)
    def put(self, pos, items, hi=None, step=0):
        hi = len(self.m) - 1 if hi is None else hi
        for it in items:
            while pos < hi and self.cap[pos] < min(cost(it), 2): pos += 1
            self.at(pos, [it])
            last = pos
            pos = min(pos + step, hi)
        return last
    def spread(self, lo, hi, items, vmcap=2, group=1):
        nb = sum(1 for x in items if isvm(x))
        cand = [k for k in range(lo + 1, hi) if self.cap[k] >= vmcap]
        assert len(cand) >= nb, (len(cand), nb)
        ng = -(-nb // group)
        pick = []
        for gi in range(ng):
            st = (gi * len(cand)) // ng
            for q in range(min(group, nb - gi * group)): pick.append(cand[st + q])
        assert pick == sorted(set(pick)), pick
        bi = 0; prev = lo
        for idx, x in enumerate(items):
            if isvm(x):
                g = pick[bi]; bi += 1
                self.g[g].append(x); self.cap[g] -= vmcap; prev = g
            else:
                lim = pick[bi] if bi < nb else hi
                q = prev
                while q < lim - 1 and (self.cap[q] < cost(x) or q in pick[bi:]): q += 1
                if self.cap[q] < cost(x): q = prev if bi > 0 or True else q
                self.at(q, [x]); prev = q
        return prev
    def ins(self, lo=0, hi=None):
        out = []
        for k in range(lo, len(self.m) if hi is None else hi):
            if self.m[k]: out.append(Ins(self.m[k]))
            for x in self.g[k]:
                for line in x.split("\n"): out.append(Ins(line))
        return out

def ring_next(reg):
    return [f"s_add_u32 s{reg}, s{reg}, {SLOT}", f"s_cmp_eq_u32 s{reg}, {SLOT*NSLOT}\ns_cselect_b32 s{reg}, 0, s{reg}"]
def I(lst): return [Ins(l) for x in lst for l in x.split("\n")]

DESC = """.amdhsa_kernel {name}
  .amdhsa_next_free_vgpr 512
  .amdhsa_next_free_sgpr 102
  .amdhsa_accum_offset 256
  .amdhsa_group_segment_fixed_size 0
  .amdhsa_kernarg_size 64
  .amdhsa_user_sgpr_count 2
  .amdhsa_user_sgpr_kernarg_segment_ptr 1
  .amdhsa_system_sgpr_workgroup_id_x 1
.end_amdhsa_kernel
"""

def gen_k1(name="attn_kernel", opt=None):
    opt = opt or {}
    P = Prog(); e = P.e
    e(f".p2align 8\n.type {name},@function\n{name}:")
    e("s_cmp_ge_u32 s2, 256\ns_cbranch_scc1 L1_end")
    P.extend(stamp(0, opt))
    e("s_load_dwordx4 s[40:43], s[0:1], 0")
    e("s_load_dwordx4 s[44:47], s[0:1], 16")
    e("s_load_dwordx2 s[4:5], s[0:1], 56")
    e("s_load_dwordx2 s[6:7], s[0:1], 32")
    e("s_load_dwordx2 s[76:77], s[0:1], 48")
    L = V_LANE
    t0, t1, t2, t3 = V_T, V_T + 1, V_T + 2, V_T + 3
    e(f"v_lshrrev_b32 v{t0}, 6, v0")
    e(f"v_and_b32 v{L}, 63, v0")
    e(f"v_readfirstlane_b32 s{S_WAVE}, v{t0}")
    e("s_and_b32 s90, s2, 7\ns_lshr_b32 s91, s2, 3")
    if opt.get("map", 0) == 0:
        e(f"s_lshr_b32 s{S_B}, s90, 1\ns_lshl_b32 s{S_B}, s{S_B}, 2\ns_lshr_b32 s52, s91, 3\ns_add_u32 s{S_B}, s{S_B}, s52")
        e(f"s_and_b32 s{S_HP}, s90, 1\ns_lshl_b32 s{S_HP}, s{S_HP}, 3\ns_and_b32 s52, s91, 7\ns_add_u32 s{S_HP}, s{S_HP}, s52")
    elif opt["map"] == 1:
        e(f"s_lshl_b32 s{S_B}, s90, 1\ns_lshr_b32 s52, s91, 4\ns_add_u32 s{S_B}, s{S_B}, s52\ns_and_b32 s{S_HP}, s91, 15")
    elif opt["map"] == 2:
        e(f"s_lshr_b32 s{S_B}, s90, 2\ns_lshl_b32 s{S_B}, s{S_B}, 3\ns_lshr_b32 s52, s91, 2\ns_add_u32 s{S_B}, s{S_B}, s52")
        e(f"s_and_b32 s{S_HP}, s90, 3\ns_lshl_b32 s{S_HP}, s{S_HP}, 2\ns_and_b32 s52, s91, 3\ns_add_u32 s{S_HP}, s{S_HP}, s52")
    else:
        e(f"s_lshr_b32 s{S_B}, s91, 1\ns_lshl_b32 s{S_HP}, s90, 1\ns_and_b32 s52, s91, 1\ns_add_u32 s{S_HP}, s{S_HP}, s52")
    if opt.get("hpx"): e(f"s_xor_b32 s{S_HP}, s{S_HP}, {opt['hpx']}")
    e(f"s_lshr_b32 s{S_HH}, s{S_WAVE}, 1\ns_and_b32 s53, s{S_WAVE}, 1")
    e(f"v_lshrrev_b32 v{t0}, 2, v{L}\nv_and_b32 v{t0}, 3, v{t0}")
    e(f"v_lshrrev_b32 v{t1}, 4, v{L}")
    e(f"v_and_b32 v{t2}, 3, v{L}")
    e(f"v_lshlrev_b32 v{V_QW}, 13, v{t0}\nv_lshl_add_u32 v{V_QW}, v{t1}, 6, v{V_QW}\nv_lshl_add_u32 v{V_QW}, v{t2}, 4, v{V_QW}")
    e(f"s_lshl_b32 s52, s{S_WAVE}, 16\ns_add_u32 s52, s52, 4096\nv_add_u32 v{V_QW}, s52, v{V_QW}")
    for i in range(1, 4):
        d = (i & 1) * 4 * 8192 + (i >> 1) * 256 - i * 1024
        e(f"v_add_u32 v{V_QW+i}, {d}, v{V_QW}" if d >= 0 else f"v_subrev_u32 v{V_QW+i}, {-d}, v{V_QW}")
    e(f"v_lshrrev_b32 v{V_QX}, 2, v{L}\nv_and_b32 v{V_QX}, 7, v{V_QX}")
    e(f"v_lshrrev_b32 v{t3}, 2, v{V_QX}\nv_lshlrev_b32 v{t3}, 1, v{t3}\nv_xor_b32 v{t3}, v{t3}, v{t2}")
    e(f"v_lshlrev_b32 v{V_QX}, 11, v{V_QX}\nv_lshl_add_u32 v{V_QX}, v{t3}, 4, v{V_QX}")
    e(f"v_lshrrev_b32 v{t3}, 5, v{L}\nv_lshl_add_u32 v{V_QX}, v{t3}, 6, v{V_QX}")
    for i in range(1, 4): e(f"v_add_u32 v{V_QX+i}, {i*(16384-1024)}, v{V_QX}")
    e(f"s_lshl_b32 s52, s{S_WAVE}, 2\ns_lshr_b32 s52, 0xb480, s52\ns_and_b32 s52, s52, 15")
    e(f"s_lshl_b32 s{S_XO}, s52, 14\ns_lshl_b32 s{S_M0X}, s52, 10\ns_add_u32 s{S_M0X}, s{S_M0X}, {XREG}")
    e(f"s_mul_i32 s52, s{S_WAVE}, 3")
    e(f"s_lshl_b32 s{S_XO2}, s52, 14\ns_add_u32 s{S_XO2}, s{S_XO2}, {14*16384}")
    e(f"s_lshl_b32 s{S_M0X2}, s52, 10\ns_add_u32 s{S_M0X2}, s{S_M0X2}, {XREG}")
    e(f"s_mul_i32 s{S_M0W}, s53, 8200\ns_lshl_b32 s54, s{S_HH}, 12\ns_add_u32 s{S_M0W}, s{S_M0W}, s54")
    e(f"s_mov_b32 s{S_WO}, 0")
    if opt.get("qrole"):
        e(f"s_mul_i32 s52, s{S_HH}, 7\ns_lshl_b32 s{S_XO}, s52, 14\ns_lshl_b32 s{S_M0X}, s52, 10\ns_add_u32 s{S_M0X}, s{S_M0X}, {XREG}")
        e(f"s_mul_i32 s52, s{S_HH}, 6\ns_lshl_b32 s{S_XO2}, s52, 14\ns_add_u32 s{S_XO2}, s{S_XO2}, {14*16384}")
        e(f"s_lshl_b32 s{S_M0X2}, s52, 10\ns_add_u32 s{S_M0X2}, s{S_M0X2}, {XREG}")
    e(f"s_mul_i32 s52, s{S_B}, 425984\ns_lshl_b32 s54, s{S_HP}, 9")
    e("s_mov_b32 s10, 425984\ns_mov_b32 s11, 0x20000\ns_mov_b32 s15, 0x20000")
    e(f"s_sub_u32 s14, {8388608+4096}, s54")
    e("s_waitcnt lgkmcnt(0)")
    e("s_add_u32 s8, s40, s52\ns_addc_u32 s9, s41, 0")
    e("s_add_u32 s12, s46, s54\ns_addc_u32 s13, s47, 0\ns_sub_u32 s12, s12, 4096\ns_subb_u32 s13, s13, 0")
    e("s_cmp_eq_u32 s53, 1\ns_cbranch_scc1 L1_p1")
    head, _, _ = finalize_straight(P.ins, tag="k1head")
    out = list(head)
    for p in range(2):
        out += gen_path(p, head, opt)
    out.append(Ins("L1_end:")); out.append(Ins("s_endpgm"))
    Q = Prog(); Q.ins = out
    return Q.text(), DESC.format(name=name)

def setup2(p, opt):
    P = Prog(); e = P.e
    L = V_LANE
    t0, t1, t2, t3 = V_T, V_T + 1, V_T + 2, V_T + 3
    kv = (42, 43) if p == 0 else (44, 45)
    e(f"s_lshl_b32 s52, s{S_B}, 5\ns_lshl_b32 s54, s{S_HP}, 1\ns_add_u32 s52, s52, s54\ns_add_u32 s52, s52, s{S_HH}")
    if opt.get("kvrot", 1) == 1: e(f"s_lshr_b32 s54, s52, 5\ns_mul_i32 s54, s54, 11\ns_add_u32 s54, s54, s52\ns_and_b32 s54, s54, 31\ns_lshl_b32 s{S_KX}, s54, 13")
    else: e(f"s_mov_b32 s{S_KX}, 0")
    if opt.get("kvsame"): e(f"s_mov_b32 s52, s{S_HH}")
    e("s_lshl_b32 s54, s52, 18")
    e("s_add_u32 s72, s42, s54\ns_addc_u32 s73, s43, 0\ns_mov_b32 s74, 262144\ns_mov_b32 s75, 0x20000")
    e(f"s_add_u32 s16, s{kv[0]}, s54\ns_addc_u32 s17, s{kv[1]}, 0\ns_mov_b32 s18, 262144\ns_mov_b32 s19, 0x20000")
    e(f"s_mul_i32 s52, s{S_B}, {WS_O_BYTES_PER_B}")
    e(f"s_add_u32 s20, s4, s52\ns_addc_u32 s21, s5, 0\ns_mov_b32 s22, {WS_O_BYTES_PER_B}\ns_mov_b32 s23, 0x20000")
    e("s_mov_b32 s56, s6\ns_mov_b32 s57, s7\ns_mov_b32 s58, 8388608\ns_mov_b32 s59, 0x20000")
    e(f"s_lshl_b32 s{S_M0KV}, s{S_WAVE}, 13")
    e(f"s_mov_b32 s78, 256\ns_mov_b32 s79, 0x20000\ns_lshl_b32 s80, s{S_B}, 4")
    e(f"v_and_b32 v{V_QRW}, 1, v{t1}\nv_mul_u32_u24 v{V_QRW}, 8200, v{V_QRW}")
    e(f"v_lshrrev_b32 v{V_QRX}, 1, v{t1}\nv_lshl_add_u32 v{V_QRW}, v{V_QRX}, 12, v{V_QRW}")
    e(f"v_and_b32 v{V_QRX}, 15, v{L}\nv_lshl_add_u32 v{V_QRW}, v{V_QRX}, 4, v{V_QRW}")
    e(f"s_lshl_b32 s54, s{S_HH}, 11\nv_add_u32 v{V_QRW}, s54, v{V_QRW}")
    e(f"v_and_b32 v{t3}, 1, v{t0}\nv_lshlrev_b32 v{t3}, 1, v{t3}\nv_xor_b32 v{t3}, v{t3}, v{t1}\nv_lshlrev_b32 v{t3}, 4, v{t3}")
    e(f"v_and_b32 v{V_QRX2}, 7, v{L}\nv_lshl_add_u32 v{V_QRX2}, v{V_QRX2}, 6, v{t3}")
    e(f"v_lshrrev_b32 v{V_QRX}, 3, v{V_QRX}\nv_lshl_add_u32 v{V_QRX}, v{V_QRX}, 10, v{V_QRX2}")
    e(f"v_add_u32 v{V_QRX}, {XREG}, v{V_QRX}\nv_add_u32 v{V_QRX2}, {SLOT}, v{V_QRX}")
    e(f"v_mov_b32 v{V_BW}, v{V_QRW}\nv_mov_b32 v{V_BX}, v{V_QRX}")
    e(f"v_lshl_add_u32 v{V_KA}, v{t0}, 10, v{t3}\nv_lshl_add_u32 v{V_KA}, v{t2}, 6, v{V_KA}")
    e(f"s_lshl_b32 s54, s{S_HH}, 14\ns_add_u32 s54, s54, {2*SLOT}\nv_add_u32 v{V_KA}, s54, v{V_KA}")
    e(f"v_lshlrev_b32 v{V_VA0}, 10, v{t1}\nv_lshl_add_u32 v{V_VA0}, v{t0}, 6, v{V_VA0}\nv_lshl_add_u32 v{V_VA0}, v{t2}, 3, v{V_VA0}")
    e(f"s_add_u32 s54, s54, 8192\nv_add_u32 v{V_VA0}, s54, v{V_VA0}")
    e(f"v_and_b32 v{t3}, 1, v{t1}\nv_lshl_add_u32 v{V_VA0}, v{t3}, 5, v{V_VA0}\nv_xor_b32 v{V_VA1}, 32, v{V_VA0}")
    e(f"v_lshlrev_b32 v{V_KV}, 8, v{t0}\nv_lshl_add_u32 v{V_KV}, v{t1}, 6, v{V_KV}\nv_lshl_add_u32 v{V_KV}, v{t2}, 4, v{V_KV}")
    e(f"v_xor_b32 v{V_KV+1}, 32, v{V_KV}\nv_lshlrev_b32 v{V_PF}, 7, v{L}")
    e(f"v_lshlrev_b32 v{t3}, 4, v{L}\nv_add_u32 v{t3}, s{S_M0KV}, v{t3}")
    for t in range(4): e(f"v_add_u32 v{V_RW+t}, {((2+t)%5)*SLOT}, v{t3}")
    e(f"s_mov_b32 s{S_DST}, 0\ns_mov_b32 s{S_RD}, 0\ns_mov_b32 s{S_KA}, 0\ns_mov_b32 s{S_KO}, s{S_KX}\ns_or_b32 s{S_KO2}, s{S_KX}, 4096\ns_mov_b32 s{S_FLAG}, 0\ns_mov_b32 s{S_PREV}, {4*SLOT}")
    return [i.text for i in P.ins]

def gen_path(p, head, opt):
    verbose = opt.get("verbose", False)
    KVF = opt.get("kvflags", "nt")
    NR = opt.get("nr", 4)
    nxa = 4 if p == 0 else 3
    tag = f"p{p}"
    out = []
    vmq = []
    def vm_wait(tags):
        last = max((k for k, t in enumerate(vmq) if t in tags), default=None)
        if last is None: return 63
        return min(63, len(vmq) - 1 - last)
    role = opt.get("qrole")
    def dmaW(s, slot):
        if role and p == 1: return []
        L = [f"s_add_u32 m0, s{S_M0W}, {slot}"]
        for i in range(4): L.append(f"buffer_load_dwordx4 v{V_QW+i}, s[12:15], s{S_WO} offen offset:{i*1024} {opt.get('wqf','')} lds")
        vmq.extend([("W", s)] * 4)
        if role:
            L += [f"s_add_u32 m0, m0, 8200", f"s_add_u32 s70, s{S_WO}, 65536"]
            for i in range(4): L.append(f"buffer_load_dwordx4 v{V_QW+i}, s[12:15], s70 offen offset:{i*1024} {opt.get('wqf','')} lds")
            vmq.extend([("W", s)] * 4)
        L.append(f"s_add_u32 s{S_WO}, s{S_WO}, 262144")
        return L
    def dmaX(which, sig, slot):
        if role == 1 and p == 1: return []
        if role == 2 and p == 0: return []
        n = nxa if which == "A" else 3
        if role: n = 7 if which == "A" else 6
        m0r, so = (S_M0X, S_XO) if which == "A" else (S_M0X2, S_XO2)
        L = [f"s_add_u32 m0, s{m0r}, {slot}"]
        for i in range(min(n, 4)): L.append(f"buffer_load_dwordx4 v{V_QX+i}, s[8:11], s{so} offen offset:{i*1024} {opt.get('xf','')} lds")
        if n > 4:
            L += [f"s_add_u32 m0, m0, 4096", f"s_add_u32 s70, s{so}, 65536"]
            for i in range(n - 4): L.append(f"buffer_load_dwordx4 v{V_QX+i}, s[8:11], s70 offen offset:{i*1024} {opt.get('xf','')} lds")
        L.append(f"s_add_u32 s{so}, s{so}, 128")
        vmq.extend([("X" + which, sig)] * n)
        return L
    KVADV = [f"s_add_u32 s{S_KA}, s{S_KA}, 8192", f"s_xor_b32 s{S_KO}, s{S_KA}, s{S_KX}", f"s_or_b32 s{S_KO2}, s{S_KO}, 4096"]
    KVRST = f"s_mov_b32 s{S_KA}, 0\ns_mov_b32 s{S_KO}, s{S_KX}\ns_or_b32 s{S_KO2}, s{S_KX}, 4096"
    def dmaKV(base, t, track=True):
        L = [f"s_add_u32 m0, s{S_M0KV}, {base}"]
        for i in range(4): L.append(f"buffer_load_dwordx4 v{V_KV+(i&1)}, s[16:19], s{S_KO} offen offset:{i*1024} {KVF} lds")
        L.append("s_add_u32 m0, m0, 4096")
        for i in range(4): L.append(f"buffer_load_dwordx4 v{V_KV+(i&1)}, s[16:19], s{S_KO2} offen offset:{i*1024} {KVF} lds")
        L += KVADV
        if track: vmq.extend([("KV", t)] * 8)
        return L
    def regKV(k):
        t, i = divmod(k, 8)
        L = [f"buffer_load_dwordx4 {ar(RREG(t,i))}, v{V_KV+(i&1)}, s[16:19], s{S_KO if i < 4 else S_KO2} offen offset:{(i&3)*1024} {KVF}"]
        if i == 7: L += KVADV
        vmq.append(("R", t))
        return L
    def wrKV(t): return [f"ds_write_b128 v{V_RW+t}, {ar(RREG(t,i))} offset:{i*1024}" for i in range(8)]
    def mt_of(c): return 6 * p + c if c < 6 else 12
    def readQ(s):
        buf = s % 2; kh = s % 2
        order = [f"ds_read_b64_tr_b16 {ar(QA(buf,j2,u)+2*uk,2)}, v{V_QRW} offset:{uk*1024+j2*256+u*8}"
                 for j2 in range(4) for u in range(2) for uk in range(2)]
        xs = []
        for c in range(7):
            mt = mt_of(c)
            if mt < 7: xs.append(f"ds_read_b128 {ar(QB(buf,c))}, v{V_QRX} offset:{mt*2048+kh*512}")
            else: xs.append(f"ds_read_b128 {ar(QB(buf,c))}, v{V_QRX2} offset:{(mt-7)*2048+kh*512}")
        return order[:2] + xs + order[2:]
    def adv_rd(s):
        L = ring_next(S_RD) + [f"v_add_u32 v{V_QRW}, s{S_RD}, v{V_BW}"]
        if (s + 1) % 2 == 0:
            L += [f"v_add_u32 v{V_QRX}, s{S_RD}, v{V_BX}", f"s_add_u32 s{S_T}, s{S_RD}, {SLOT}",
                  f"s_cmp_eq_u32 s{S_T}, {SLOT*NSLOT}\ns_cselect_b32 s{S_T}, 0, s{S_T}", f"v_add_u32 v{V_QRX2}, s{S_T}, v{V_BX}"]
        return L
    def need(s): return {("W", s), ("XA", s // 2), ("XB", s // 2)}
    P = Prog(); e = P.e
    e(f"L1_p{p}:")
    P.extend(dmaW(0, 0)); P.extend(dmaX("A", 0, 0)); P.extend(dmaX("B", 0, SLOT)); P.extend(dmaW(1, SLOT))
    P.extend(setup2(p, opt))
    if opt.get("qpf"):
        e(f"s_mov_b32 s69, {opt.get('qpf0',5)*8192}\ns_xor_b32 s68, s69, s{S_KX}\nv_lshlrev_b32 v228, 6, v{V_LANE}")
    if opt.get("early", 1) >= 1:
        P.extend(dmaW(2, 2 * SLOT)); P.extend(dmaX("A", 1, 2 * SLOT)); P.extend(dmaX("B", 1, 3 * SLOT))
    w0 = vm_wait(need(0))
    if opt.get("cpf", True):
        e(f"s_lshr_b32 s{S_PFO}, s2, 3\ns_lshl_b32 s{S_PFO}, s{S_PFO}, 2\ns_add_u32 s{S_PFO}, s{S_PFO}, s{S_WAVE}")
        if opt.get("thin", True):
            pf = code_pf(opt.get("kname", "attn_kernel"), "L_code_end", S_PFO, 226, V_KV)
            pf[1] = f"v_lshl_add_u32 v226, s{S_PFO}, 10, v{V_KV}"
            P.extend(pf)
        else:
            e(f"s_and_b32 s{S_PFO}, s{S_PFO}, 15")
            P.extend(code_pf(opt.get("kname", "attn_kernel"), "L_code_end", S_PFO, 226, V_PF))
        vmq.append(("T", "code")); w0 = min(63, w0 + 1)
    e(f"s_waitcnt vmcnt({w0})\ns_barrier")
    P.extend(stamp(1, opt))
    P.extend(readQ(0)); P.extend(adv_rd(0))
    if opt.get("early", 1) < 1:
        P.extend(dmaW(2, 2 * SLOT)); P.extend(dmaX("A", 1, 2 * SLOT)); P.extend(dmaX("B", 1, 3 * SLOT))
    seq, lg, vm = finalize_straight(P.ins, head, tag=tag + "pro", verbose=verbose)
    out += seq
    rs0, rs1 = opt.get("rstages", (10, 26))
    rsched = {}
    for k in range(NR * 8): rsched.setdefault(rs0 + (k * (rs1 - rs0)) // (NR * 8), []).append(k)
    LD = opt.get("lead", 4)
    kv_at = {0: (27, "cur"), 1: (29, "prev"), 2: (29, "cur"), 3: (31, "prev")}
    kv_at = {t: v for t, v in kv_at.items() if t <= LD}
    if opt.get("kvlate") == 1 and LD == 2: kv_at = {0: (27, "cur"), 1: (29, "prev"), 2: (30, "prev")}
    if opt.get("kvst"):
        kv_at = {t: (st, ((2 + t) % 5) * SLOT) for t, st in enumerate(opt["kvst"]) if st < 32}
        for t, (st, _) in kv_at.items(): assert st >= (27, 29, 29, 31)[t]
    def qstage(s):
        buf = s % 2
        pl = Place()
        wtags = need(s + 1) if s < 31 else set()
        wr = []
        for t, (st, which) in kv_at.items():
            if st == s and t < NR: wtags = wtags | {("R", t)}; wr += wrKV(t)
        pl.add(None, 0, [f"s_waitcnt vmcnt({vm_wait(wtags)}) lgkmcnt(0)", "s_barrier"])
        for j2 in range(4):
            for u in range(2):
                for c in range(7):
                    if c == 6 and (j2 >> 1) != p: continue
                    d = vr(QACC(c, j2, u, p))
                    pl.add(mf(d, ar(QA(buf, j2, u)), ar(QB(buf, c)), "0" if s == 0 else d), cap=2)
        dm = []
        cur, prev = f"s{S_DST}", f"s{S_PREV}"
        if s == 0: dm += dmaW(3, 3 * SLOT) + dmaW(4, 4 * SLOT)
        sig = (s + 4) // 2
        if sig <= 15: dm += dmaX("A" if s % 2 == 0 else "B", sig, prev)
        if s + 5 <= 31: dm += dmaW(s + 5, cur)
        for k in rsched.get(s, []): dm += regKV(k)
        for t, (st, which) in kv_at.items():
            if st == s and t >= NR: dm += dmaKV(cur if which == "cur" else prev if which == "prev" else which, t)
        q0, q1 = opt.get("qpfr", (2, 24))
        if opt.get("qpf") and role and p == 1 and q0 <= s < q1:
            n = opt["qpf"]
            for q in range(n):
                isv = (s % 2) if n == 1 else (q % 2)
                srd = "s[16:19]" if isv else "s[72:75]"
                dm += [f"buffer_load_dword v255, v228, {srd}, s68 offen {opt.get('qpff','')}"]; vmq.append(("T", "kv"))
                if isv: dm += [f"s_add_u32 s69, s69, 4096", f"s_xor_b32 s68, s69, s{S_KX}"]
        if s == opt.get("wost"):
            dm += [f"s_lshl_b32 s38, s2, 2\ns_add_u32 s38, s38, s{S_WAVE}", "s_lshl_b32 s38, s38, 13", f"buffer_load_dword v255, v{V_PF}, s[56:59], s38 offen"]; vmq.append(("T", "wo"))
        if s in opt.get("cpf2", []):
            dm += ["global_load_dword v255, v[226:227], off"]; vmq.append(("T", "code"))
        dm += [f"s_mov_b32 s{S_PREV}, s{S_DST}"] + ring_next(S_DST)
        if any(isvm(x) for x in dm): pl.spread(1, 50, dm, vmcap=1)
        else: pl.put(40, dm)
        pos = 1
        if s < 31:
            pos = pl.put(1, readQ(s + 1), step=1)
            pos = pl.put(pos + 1, adv_rd(s + 1))
        if wr: pl.put(pos + 1, wr, step=1)
        res = pl.ins()
        abl = opt.get("abl", "")
        if 4 <= s < 26:
            if "nodma" in abl: res = [x for x in res if x.kind != "dma"]
            if "noread" in abl: res = [x for x in res if x.kind != "dsr"]
            if "nobar" in abl: res = [x for x in res if x.op != "s_barrier"]
            if "chain" in abl:
                k = 0; r2 = []
                ch = int(abl.split("chain")[1][0])
                for x in res:
                    if x.kind == "mfma":
                        ops = x.text.split(None, 1)[1].split(", ")
                        if k % ch == 0: dkeep = ops[0]
                        x = Ins(mf(dkeep, ops[1], ops[2], dkeep)); k += 1
                    r2.append(x)
                res = r2
        return res
    stages = [qstage(s) for s in range(32)]
    txt = lambda L: [i.text for i in L]
    LO = opt.get('lo', 4); HI = LO
    while HI + 2 <= 32 and txt(stages[HI]) == txt(stages[LO]) and txt(stages[HI + 1]) == txt(stages[LO + 1]): HI += 2
    if opt.get("qunroll"): HI = LO + 2
    if p == 0: print("qproj loop stages", LO, HI)
    seq = []
    for s in range(LO): seq += stages[s]
    seq += I(stamp(2, opt)) + [Ins(f"s_mov_b32 s{S_CNT}, {(HI-LO)//2}")]
    stag = opt.get("stag", 0)
    if stag:
        if opt.get("emu"):
            seq += I([f"s_bitcmp1_b32 s2, 3", f"s_cselect_b32 s{S_CNT}, {(HI-LO)//2+opt['emu'][1]}, {(HI-LO)//2+opt['emu'][0]}",
                      "s_cselect_b32 s81, 4, 0", "s_add_u32 s82, s80, 4", "s_add_u32 s80, s80, s81"])
        elif opt.get("stagall"):
            seq += I([f"s_mov_b32 s{S_CNT}, {(HI-LO)//2+stag}"])
        elif opt.get("stagl", 1) == 1:
            seq += I([f"s_bitcmp1_b32 s2, {opt.get('stagbit',3)}", f"s_cselect_b32 s{S_CNT}, {(HI-LO)//2+stag}, s{S_CNT}"])
        else:
            seq += I([f"s_lshr_b32 s66, s2, 3", f"s_and_b32 s66, s66, {opt['stagl']}", f"s_mul_i32 s66, s66, {stag}", f"s_add_u32 s{S_CNT}, s{S_CNT}, s66"])
        stages[LO + 1] = stages[LO + 1] + I([f"s_and_b32 s{S_WO}, s{S_WO}, 0x3fffff", f"s_and_b32 s{S_XO}, s{S_XO}, 0xfffffbff", f"s_and_b32 s{S_XO2}, s{S_XO2}, 0xfffffbff"])
    seq, lg, vm = finalize_straight(seq, out, lg, vm, tag=tag + "q01", verbose=verbose)
    out += seq
    body = [Ins(".p2align 6"), Ins(f"L1_q{p}:")] + stages[LO] + stages[LO + 1] + \
           I([f"s_sub_u32 s{S_CNT}, s{S_CNT}, 1", f"s_cmp_lg_u32 s{S_CNT}, 0", f"s_cbranch_scc1 L1_q{p}"])
    body, lg, vm = finalize_loop(body, out, lg, vm, tag=tag + "qloop", verbose=verbose)
    out += body
    seq = []
    for s in range(HI, 32):
        if s == 26: seq += I(stamp(3, opt))
        seq += stages[s]
    TILES = [6, 0, 1, 2, 3, 4, 5] if p == 0 else [0, 1, 2, 3, 4, 5]
    U = len(TILES)
    E = Prog(); e = E.e
    E.extend(stamp(4, opt))
    e(f"s_mov_b32 s{S_T}, {f32bits(QSCALE):#x}\ns_mov_b32 s{S_T+1}, {f32bits(QSCALE):#x}")
    if p == 0: e(f"v_subrev_u32 v{V_T}, {SLOT}, v{V_RW}")
    else: e(f"v_subrev_u32 v{V_T}, {SLOT+8192}, v{V_RW}")
    for c in [6, 0, 1, 2, 3, 4, 5]:
        for j2 in range(4):
            if c == 6 and (j2 >> 1) != p: continue
            r = QACC(c, j2, 0, p)
            for h in range(0, 8, 2): e(f"v_pk_mul_f32 v[{r+h}:{r+h+1}], v[{r+h}:{r+h+1}], s[{S_T}:{S_T+1}]")
            for h in range(4): e(f"v_cvt_pk_bf16_f32 v{r+h}, v{r+2*h}, v{r+2*h+1}")
            if c == 6 and p == 1: e(f"ds_write_b128 v{V_T}, {vr(r)} offset:{(j2&1)*1024}")
            else:
                for h in range(4): e(f"v_accvgpr_write_b32 a{Q_(c,j2)+h}, v{r+h}")
    e(f"v_mov_b32 v{V_T+2}, 0x3f803f80")
    for h in range(4): e(f"v_accvgpr_write_b32 a{ONES+h}, v{V_T+2}")
    e(f"s_waitcnt vmcnt({vm_wait({('KV',0)})}) lgkmcnt(0)\ns_barrier")
    E.extend(stamp(5, opt))
    def readK(kts=(0, 1)):
        return [f"ds_read_b128 {ar(K_(kt,ds))}, v{V_KA} offset:{kt*4096+ds*256}" for kt in kts for ds in range(4)]
    def readV(dt):
        return [f"ds_read_b64_tr_b16 {ar(V_(dt)+2*kt,2)}, v{V_VA0+(dt&1)} offset:{kt*4096+(dt>>1)*256}" for kt in range(2)]
    if p == 0:
        for i in range(2): e(f"ds_read_b128 {ar(Q_(6, 2+i))}, v{V_T} offset:{i*1024}")
    E.extend(readK())
    if p == 0: e("s_waitcnt lgkmcnt(8)")
    MK = opt.get("mkeys", 2)
    def qk_all(nk):
        L = []
        for c in sorted(TILES):
            for kt in range(nk):
                for ds in range(4):
                    d = vr(c * 8 + kt * 4)
                    L.append(mf(d, ar(K_(kt, ds)), ar(Q_(c, ds)), "0" if ds == 0 else d))
        return L
    pl = Place()
    for m in qk_all(MK): pl.add(m, 2)
    ex = []
    for t in range(LD + 1):
        if t not in kv_at: ex += dmaKV(((2 + t) % 5) * SLOT, t)
    ex += [f"s_lshl_b32 s{S_PFO}, s2, 2\ns_add_u32 s{S_PFO}, s{S_PFO}, s{S_WAVE}", f"s_lshl_b32 s{S_PFO}, s{S_PFO}, 13"]
    if any(isvm(x) for x in ex): pl.spread(0, len(pl.m) - 2, ex, vmcap=1)
    else: pl.put(18, ex)
    pl.put(1, [x for dt in range(8) for x in readV(dt)], step=1)
    E.ins += pl.ins()
    for c in sorted(TILES):
        r = c * 8
        if MK == 2: e(f"v_max3_f32 v{r}, v{r}, v{r+1}, v{r+2}\nv_max3_f32 v{r+3}, v{r+3}, v{r+4}, v{r+5}\nv_max3_f32 v{r}, v{r}, v{r+6}, v{r+7}\nv_max_f32 v{r}, v{r}, v{r+3}")
        else: e(f"v_max3_f32 v{r}, v{r}, v{r+1}, v{r+2}\nv_max_f32 v{r}, v{r}, v{r+3}")
    seq += E.ins
    seq, lg, vm = finalize_straight(seq, out, lg, vm, tag=tag + "qtail", verbose=verbose)
    out += seq
    E = Prog(); e = E.e
    e(f"L1_m{p}:")
    e("s_waitcnt lgkmcnt(0)")
    for c in TILES: e(f"v_mov_b32 v{c*8+1}, v{c*8}")
    for c in TILES: e(f"v_permlane32_swap_b32 v{c*8}, v{c*8+1}")
    for c in TILES: e(f"v_max_f32 v{c*8}, v{c*8}, v{c*8+1}\nv_mov_b32 v{c*8+1}, v{c*8}")
    for c in TILES: e(f"v_permlane16_swap_b32 v{c*8}, v{c*8+1}")
    for c in TILES: e(f"v_max_f32 v{c*8}, v{c*8}, v{c*8+1}")
    for c in TILES:
        for h in range(4): e(f"v_sub_f32 v{NEGM(c)+h}, 0, v{c*8}")
    e(f"s_mov_b32 s{S_DST}, {((3+LD)%5)*SLOT}\ns_mov_b32 s{S_RD}, {2*SLOT}")
    E.extend(stamp(6, opt))
    pre_a = E.ins

    T0 = opt.get("t0", 30)
    groups = opt.get("groups", [[[6, 0, 1, 2, 3, 4, 5]], [[0, 1, 2, 3, 4, 5]]])[p]
    visits = [(t, TILES) for t in range(T0)] + [(t, g) for g in groups for t in range(T0, 32)]
    units = [(t, c) for t, g in visits for c in g]
    vend = []
    for t, g in visits: vend.append((vend[-1] if vend else -1) + len(g))
    N = len(units)
    pl = Place()
    slot_start = []
    for n in range(N + 2):
        slot_start.append(len(pl.m))
        qk = units[n] if n < N else None
        sm = units[n - 1] if 1 <= n <= N else None
        pv = units[n - 2] if n >= 2 else None
        def Qm(kt, ds):
            if not qk: return None
            d = vr(S_(n % 2, kt))
            return mf(d, ar(K_(kt, ds)), ar(Q_(qk[1], ds)), vr(NEGM(qk[1])) if ds == 0 else d)
        fst = pv is not None and pv[0] == 0
        def Pm(dt):
            if not pv: return None
            d = O_(pv[1], dt)
            return mf(d, ar(V_(dt)), vr(P_(n % 2)), "0" if fst else d)
        def Lm():
            if not pv: return None
            d = ar(L_(pv[1]))
            return mf(d, ar(ONES), vr(P_(n % 2)), "0" if fst else d)
        sb = (n - 1) % 2
        def Ex(i): return [f"v_exp_f32 v{S_(sb,0)+i}, v{S_(sb,0)+i}"] if sm else []
        def Cv(i): return [f"v_cvt_pk_bf16_f32 v{P_(sb)+i}, v{S_(sb,0)+2*i}, v{S_(sb,0)+2*i+1}"] if sm else []
        pl.add(None, 0)
        for ds in range(4): pl.add(Qm(0, ds), 0, Ex(ds))
        pl.add(Pm(0), 1, Cv(0)); pl.add(Pm(1), 1, Cv(1))
        pl.add(Pm(2), 2); pl.add(Pm(3), 2)
        pl.add(None, 0)
        for ds in range(4): pl.add(Qm(1, ds), 0, Ex(4 + ds))
        pl.add(Pm(4), 1, Cv(2)); pl.add(Pm(5), 1, Cv(3))
        pl.add(Pm(6), 2); pl.add(Pm(7), 2)
        pl.add(Lm(), 2)
    slot_start.append(len(pl.m))
    G = lambda n, k: slot_start[n] + k
    at = lambda n, k, items: pl.at(G(n, k), items)
    kx, vx = opt.get("kx", 0), opt.get("vx", 0)
    slot_of = lambda t: ((2 + t) % 5) * SLOT
    for vi in range(len(visits) - 1):
        n = vend[vi]
        tail = vi + 1 > T0
        k0 = readK((0,)); k1 = readK((1,))
        W = (lambda nn, kk, x: None) if tail else (lambda nn, kk, x: at(nn, kk, [x]))
        if kx == 0 or tail:
            at(n, 7, k0[:2]); at(n, 8, k0[2:]); at(n, 16, k1[:2]); at(n, 17, k1[2:])
            W(n, 18, "s_waitcnt lgkmcnt(4)")
            W(n + 1, 8, "s_waitcnt lgkmcnt(0)")
        else:
            at(n + 1, 0, k0 + k1 + [f"s_waitcnt lgkmcnt({4 if kx == 1 else 0})"])
            if kx == 1: at(n + 1, 8, ["s_waitcnt lgkmcnt(0)"])
        m = n + 2
        v = [readV(dt) for dt in range(8)]
        if vx == 0 or tail:
            at(m, 5, v[0][:1]); at(m, 6, v[0][1:]); at(m, 7, v[1]); at(m, 8, v[2])
            at(m, 14, v[3][:1]); at(m, 15, v[3][1:]); at(m, 16, v[4]); at(m, 17, v[5]); at(m, 18, v[6])
            W(m + 1, 4, "s_waitcnt lgkmcnt(6)")
            at(m + 1, 5, v[7][:1]); at(m + 1, 6, v[7][1:])
            W(m + 1, 8, "s_waitcnt lgkmcnt(2)")
            W(m + 1, 16, "s_waitcnt lgkmcnt(0)")
        else:
            at(m + 1, 0 if vx == 1 else 4, [x for f in v for x in f])
            at(m + 1, 4, [f"s_waitcnt lgkmcnt({8 if vx < 3 else 0})"])
            if vx < 3: at(m + 1, 8, ["s_waitcnt lgkmcnt(0)"])
        if not tail:
            T4 = S_T + 4
            at(n - 1, 5, [f"s_add_u32 s{T4}, s{S_RD}, {SLOT}"])
            at(n - 1, 7, [f"s_cmp_eq_u32 s{T4}, {SLOT*NSLOT}\ns_cselect_b32 s{T4}, 0, s{T4}"])
            at(n - 1, 14, [f"s_sub_u32 s{S_DELTA}, s{T4}, s{S_RD}"]); at(n - 1, 15, [f"s_mov_b32 s{S_RD}, s{T4}"])
            adv = lambda r: f"v_add_u32 v{r}, s{S_DELTA}, v{r}"
        else:
            d = slot_of(visits[vi + 1][0]) - slot_of(visits[vi][0])
            adv = lambda r: f"v_add_u32 v{r}, {d}, v{r}" if d >= 0 else f"v_subrev_u32 v{r}, {-d}, v{r}"
        pl.g[G(n, 5)].insert(len(pl.g[G(n, 5)]), adv(V_KA)); pl.cap[G(n, 5)] -= 1
        at(n + 1, 14, [adv(V_VA0)]); at(n + 1, 15, [adv(V_VA1)])
    BP = opt.get("bp", 3)
    NIT = (T0 - 2) // 2
    assert (T0 - 2) % 2 == 0
    for j in range(31):
        if j < T0:
            g = G(U * j + BP, 0); nxt = G(U * (j + 1) + BP, 0) if j + 1 < T0 else G(vend[j + 1], 0)
        else:
            g = G(vend[j], 0)
        if j >= T0 or j == 30:
            w = 0 if j == 30 else min(8 * (LD - 1), vm_wait({('KV', j + 1)}))
            pl.g[g] += [f"s_waitcnt vmcnt({w})", "s_barrier"]
            if j == 30:
                pf = [f"buffer_load_dword v255, v{V_PF}, s[56:59], s{S_PFO} offen"]
                if opt.get("wost") is None: pl.put(g + 1, pf)
            continue
        assert j + LD + 1 >= 31 or j + 1 < T0 or True
        pl.g[g] += [f"s_waitcnt vmcnt({min(8 * (LD - 1), vm_wait({('KV', j + 1)}))})", "s_barrier"]
        dm = dmaKV(f"s{S_DST}", j + LD + 1) + ring_next(S_DST)
        pl.spread(g, min(nxt, G(U * (j + 1), 0)), dm, vmcap=opt.get("vmcap", 2), group=opt.get("dmagroup", 8))
    assert T0 - 1 + LD + 1 >= 31, "all steps must have been issued before the tail"
    assert T0 - 1 + LD + 1 - 5 < T0, "dummy loads must not overwrite live tail slots"
    R_ = lambda c: NEGM(c)
    V_SA, V_SUM = 253, 254
    def norm_store(r, rc, j, mt, packed):
        L = []
        if packed:
            for h in range(0, 8, 2): L.append(f"v_pk_mul_f32 v[{r+h}:{r+h+1}], v[{r+h}:{r+h+1}], v[{rc}:{rc+1}] op_sel_hi:[1,0]")
        else:
            for h in range(8): L.append(f"v_mul_f32 v{r+h}, v{r+h}, v{rc}")
        for h in range(4): L.append(f"v_cvt_pk_bf16_f32 v{r+h}, v{r+2*h}, v{r+2*h+1}")
        L.append(f"s_add_u32 s{S_T+5}, s{S_T+3}, {(j*13+mt)*1024}")
        L.append(f"buffer_store_dwordx4 {vr(r)}, v{V_SA}, s[20:23], s{S_T+5} offen {opt.get('osf','')}")
        return L
    done = []
    def finish(c, packed):
        L = [f"v_accvgpr_read_b32 v{R_(c)+2}, a{L_(c)}", f"v_rcp_f32 v{R_(c)}, v{R_(c)+2}",
             f"v_add_f32 v{V_SUM}, v{V_SUM}, v{R_(c)+2}" if done else f"v_mov_b32 v{V_SUM}, v{R_(c)+2}"]
        for j in range(4):
            if c < 6: L += norm_store(c * 32 + j * 8, R_(c), j, mt_of(c), packed)
            else:
                stg = done[0] * 32 + j * 8
                L += [f"v_accvgpr_read_b32 v{stg+i}, a{208+8*j+i}" for i in range(8)] + norm_store(stg, R_(c), j, 12, packed)
        done.append(c)
        return L
    at(U * T0, 7, [f"v_lshlrev_b32 v{V_SA}, 4, v{V_LANE}", f"s_lshl_b32 s{S_T+3}, s{S_HP}, 1"])
    at(U * T0, 8, [f"s_add_u32 s{S_T+3}, s{S_T+3}, s{S_HH}", f"s_mul_i32 s{S_T+3}, s{S_T+3}, {4*13*1024}"])
    late = []
    pos = 0
    dens = opt.get("dens", 2)
    order = [n for n, (t, c) in enumerate(units) if t == 31]
    pend6 = None
    for n in order:
        c = units[n][1]
        if c == 6 and not done: pend6 = n; continue
        todo = [c] + ([6] if pend6 is not None else [])
        pend6 = None
        for cc in todo:
            start = G(n + 3, 1) if n + 3 <= N + 1 else len(pl.m)
            if start >= len(pl.m) - 4 or late or not opt.get("prog", 1): late.append(cc); continue
            pos = max(pos, start)
            items = finish(cc, False)
            k = 0
            while k < len(items) and pos < len(pl.m):
                if pl.m[pos]:
                    room = max(pl.cap[pos], 0) + (dens - 2 if pl.cap[pos] > 0 else dens - 2)
                    room = max(room, 0)
                    take = items[k:k + room]; pl.at(pos, take); k += len(take)
                pos += 1
            if k < len(items): pl.at(len(pl.m) - 1, items[k:]); pos = len(pl.m)
    seq = pre_a + pl.ins(0, G(2 * U, 0)) + I(stamp(7, opt)) + [Ins(f"s_mov_b32 s{S_CNT}, {NIT}")]
    seq, lg, vm = finalize_straight(seq, out, lg, vm, tag=tag + "a0", verbose=verbose)
    out += seq
    per = G(4 * U, 0) - G(2 * U, 0)
    for it in range(1, NIT):
        for k in range(per):
            a, b = G(2 * U, 0) + k, G(2 * U, 0) + it * per + k
            assert pl.m[a] == pl.m[b] and pl.g[a] == pl.g[b], (it, k, pl.m[a], pl.m[b], pl.g[a], pl.g[b])
    lst = []
    if opt.get("prof2"):
        lst = I(["s_waitcnt lgkmcnt(0)", "s_memrealtime s[98:99]", "s_memtime s[100:101]", f"s_add_u32 s66, s{S_CNT}, 1", "s_and_b32 s66, s66, 0xfe", "s_sub_u32 s66, 38, s66", "s_add_u32 s67, s66, 1",
                 "s_waitcnt lgkmcnt(0)", "v_mov_b32 v252, s98", f"v_cmp_eq_u32 vcc, s66, v{V_LANE}", "v_cndmask_b32 v251, v251, v252, vcc",
                 "v_mov_b32 v252, s100", f"v_cmp_eq_u32 vcc, s67, v{V_LANE}", "v_cndmask_b32 v251, v251, v252, vcc"])
    body = [Ins(".p2align 6"), Ins(f"L1_a{p}:")] + pl.ins(G(2 * U, 0), G(4 * U, 0)) + lst + \
           I([f"s_sub_u32 s{S_CNT}, s{S_CNT}, 1", f"s_cmp_lg_u32 s{S_CNT}, 0", f"s_cbranch_scc1 L1_a{p}"])
    body, lg, vm = finalize_loop(body, out, lg, vm, tag=tag + "aloop", verbose=verbose)
    out += body
    seq = I(stamp(8, opt)) + pl.ins(G(T0 * U, 0), len(pl.m))
    E = Prog(); e = E.e
    e(f"L1_e{p}:")
    E.extend(stamp(9, opt))
    xs = 139264
    if 6 in late and not done: late = [c for c in late if c != 6][:1] + [6] + [c for c in late if c != 6][1:]
    for c in late: E.extend(finish(c, True))
    e(f"v_lshlrev_b32 v{V_T}, 2, v{V_LANE}\nv_add_u32 v{V_T}, {xs}, v{V_T}\ns_lshl_b32 s{S_T+2}, s{S_WAVE}, 8\nv_add_u32 v236, s{S_T+2}, v{V_T}")
    e(f"ds_write_b32 v236, v{V_SUM}")
    E.extend(stamp(10, opt))
    e("s_waitcnt vmcnt(0) lgkmcnt(0)\ns_barrier")
    for w in range(4): e(f"ds_read_b32 v{216+w}, v{V_T} offset:{w*256}")
    e(f"s_mov_b32 s{S_T+5}, 0x5f800000")
    e("v_add_f32 v216, v216, v217\nv_add_f32 v218, v218, v219\nv_add_f32 v216, v216, v218")
    e(f"v_cmp_ngt_f32 vcc, s{S_T+5}, v216")
    e(f"s_cmp_lg_u32 s{S_FLAG}, 0\ns_cbranch_scc1 L2_entry")
    e(f"s_cbranch_vccz L2_entry")
    seq += E.ins
    seq, lg, vm = finalize_straight(seq, out, lg, vm, tag=tag + "tail", verbose=verbose)
    out += seq
    F = Prog(); e = F.e
    e(f"L1_fb{p}:")
    e("s_waitcnt vmcnt(0) lgkmcnt(0)\ns_barrier")
    back = (2 - (2 + 31) % 5) * SLOT
    assert back < 0
    for r in (V_KA, V_VA0, V_VA1): e(f"v_subrev_u32 v{r}, {-back}, v{r}")
    for c in TILES: e(f"v_mov_b32 v{64+c}, 0xff800000")
    e(KVRST + f"\ns_mov_b32 s{S_CNT}, 32\ns_mov_b32 s{S_FLAG}, 1")
    fpre, _, _ = finalize_straight(F.ins, [], [], [], tag=tag + "fb0")
    F = Prog(); e = F.e
    e(f"L1_fl{p}:")
    F.extend(dmaKV(2 * SLOT, 0, track=False))
    e("s_waitcnt vmcnt(0)\ns_barrier")
    F.extend(readK())
    F.extend(qk_all(2))
    for c in sorted(TILES):
        r = c * 8
        e(f"v_max3_f32 v{r}, v{r}, v{r+1}, v{r+2}\nv_max3_f32 v{r+3}, v{r+3}, v{r+4}, v{r+5}\nv_max3_f32 v{r}, v{r}, v{r+6}, v{r+7}")
        e(f"v_max3_f32 v{64+c}, v{64+c}, v{r}, v{r+3}")
    e("s_barrier")
    e(f"s_sub_u32 s{S_CNT}, s{S_CNT}, 1\ns_cmp_lg_u32 s{S_CNT}, 0\ns_cbranch_scc1 L1_fl{p}")
    fl, _, _ = finalize_loop(F.ins, fpre, [], [], tag=tag + "fbl")
    F = Prog(); e = F.e
    e(KVRST)
    for t in range(LD + 1): F.extend(dmaKV(((2 + t) % 5) * SLOT, t, track=False))
    for c in TILES: e(f"v_mov_b32 v{c*8}, v{64+c}")
    e("s_waitcnt vmcnt(0)\ns_barrier")
    F.extend(readK())
    for dt in range(8): F.extend(readV(dt))
    e(f"s_branch L1_m{p}")
    fpost, _, _ = finalize_straight(F.ins, fl, [], [], tag=tag + "fb2")
    out += fpre + fl + fpost
    return out
```

```python
from asmgen import *

WS_O_BYTES_PER_B = 128 * 13 * 1024

def mf(d, a, b, c):
    return f"v_mfma_f32_16x16x32_bf16 {d}, {a}, {b}, {c}"
def vr(i, n=4): return f"v[{i}:{i+n-1}]"
def ar(i, n=4): return f"a[{i}:{i+n-1}]"

def gen_k2(name="oproj_kernel", opt=None):
    opt = opt or {}
    P = Prog()
    e = P.e
    SLOT = 8448
    WREG = 4 * SLOT
    def acc(c, j2, u, half_local=True):
        if c < 6: return (c * 8 + j2 * 2 + u) * 4
        return (48 + j2 * 2 + u) * 4
    def Bf(i, c): return (i % 4) * 28 + c * 4
    def Af(i, j2, u): return 112 + (i % 2) * 32 + (j2 * 2 + u) * 4
    V_OA, V_OB, V_OC = 208, 209, 210
    V_W = 212
    V_RD = 216
    V_T = 220
    from gen_k1 import stamp as stamp0, stamp_store, V_LANE, S_WAVE
    fused = opt.get("fused", False)
    SB = 20 if fused else 0
    def stamp(k, o): return stamp0(k + SB, o)
    if fused:
        e("L2_entry:")
        e(f"s_mov_b32 s26, s{S_WAVE}\nv_mov_b32 v221, v{V_LANE}")
        e("v_mov_b32 v226, 0\nv_mov_b32 v227, 1")
        P.extend(stamp(0, opt))
        e("s_cmp_lg_u32 s26, 0\ns_cbranch_scc1 L2_pub")
        e("s_mov_b64 exec, 1")
        e("buffer_atomic_add v227, v226, s[76:79], s80 offen sc1")
        e("s_mov_b64 exec, -1")
        e("L2_pub:")
    else:
        e(f".p2align 8\n.type {name},@function\n{name}:")
        e("s_cmp_ge_u32 s2, 256\ns_cbranch_scc1 L2_end")
        P.extend(stamp(0, opt))
    e("s_load_dwordx2 s[4:5], s[0:1], 32")
    e("s_load_dwordx2 s[6:7], s[0:1], 40")
    e("s_load_dwordx2 s[24:25], s[0:1], 56")
    if not fused:
        e("v_lshrrev_b32 v220, 6, v0")
        e("v_and_b32 v221, 63, v0")
        e("v_readfirstlane_b32 s26, v220")
    e("s_and_b32 s27, s2, 7")
    e("s_lshr_b32 s28, s2, 3")
    if opt.get("map", 0) != 1:
        e("s_lshr_b32 s29, s27, 1\ns_lshl_b32 s29, s29, 2\ns_lshr_b32 s30, s28, 3\ns_add_u32 s29, s29, s30")
        e("s_and_b32 s30, s27, 1\ns_lshl_b32 s30, s30, 2\ns_lshr_b32 s31, s28, 1\ns_and_b32 s31, s31, 3\ns_add_u32 s30, s30, s31")
    else:
        e("s_lshl_b32 s29, s27, 1\ns_lshr_b32 s30, s28, 4\ns_add_u32 s29, s29, s30")
        e("s_lshr_b32 s30, s28, 1\ns_and_b32 s30, s30, 7")
    e("s_and_b32 s31, s28, 1")
    e("s_waitcnt lgkmcnt(0)")
    e(f"s_mul_i32 s32, s29, {WS_O_BYTES_PER_B}")
    e(f"s_add_u32 s8, s24, s32\ns_addc_u32 s9, s25, 0\ns_mov_b32 s10, {WS_O_BYTES_PER_B}\ns_mov_b32 s11, 0x20000")
    e("s_lshl_b32 s32, s30, 8")
    e("s_add_u32 s12, s4, s32\ns_addc_u32 s13, s5, 0\ns_sub_u32 s14, 8388608, s32\ns_mov_b32 s15, 0x20000")
    e("s_mul_i32 s32, s29, 425984")
    e("s_add_u32 s16, s6, s32\ns_addc_u32 s17, s7, 0\ns_mov_b32 s18, 425984\ns_mov_b32 s19, 0x20000")
    e(f"s_mul_i32 s32, s26, {32*13312}")
    e("s_mul_i32 s33, s31, 6144")
    e("s_add_u32 s33, s33, s32")
    e("v_lshlrev_b32 v222, 4, v221")
    e(f"v_add_u32 v{V_OA}, s33, v222")
    e(f"v_add_u32 v{V_OB}, 4096, v{V_OA}")
    e("s_add_u32 s33, s32, 12288")
    e(f"v_add_u32 v{V_OC}, s33, v222")
    e("v_lshrrev_b32 v223, 2, v221\nv_and_b32 v223, 3, v223\nv_lshlrev_b32 v223, 11, v223")
    e("v_lshrrev_b32 v224, 4, v221\nv_lshlrev_b32 v224, 6, v224")
    e("v_and_b32 v225, 3, v221\nv_lshlrev_b32 v225, 4, v225")
    e("v_add3_u32 v223, v223, v224, v225")
    e("s_lshl_b32 s32, s26, 21")
    e(f"v_add_u32 v{V_W}, s32, v223")
    for i in range(1, 4):
        e(f"v_add_u32 v{V_W+i}, {i*(8*2048-1024)}, v{V_W}")
    e("v_lshrrev_b32 v223, 4, v221")
    e("v_and_b32 v224, 1, v223\nv_mul_u32_u24 v224, 4104, v224")
    e("v_lshrrev_b32 v223, 1, v223\nv_lshlrev_b32 v223, 10, v223")
    e("v_and_b32 v225, 15, v221\nv_lshlrev_b32 v225, 4, v225")
    e("v_add3_u32 v223, v223, v224, v225")
    e(f"s_mul_i32 s34, s26, {WREG}")
    e(f"v_add_u32 v{V_RD}, s34, v223")
    e("s_lshl_b32 s32, s31, 9")
    e(f"v_add_u32 v{V_RD+1}, s32, v{V_RD}")
    e("s_sub_u32 s32, 512, s32")
    e(f"v_add_u32 v{V_RD+2}, s32, v{V_RD}")
    e("s_mov_b32 s36, 0\ns_mov_b32 s37, 0\ns_mov_b32 s38, 8192")
    for k in range(4):
        e(f"s_add_u32 s{40+2*k}, s34, {k*SLOT}\ns_add_u32 s{41+2*k}, s34, {k*SLOT+4104}")
    def loadO(i):
        L = []
        for c in range(7):
            if c < 4: L.append(f"buffer_load_dwordx4 {ar(Bf(i,c))}, v{V_OA}, s[8:11], s36 offen offset:{c*1024} {opt.get('olf','')}")
            elif c < 6: L.append(f"buffer_load_dwordx4 {ar(Bf(i,c))}, v{V_OB}, s[8:11], s36 offen offset:{(c-4)*1024} {opt.get('olf','')}")
            else: L.append(f"buffer_load_dwordx4 {ar(Bf(i,c))}, v{V_OC}, s[8:11], s36 offen {opt.get('olf','')}")
        L.append("s_add_u32 s36, s36, 13312")
        return L
    def loadW(i):
        k = i % 4
        L = [f"s_mov_b32 m0, s{40+2*k}"]
        for q in range(4): L.append(f"buffer_load_dwordx4 v{V_W+q}, s[12:15], s37 offen offset:{q*1024} {opt.get('wof','')} lds")
        L.append(f"s_mov_b32 m0, s{41+2*k}")
        for q in range(4): L.append(f"buffer_load_dwordx4 v{V_W+q}, s[12:15], s38 offen offset:{q*1024} {opt.get('wof','')} lds")
        L.append("s_add_u32 s37, s37, 65536\ns_add_u32 s38, s38, 65536")
        return L
    def readA(i):
        L = []
        for jl in range(4):
            for u in range(2):
                for uk in range(2):
                    a = Af(i, jl, u) + 2 * uk
                    off = (i % 4) * SLOT + uk * 2048 + (jl & 1) * 256 + u * 8
                    L.append(f"ds_read_b64_tr_b16 {ar(a,2)}, v{V_RD+1+(jl>>1)} offset:{off}")
        return L
    if not fused:
        P.extend(loadW(0))
        for i in range(3):
            P.extend(loadO(i)); P.extend(loadW(i + 1))
        e("s_waitcnt vmcnt(45)")
        P.extend(stamp(1, opt))
        P.extend(readA(0))
        vmw0 = [30, 30, 30, 30]
    else:
        wpre = opt.get("wpre", 4)
        for i in range(wpre): P.extend(loadW(i))
        if not opt.get("emu"): e("s_lshl_b32 s80, s29, 4")
        e("s_cmp_lg_u32 s26, 0\ns_cbranch_scc1 L2_go")
        e("s_mov_b64 exec, 1")
        e("s_mov_b32 s53, 0x400000")
        e("L2_poll:")
        e("buffer_load_dword v228, v226, s[76:79], s80 offen sc1")
        e("s_waitcnt vmcnt(0)")
        e("v_readfirstlane_b32 s54, v228")
        e("s_sub_u32 s53, s53, 1\ns_cbranch_scc1 L2_polled")
        e(f"s_cmp_ge_u32 s54, {8 if opt.get('emu') else 16}\ns_cbranch_scc1 L2_polled")
        e(f"s_sleep {opt.get('psleep', 2)}\ns_branch L2_poll")
        e("L2_polled:")
        e("s_mov_b64 exec, -1")
        e("L2_go:")
        e(f"s_waitcnt vmcnt({8*(wpre-1)})")
        P.extend(readA(0))
        e("s_barrier")
        P.extend(stamp(1, opt))
        q = []
        for i in range(3):
            P.extend(loadO(i)); q += [("O", i)] * 7
            if i + 1 >= wpre: P.extend(loadW(i + 1)); q += [("W", i + 1)] * 8
        vmw0 = []
        for i in range(4):
            last = max(k for k, t in enumerate(q) if t in (("O", i), ("W", i + 1)))
            vmw0.append(len(q) - 1 - last)
            q += [("O", i + 3)] * 7 + [("W", i + 4)] * 8
    pro, lg, vm = finalize_straight(P.ins, tag="k2pro")
    out = list(pro)

    def kstep(i, first=False, loads=True, reads=True, vmw=30):
        S = Prog()
        S.e(f"s_waitcnt vmcnt({vmw}) lgkmcnt(0)")
        extras = []
        if reads: extras += readA(i + 1)
        ld = []
        if loads: ld = loadO(i + 3) + loadW(i + 4)
        mfs = []
        for jl in range(4):
            for u in range(2):
                for c in range(7):
                    if c == 6 and jl >= 2: continue
                    d = vr(acc(c, jl, u))
                    mfs.append(mf(d, ar(Af(i, jl, u)), ar(Bf(i, c)), "0" if first else d))
        gaps = [[] for _ in mfs]
        gi = 1
        for x in ld:
            gaps[min(gi, len(mfs)-1)].append(x)
            if x.startswith("buffer"): gi += 3
        gi = 2
        for k, x in enumerate(extras):
            gaps[gi].append(x); gi += (1 if k % 2 == 0 else 2)
        for m, g in zip(mfs, gaps):
            S.e(m); S.extend(g)
        return S.ins
    seq = []
    for i in range(4): seq += kstep(i, first=(i == 0), vmw=vmw0[i])
    seq.append(Ins("s_mov_b32 s39, 6"))
    emu = opt.get("emu")
    if emu:
        seq += [Ins("s_cmp_eq_u32 s81, 0"), Ins(f"s_cselect_b32 s39, {emu[2]}, {emu[4]}")]
    seq, lg, vm = finalize_straight(seq, out, lg, vm, tag="k2peel")
    out += seq
    body = [Ins(".p2align 6"), Ins("L2_loop:")]
    for i in range(4, 8): body += kstep(i)
    if emu:
        body += [Ins(f"s_cmp_ge_u32 s36, {24*13312}"), Ins("s_cselect_b32 s36, 0, s36"), Ins("s_cselect_b32 s37, 0, s37"), Ins("s_cselect_b32 s38, 8192, s38")]
    body += [Ins("s_sub_u32 s39, s39, 1"), Ins("s_cmp_lg_u32 s39, 0"), Ins("s_cbranch_scc1 L2_loop")]
    body, lg, vm = finalize_loop(body, out, lg, vm, tag="k2loop")
    out += body
    if emu:
        X = Prog(); x = X.e
        x("s_cmp_lg_u32 s81, 0\ns_cbranch_scc1 L2_x2")
        X.extend(stamp(6, opt))
        x("s_mov_b32 s81, 1\ns_mov_b64 exec, 1\ns_mov_b32 s53, 0x100000")
        x("L2_poll2:\nbuffer_load_dword v228, v226, s[76:79], s82 offen sc1\ns_waitcnt vmcnt(0)\nv_readfirstlane_b32 s54, v228")
        x("s_sub_u32 s53, s53, 1\ns_cbranch_scc1 L2_p2d\ns_cmp_ge_u32 s54, 8\ns_cbranch_scc1 L2_p2d\ns_sleep 2\ns_branch L2_poll2")
        x(f"L2_p2d:\ns_mov_b64 exec, -1")
        X.extend(stamp(7, opt))
        x(f"s_mov_b32 s39, {emu[3]}\ns_branch L2_loop\nL2_x2:")
        xs, _, _ = finalize_straight(X.ins, out, [], [], tag="emu")
        out += xs
    seq = []
    S = kstep(28)
    S = [x for x in S if not (x.kind == "dma" or "m0" in x.wr or x.text.startswith("s_add_u32 s37") or x.text.startswith("s_add_u32 s38"))]
    seq += S
    seq += kstep(29, loads=False, vmw=22)
    seq += kstep(30, loads=False, vmw=7)
    seq += kstep(31, loads=False, reads=False, vmw=0)
    seq, lg, vm = finalize_straight(seq, out, lg, vm, tag="k2tail")
    out += seq
    def owner(pt): return pt % 4 if pt < 24 else pt - 24
    E = Prog(); e = E.e
    E.extend(stamp(2, opt))
    e("s_barrier")
    e("v_lshlrev_b32 v222, 4, v221")
    e("v_add_u32 v223, 65536, v222\nv_add_u32 v224, 131072, v222")
    e("v_and_b32 v225, 15, v221\nv_lshlrev_b32 v225, 11, v225")
    e("v_lshrrev_b32 v226, 4, v221\nv_lshlrev_b32 v226, 4, v226")
    e("s_lshl_b32 s32, s30, 8")
    e("v_add3_u32 v225, v225, v226, s32")
    e("s_lshl_b32 s33, s31, 7")
    e("s_sub_u32 s35, 128, s33")
    e(f"s_mul_i32 s36, s31, {6*32768}")
    e("s_cmp_eq_u32 s26, 1\ns_cbranch_scc1 L2_e1\ns_cmp_eq_u32 s26, 2\ns_cbranch_scc1 L2_e2\ns_cmp_eq_u32 s26, 3\ns_cbranch_scc1 L2_e3")
    pre, lg, vm = finalize_straight(E.ins, out, lg, vm, tag="k2epre")
    out += pre
    def ldsaddr(pt, src, u):
        off = (pt * 3 + src) * 2048 + u * 1024
        return f"v{222 + off // 65536}", off % 65536
    for w in range(4):
        E = Prog(); e = E.e
        e(f"L2_e{w}:")
        for pt in range(26):
            o = owner(pt)
            if o == w: continue
            src = (w - o - 1) % 4
            c, jl = (pt // 4, pt % 4) if pt < 24 else (6, pt - 24)
            for u in range(2):
                a, off = ldsaddr(pt, src, u)
                e(f"ds_write_b128 {a}, {vr(acc(c,jl,u))} offset:{off}")
        e("s_waitcnt lgkmcnt(0)\ns_barrier")
        E.extend(stamp(3, opt))
        mine = [pt for pt in range(26) if owner(pt) == w]
        free = []
        for pt in range(26):
            if owner(pt) != w:
                c, jl = (pt // 4, pt % 4) if pt < 24 else (6, pt - 24)
                free += [acc(c, jl, 0), acc(c, jl, 1)]
        free += [228, 232, 236, 240]
        fi = 0
        tmp = {}
        for pt in mine:
            for src in range(3):
                for u in range(2):
                    a, off = ldsaddr(pt, src, u)
                    tmp[(pt, src, u)] = free[fi]; fi += 1
                    e(f"ds_read_b128 {vr(tmp[(pt,src,u)])}, {a} offset:{off}")
        for pt in mine:
            c, jl = (pt // 4, pt % 4) if pt < 24 else (6, pt - 24)
            for u in range(2):
                r = acc(c, jl, u)
                t0, t1, t2 = (tmp[(pt, s, u)] for s in range(3))
                for h in (0, 2):
                    e(f"v_pk_add_f32 v[{r+h}:{r+h+1}], v[{r+h}:{r+h+1}], v[{t0+h}:{t0+h+1}]")
                    e(f"v_pk_add_f32 v[{t1+h}:{t1+h+1}], v[{t1+h}:{t1+h+1}], v[{t2+h}:{t2+h+1}]")
                for h in (0, 2):
                    e(f"v_pk_add_f32 v[{r+h}:{r+h+1}], v[{r+h}:{r+h+1}], v[{t1+h}:{t1+h+1}]")
            r = acc(c, jl, 0)
            e(f"v_cvt_pk_bf16_f32 v{r}, v{r}, v{r+1}\nv_cvt_pk_bf16_f32 v{r+1}, v{r+2}, v{r+3}")
            e(f"v_cvt_pk_bf16_f32 v{r+2}, v{r+4}, v{r+5}\nv_cvt_pk_bf16_f32 v{r+3}, v{r+6}, v{r+7}")
            js = "s33" if jl < 2 else "s35"
            if c < 6: e(f"s_add_u32 s37, s36, {c*32768}\ns_add_u32 s37, s37, {js}")
            else: e(f"s_add_u32 s37, {js}, {12*32768}")
            e(f"buffer_store_dwordx4 {vr(r)}, v225, s[16:19], s37 offen offset:{(jl&1)*64} {opt.get('outf','')}")
        E.extend(stamp(4, opt))
        if opt.get("prof"): e("s_waitcnt vmcnt(0)")
        E.extend(stamp(5, opt))
        E.extend(stamp_store(6, opt, 24, 0x8000000 if fused else 0x8100000, 26))
        e("s_endpgm")
        s2, _, _ = finalize_straight(E.ins, out, [], [], tag=f"k2e{w}")
        out += s2
    if not fused:
        out.append(Ins("L2_end:")); out.append(Ins("s_endpgm"))
    Q = Prog(); Q.ins = out
    desc = f""".amdhsa_kernel {name}
  .amdhsa_next_free_vgpr 512
  .amdhsa_next_free_sgpr 102
  .amdhsa_accum_offset 256
  .amdhsa_group_segment_fixed_size 0
  .amdhsa_kernarg_size 64
  .amdhsa_user_sgpr_count 2
  .amdhsa_user_sgpr_kernarg_segment_ptr 1
  .amdhsa_system_sgpr_workgroup_id_x 1
.end_amdhsa_kernel
"""
    return Q.text(), desc
```

```python
from asmgen import *
from gen_k2 import mf, vr, ar, WS_O_BYTES_PER_B

SLOT = 8448
WREG = 4 * SLOT
V_OA, V_OB, V_OC = 220, 221, 222
V_W = 224
V_RD = 228
V_POLL, V_ZERO = 230, 231
V_X = 232
SO, SW, SOUT = 60, 84, 88
S_OO, S_W1, S_W2 = 92, 93, 94
S_REM, S_NXT, S_LB = 95, 96, 97
S_IDX, S_STEP = 72, 73
S_OB, S_NB, S_HALF = 81, 82, 83
S_FO = 66
S_X = 67
def acc(c, j2, u): return (c * 8 + j2 * 2 + u) * 4 if c < 6 else (48 + j2 * 2 + u) * 4
def Bf(i, c): return 112 + (i % 4) * 28 + c * 4
def Af(i, j2, u): return (i % 2) * 32 + (j2 * 2 + u) * 4
srd = lambda r: f"s[{r}:{r+3}]"

def op_scalar_setup(opt, S_WAVE):
    L = ["s_and_b32 s67, s2, 7", "s_lshr_b32 s68, s2, 3",
         f"s_lshr_b32 s{S_OB}, s67, 1", f"s_lshl_b32 s{S_OB}, s{S_OB}, 2", "s_lshr_b32 s69, s68, 3", f"s_add_u32 s{S_OB}, s{S_OB}, s69",
         f"s_and_b32 s{S_NB}, s67, 1", f"s_lshl_b32 s{S_NB}, s{S_NB}, 2", "s_lshr_b32 s69, s68, 1", "s_and_b32 s69, s69, 3", f"s_add_u32 s{S_NB}, s{S_NB}, s69",
         f"s_and_b32 s{S_HALF}, s68, 1",
         f"s_mul_i32 s69, s{S_OB}, {WS_O_BYTES_PER_B}",
         f"s_add_u32 s{SO}, s4, s69", f"s_addc_u32 s{SO+1}, s5, 0", f"s_mov_b32 s{SO+2}, {WS_O_BYTES_PER_B}", f"s_mov_b32 s{SO+3}, 0x20000",
         f"s_lshl_b32 s69, s{S_NB}, 8",
         f"s_add_u32 s{SW}, s6, s69", f"s_addc_u32 s{SW+1}, s7, 0", f"s_sub_u32 s{SW+2}, 8388608, s69", f"s_mov_b32 s{SW+3}, 0x20000",
         f"s_mul_i32 s69, s{S_OB}, 425984",
         f"s_add_u32 s{SOUT}, s{SOUT}, s69", f"s_addc_u32 s{SOUT+1}, s{SOUT+1}, 0", f"s_mov_b32 s{SOUT+2}, 425984", f"s_mov_b32 s{SOUT+3}, 0x20000",
         f"s_lshl_b32 s{S_FO}, s{S_OB}, 4", f"s_mul_i32 s{S_LB}, s{S_WAVE}, {WREG}"]
    return L

def poll_issue(): return f"buffer_load_dword v{V_POLL}, v{V_ZERO}, s[76:79], s{S_FO} offen sc1"

def op_vector_setup(opt, V_LANE, S_WAVE, S_HP):
    t0, t1, t2 = V_X, V_X + 1, V_X + 2
    L = [f"s_mul_i32 s67, s{S_HALF}, 6144", f"v_lshlrev_b32 v{t0}, 4, v{V_LANE}",
         f"v_add_u32 v{V_OA}, s67, v{t0}", f"v_add_u32 v{V_OB}, 4096, v{V_OA}", f"v_add_u32 v{V_OC}, 12288, v{t0}",
         f"v_lshrrev_b32 v{t0}, 2, v{V_LANE}", f"v_and_b32 v{t0}, 3, v{t0}", f"v_lshlrev_b32 v{t0}, 11, v{t0}",
         f"v_lshrrev_b32 v{t1}, 4, v{V_LANE}", f"v_lshl_add_u32 v{t0}, v{t1}, 6, v{t0}",
         f"v_and_b32 v{t2}, 3, v{V_LANE}", f"v_lshl_add_u32 v{V_W}, v{t2}, 4, v{t0}"]
    for i in range(1, 4): L.append(f"v_add_u32 v{V_W+i}, {i*(8*2048-1024)}, v{V_W}")
    L += [f"v_and_b32 v{t0}, 1, v{t1}", f"v_mul_u32_u24 v{t0}, 4104, v{t0}", f"v_lshrrev_b32 v{t1}, 1, v{t1}", f"v_lshl_add_u32 v{t0}, v{t1}, 10, v{t0}",
          f"v_and_b32 v{t2}, 15, v{V_LANE}", f"v_lshl_add_u32 v{t0}, v{t2}, 4, v{t0}",
          f"s_lshl_b32 s67, s{S_HALF}, 9", f"s_add_u32 s68, s{S_LB}, s67", f"v_add_u32 v{V_RD}, s68, v{t0}",
          f"s_sub_u32 s67, 512, s67", f"s_add_u32 s68, s{S_LB}, s67", f"v_add_u32 v{V_RD+1}, s68, v{t0}",
          f"s_and_b32 s{S_IDX}, s{S_HP}, 12", f"s_add_u32 s{S_IDX}, s{S_IDX}, s{S_WAVE}",
          f"s_bitcmp1_b32 s{S_WAVE}, 0\ns_cselect_b32 s{S_STEP}, 12, 4", f"s_mov_b32 s{S_REM}, 4", f"v_mov_b32 v{V_ZERO}, 0"]
    L += advance() + SETW + SETO
    return L

def advance():
    return [f"s_add_u32 s{S_IDX}, s{S_IDX}, s{S_STEP}", f"s_and_b32 s{S_IDX}, s{S_IDX}, 15",
            f"s_sub_u32 s{S_REM}, s{S_REM}, 1\ns_cselect_b32 s{S_NXT}, 0x1000, s{S_IDX}"]
def ready(lab):
    return [f"v_readfirstlane_b32 s67, v{V_POLL}",
            f"s_mov_b32 s69, 0x400000",
            f"{lab}_r:",
            f"s_bitcmp1_b32 s67, s{S_IDX}\ns_cbranch_scc1 {lab}_k",
            f"s_sub_u32 s69, s69, 1\ns_cbranch_scc1 {lab}_k",
            "s_sleep 4", poll_issue(), "s_waitcnt vmcnt(0)", f"v_readfirstlane_b32 s67, v{V_POLL}", f"s_branch {lab}_r",
            f"{lab}_k:"]
SETW = [f"s_lshl_b32 s{S_W1}, s{S_NXT}, 19", f"s_add_u32 s{S_W2}, s{S_W1}, 8192"]
SETO = [f"s_mul_i32 s{S_OO}, s{S_NXT}, {8*13312}"]

def loadO(i, opt):
    L = []
    for c in range(7):
        v, off = (V_OA, c * 1024) if c < 4 else (V_OB, (c - 4) * 1024) if c < 6 else (V_OC, 0)
        L.append(f"buffer_load_dwordx4 {ar(Bf(i,c))}, v{v}, {srd(SO)}, s{S_OO} offen offset:{off} sc1")
    L.append(f"s_add_u32 s{S_OO}, s{S_OO}, 13312")
    return L
def loadW(i, opt):
    k = i % 4
    L = [f"s_add_u32 m0, s{S_LB}, {k*SLOT}"]
    for q in range(4): L.append(f"buffer_load_dwordx4 v{V_W+q}, {srd(SW)}, s{S_W1} offen offset:{q*1024} lds")
    L.append(f"s_add_u32 m0, s{S_LB}, {k*SLOT+4104}")
    for q in range(4): L.append(f"buffer_load_dwordx4 v{V_W+q}, {srd(SW)}, s{S_W2} offen offset:{q*1024} lds")
    L += [f"s_add_u32 s{S_W1}, s{S_W1}, 65536", f"s_add_u32 s{S_W2}, s{S_W2}, 65536"]
    return L
def readA(i):
    L = []
    for jl in range(4):
        for u in range(2):
            for uk in range(2):
                off = (i % 4) * SLOT + uk * 2048 + (jl & 1) * 256 + u * 8
                L.append(f"ds_read_b64_tr_b16 {ar(Af(i,jl,u)+2*uk,2)}, v{V_RD+(jl>>1)} offset:{off}")
    return L
def w_first(opt):
    L = []
    for i in range(4): L += loadW(i, opt)
    return L

def gen_main(opt, stamp, stamp_store, V_LANE, S_WAVE):
    P = Prog(); e = P.e
    e("L2_main:")
    e(poll_issue())
    if opt.get("wearly", 0) == 0:
        P.extend(w_first(opt))
        e("s_waitcnt vmcnt(32)")
    else: e("s_waitcnt vmcnt(0)")
    P.extend(ready("L2_f"))
    P.extend(stamp(21, opt))
    for i in range(3): P.extend(loadO(i, opt))
    e("s_mov_b32 s70, 4")
    e("s_waitcnt vmcnt(45)")
    P.extend(readA(0))
    e("s_waitcnt vmcnt(0)")
    pro, lg, vm = finalize_straight(P.ins, [], [], [], tag="oppro")
    out = list(pro)
    def kstep(i):
        S = Prog()
        S.e("s_waitcnt vmcnt(30) lgkmcnt(0)")
        pre = []
        if i == 5: S.extend(ready("L2_c"))
        mfs = [mf(vr(acc(c, jl, u)), ar(Af(i, jl, u)), ar(Bf(i, c)), vr(acc(c, jl, u)))
               for jl in range(4) for u in range(2) for c in range(7) if not (c == 6 and jl >= 2)]
        gaps = [[] for _ in mfs]
        ld = ([poll_issue()] if i == 2 else []) + (SETO if i == 5 else []) + loadO(i + 3, opt) + (advance() + SETW if i == 4 else []) + loadW(i + 4, opt)
        gi = 0
        for x in ld:
            gaps[min(gi, len(mfs) - 1)].append(x)
            if x.startswith("buffer"): gi += 3
            elif "m0" in x: gi += 1
        gi = 1
        for k, x in enumerate(readA(i + 1)):
            gaps[gi].append(x); gi += (1 if k % 2 == 0 else 2)
        for m, g in zip(mfs, gaps):
            S.e(m); S.extend(g)
        return S.ins
    body = [Ins(".p2align 6"), Ins("L2_loop:")]
    for i in range(8): body += kstep(i)
    body += [Ins("s_sub_u32 s70, s70, 1"), Ins("s_cmp_lg_u32 s70, 0"), Ins("s_cbranch_scc1 L2_loop")]
    spin = lambda x: False
    chk = []; skip = False
    for x in body:
        if x.text.startswith("s_sleep"): skip = True
        if x.lab and x.lab.endswith("_k"): skip = False
        if not skip: chk.append(x)
    v1 = check_vm(chk, vm, "oploop"); check_vm(chk, v1, "oploop2")
    b2, s1, n = fix_lgkm(body, lg); assert n == 0
    body, _ = fix_hazards(body, out); body, _ = fix_hazards(body, body)
    out += body
    def owner(pt): return pt % 4 if pt < 24 else pt - 24
    E = Prog(); e = E.e
    E.extend(stamp(22, opt))
    e("s_waitcnt vmcnt(0) lgkmcnt(0)\ns_barrier")
    A0 = V_X
    e(f"v_lshlrev_b32 v{A0}, 4, v{V_LANE}\nv_add_u32 v{A0+1}, 65536, v{A0}\nv_add_u32 v{A0+2}, 131072, v{A0}")
    e(f"v_and_b32 v{A0+3}, 15, v{V_LANE}\nv_lshlrev_b32 v{A0+3}, 11, v{A0+3}\nv_lshrrev_b32 v{A0+4}, 4, v{V_LANE}\nv_lshlrev_b32 v{A0+4}, 4, v{A0+4}")
    e(f"s_lshl_b32 s67, s{S_NB}, 8\nv_add3_u32 v{A0+3}, v{A0+3}, v{A0+4}, s67")
    e(f"s_lshl_b32 s68, s{S_HALF}, 7\ns_sub_u32 s69, 128, s68\ns_mul_i32 s70, s{S_HALF}, {6*32768}")
    e(f"s_cmp_eq_u32 s{S_WAVE}, 1\ns_cbranch_scc1 L2_e1\ns_cmp_eq_u32 s{S_WAVE}, 2\ns_cbranch_scc1 L2_e2\ns_cmp_eq_u32 s{S_WAVE}, 3\ns_cbranch_scc1 L2_e3")
    pre, _, _ = finalize_straight(E.ins, out, [], [], tag="opepre")
    out += pre
    def ldsaddr(pt, src, u):
        off = (pt * 3 + src) * 2048 + u * 1024
        return f"v{A0 + off // 65536}", off % 65536
    cj = lambda pt: (pt // 4, pt % 4) if pt < 24 else (6, pt - 24)
    for w in range(4):
        E = Prog(); e = E.e
        e(f"L2_e{w}:")
        for pt in range(26):
            o = owner(pt)
            if o == w: continue
            c, jl = cj(pt)
            for u in range(2):
                a, off = ldsaddr(pt, (w - o - 1) % 4, u)
                e(f"ds_write_b128 {a}, {vr(acc(c,jl,u))} offset:{off}")
        e("s_waitcnt lgkmcnt(0)\ns_barrier")
        E.extend(stamp(23, opt))
        mine = [pt for pt in range(26) if owner(pt) == w]
        free = []
        for pt in range(26):
            if owner(pt) != w:
                c, jl = cj(pt); free += [acc(c, jl, 0), acc(c, jl, 1)]
        free += [208, 212, 216, 220]
        tmp = {}; fi = 0
        for pt in mine:
            for src in range(3):
                for u in range(2):
                    a, off = ldsaddr(pt, src, u)
                    tmp[(pt, src, u)] = free[fi]; fi += 1
                    e(f"ds_read_b128 {vr(tmp[(pt,src,u)])}, {a} offset:{off}")
        for pt in mine:
            c, jl = cj(pt)
            for u in range(2):
                r = acc(c, jl, u)
                t0, t1, t2 = (tmp[(pt, s, u)] for s in range(3))
                for h in (0, 2):
                    e(f"v_pk_add_f32 v[{r+h}:{r+h+1}], v[{r+h}:{r+h+1}], v[{t0+h}:{t0+h+1}]")
                    e(f"v_pk_add_f32 v[{t1+h}:{t1+h+1}], v[{t1+h}:{t1+h+1}], v[{t2+h}:{t2+h+1}]")
                for h in (0, 2):
                    e(f"v_pk_add_f32 v[{r+h}:{r+h+1}], v[{r+h}:{r+h+1}], v[{t1+h}:{t1+h+1}]")
            r = acc(c, jl, 0)
            e(f"v_cvt_pk_bf16_f32 v{r}, v{r}, v{r+1}\nv_cvt_pk_bf16_f32 v{r+1}, v{r+2}, v{r+3}")
            e(f"v_cvt_pk_bf16_f32 v{r+2}, v{r+4}, v{r+5}\nv_cvt_pk_bf16_f32 v{r+3}, v{r+6}, v{r+7}")
            js = "s68" if jl < 2 else "s69"
            if c < 6: e(f"s_add_u32 s71, s70, {c*32768}\ns_add_u32 s71, s71, {js}")
            else: e(f"s_add_u32 s71, {js}, {12*32768}")
            e(f"buffer_store_dwordx4 {vr(r)}, v{A0+3}, {srd(SOUT)}, s71 offen offset:{(jl&1)*64} {opt.get('outf','')}")
        E.extend(stamp(24, opt))
        if opt.get("prof"): e("s_waitcnt vmcnt(0)")
        E.extend(stamp(25, opt))
        E.extend(stamp_store(6, opt, 4, 0x8000000, S_WAVE))
        e("s_endpgm")
        s2, _, _ = finalize_straight(E.ins, [], [], [], tag=f"ope{w}")
        out += s2
    Q = Prog(); Q.ins = out
    return Q.text()
```

```python
from asmgen import *
from gen_k2 import mf, vr, ar, WS_O_BYTES_PER_B
import struct, math

SLOT = 32768
NSLOT = 5
QSCALE = math.log2(math.e) / math.sqrt(128.0)
def f32bits(x): return struct.unpack("<I", struct.pack("<f", x))[0]

def O_(c, dt): return vr(c * 32 + dt * 4) if c < 6 else ar(208 + dt * 4)
def NEGM(c): return 192 + 4 * c
def S_(buf, kt): return 220 + buf * 8 + kt * 4
def P_(buf): return 236 + buf * 4
V_KA, V_VA0, V_VA1, V_LANE = 244, 245, 246, 247
V_KV = 248
V_PF = 250
V_T = 252
V_QW, V_QX = 208, 212
V_QRW, V_QRX, V_QRX2, V_BW, V_BX = 216, 217, 218, 219, 220
V_RW = 221
def Q_(c, ds): return c * 16 + ds * 4
def K_(kt, ds): return 112 + kt * 16 + ds * 4
def V_(dt): return 144 + dt * 4
def L_(c): return 176 + 4 * c
ONES = 204
def QA(buf, j2, u): return 112 + buf * 60 + (j2 * 2 + u) * 4
def QB(buf, c): return 112 + buf * 60 + 32 + c * 4
def QACC(c, j2, u, p):
    if c < 6: return (c * 8 + j2 * 2 + u) * 4
    return (48 + (j2 - 2 * p) * 2 + u) * 4
def RREG(t, i):
    k = t * 8 + i
    return 4 * k if k < 28 else 232 + 4 * (k - 28)
S_WAVE, S_HH, S_B, S_HP, S_CNT, S_DST = 24, 25, 26, 27, 28, 29
S_XO, S_WO, S_KO, S_KO2, S_DELTA = 30, 31, 32, 33, 34
S_M0W, S_M0X, S_M0KV, S_RD = 35, 36, 37, 39
S_T = 40
S_FLAG, S_XO2, S_M0X2, S_PREV, S_PFO = 48, 49, 50, 51, 55
S_KA, S_KX = 64, 65
XREG = 16640

def stamp(k, opt):
    if not opt.get("prof"): return []
    return ["s_waitcnt lgkmcnt(0)", "s_memrealtime s[98:99]", "s_memtime s[100:101]", "s_waitcnt lgkmcnt(0)",
            f"v_writelane_b32 v251, s98, {2*k}", f"v_writelane_b32 v251, s100, {2*k+1}"]
def stamp_store(n, opt, wsreg, base, wave):
    if not opt.get("prof"): return []
    return [f"s_add_u32 s60, s{wsreg}, {base}", f"s_addc_u32 s61, s{wsreg+1}, 0", "s_mov_b32 s62, 0x100000", "s_mov_b32 s63, 0x20000",
         f"s_lshl_b32 s55, s2, 2", f"s_add_u32 s55, s55, s{wave}", "s_lshl_b32 s55, s55, 8",
         "v_mbcnt_lo_u32_b32 v250, -1, 0", "v_mbcnt_hi_u32_b32 v250, -1, v250", "v_lshlrev_b32 v250, 2, v250",
         "buffer_store_dword v251, v250, s[60:63], s55 offen"]

def code_pf(lo, hi, idx_sgpr, va, lane128, tmp=S_T+6, fwd=False):
    return [f"s_getpc_b64 s[{tmp}:{tmp+1}]\ns_add_u32 s{tmp}, s{tmp}, {lo}-.\ns_addc_u32 s{tmp+1}, s{tmp+1}, 0" if fwd else
            f"s_getpc_b64 s[{tmp}:{tmp+1}]\ns_sub_u32 s{tmp}, s{tmp}, .-{lo}\ns_subb_u32 s{tmp+1}, s{tmp+1}, 0",
            f"v_lshl_add_u32 v{va}, s{idx_sgpr}, 13, v{lane128}",
            f"v_min_u32 v{va}, {hi}-{lo}-4, v{va}",
            f"v_mov_b32 v{va+1}, s{tmp+1}",
            f"v_add_co_u32 v{va}, vcc, s{tmp}, v{va}\ns_nop 1\nv_addc_co_u32 v{va+1}, vcc, 0, v{va+1}, vcc",
            f"global_load_dword v255, v[{va}:{va+1}], off"]
def cost(x): return 1 + x.count("\n")
def isvm(x): return x.startswith("buffer") or x.startswith("global")

class Place:
    def __init__(self): self.m = []; self.g = []; self.cap = []
    def add(self, m, cap=2, fixed=()):
        self.m.append(m); self.g.append(list(fixed)); self.cap.append(cap)
    def at(self, g, items):
        for it in items:
            self.g[g].append(it); self.cap[g] -= cost(it)
    def put(self, pos, items, hi=None, step=0):
        hi = len(self.m) - 1 if hi is None else hi
        for it in items:
            while pos < hi and self.cap[pos] < min(cost(it), 2): pos += 1
            self.at(pos, [it])
            last = pos
            pos = min(pos + step, hi)
        return last
    def spread(self, lo, hi, items, vmcap=2, group=1):
        nb = sum(1 for x in items if isvm(x))
        cand = [k for k in range(lo + 1, hi) if self.cap[k] >= vmcap]
        assert len(cand) >= nb, (len(cand), nb)
        ng = -(-nb // group)
        pick = []
        for gi in range(ng):
            st = (gi * len(cand)) // ng
            for q in range(min(group, nb - gi * group)): pick.append(cand[st + q])
        assert pick == sorted(set(pick)), pick
        bi = 0; prev = lo
        for idx, x in enumerate(items):
            if isvm(x):
                g = pick[bi]; bi += 1
                self.g[g].append(x); self.cap[g] -= vmcap; prev = g
            else:
                lim = pick[bi] if bi < nb else hi
                q = prev
                while q < lim - 1 and (self.cap[q] < cost(x) or q in pick[bi:]): q += 1
                if self.cap[q] < cost(x): q = prev if bi > 0 or True else q
                self.at(q, [x]); prev = q
        return prev
    def ins(self, lo=0, hi=None):
        out = []
        for k in range(lo, len(self.m) if hi is None else hi):
            if self.m[k]: out.append(Ins(self.m[k]))
            for x in self.g[k]:
                for line in x.split("\n"): out.append(Ins(line))
        return out

def ring_next(reg):
    return [f"s_add_u32 s{reg}, s{reg}, {SLOT}", f"s_cmp_eq_u32 s{reg}, {SLOT*NSLOT}\ns_cselect_b32 s{reg}, 0, s{reg}"]
def I(lst): return [Ins(l) for x in lst for l in x.split("\n")]

DESC = """.amdhsa_kernel {name}
  .amdhsa_next_free_vgpr 512
  .amdhsa_next_free_sgpr 102
  .amdhsa_accum_offset 256
  .amdhsa_group_segment_fixed_size 0
  .amdhsa_kernarg_size 64
  .amdhsa_user_sgpr_count 2
  .amdhsa_user_sgpr_kernarg_segment_ptr 1
  .amdhsa_system_sgpr_workgroup_id_x 1
.end_amdhsa_kernel
"""

def gen_k1(name="attn_kernel", opt=None):
    opt = opt or {}
    P = Prog(); e = P.e
    e(f".p2align 8\n.type {name},@function\n{name}:")
    e("s_cmp_ge_u32 s2, 256\ns_cbranch_scc1 L1_end")
    P.extend(stamp(0, opt))
    e("s_load_dwordx4 s[40:43], s[0:1], 0")
    e("s_load_dwordx4 s[44:47], s[0:1], 16")
    e("s_load_dwordx2 s[4:5], s[0:1], 56")
    e("s_load_dwordx2 s[6:7], s[0:1], 32")
    e("s_load_dwordx2 s[76:77], s[0:1], 48")
    L = V_LANE
    t0, t1, t2, t3 = V_T, V_T + 1, V_T + 2, V_T + 3
    e(f"v_lshrrev_b32 v{t0}, 6, v0")
    e(f"v_and_b32 v{L}, 63, v0")
    e(f"v_readfirstlane_b32 s{S_WAVE}, v{t0}")
    e("s_and_b32 s90, s2, 7\ns_lshr_b32 s91, s2, 3")
    if opt.get("map", 0) == 0:
        e(f"s_lshr_b32 s{S_B}, s90, 1\ns_lshl_b32 s{S_B}, s{S_B}, 2\ns_lshr_b32 s52, s91, 3\ns_add_u32 s{S_B}, s{S_B}, s52")
        e(f"s_and_b32 s{S_HP}, s90, 1\ns_lshl_b32 s{S_HP}, s{S_HP}, 3\ns_and_b32 s52, s91, 7\ns_add_u32 s{S_HP}, s{S_HP}, s52")
    elif opt["map"] == 1:
        e(f"s_lshl_b32 s{S_B}, s90, 1\ns_lshr_b32 s52, s91, 4\ns_add_u32 s{S_B}, s{S_B}, s52\ns_and_b32 s{S_HP}, s91, 15")
    elif opt["map"] == 2:
        e(f"s_lshr_b32 s{S_B}, s90, 2\ns_lshl_b32 s{S_B}, s{S_B}, 3\ns_lshr_b32 s52, s91, 2\ns_add_u32 s{S_B}, s{S_B}, s52")
        e(f"s_and_b32 s{S_HP}, s90, 3\ns_lshl_b32 s{S_HP}, s{S_HP}, 2\ns_and_b32 s52, s91, 3\ns_add_u32 s{S_HP}, s{S_HP}, s52")
    else:
        e(f"s_lshr_b32 s{S_B}, s91, 1\ns_lshl_b32 s{S_HP}, s90, 1\ns_and_b32 s52, s91, 1\ns_add_u32 s{S_HP}, s{S_HP}, s52")
    if opt.get("hpx"): e(f"s_xor_b32 s{S_HP}, s{S_HP}, {opt['hpx']}")
    e(f"s_lshr_b32 s{S_HH}, s{S_WAVE}, 1\ns_and_b32 s53, s{S_WAVE}, 1")
    e(f"v_lshrrev_b32 v{t0}, 2, v{L}\nv_and_b32 v{t0}, 3, v{t0}")
    e(f"v_lshrrev_b32 v{t1}, 4, v{L}")
    e(f"v_and_b32 v{t2}, 3, v{L}")
    e(f"v_lshlrev_b32 v{V_QW}, 13, v{t0}\nv_lshl_add_u32 v{V_QW}, v{t1}, 6, v{V_QW}\nv_lshl_add_u32 v{V_QW}, v{t2}, 4, v{V_QW}")
    e(f"s_lshl_b32 s52, s{S_WAVE}, 16\ns_add_u32 s52, s52, 4096\nv_add_u32 v{V_QW}, s52, v{V_QW}")
    for i in range(1, 4):
        d = (i & 1) * 4 * 8192 + (i >> 1) * 256 - i * 1024
        e(f"v_add_u32 v{V_QW+i}, {d}, v{V_QW}" if d >= 0 else f"v_subrev_u32 v{V_QW+i}, {-d}, v{V_QW}")
    e(f"v_lshrrev_b32 v{V_QX}, 2, v{L}\nv_and_b32 v{V_QX}, 7, v{V_QX}")
    e(f"v_lshrrev_b32 v{t3}, 2, v{V_QX}\nv_lshlrev_b32 v{t3}, 1, v{t3}\nv_xor_b32 v{t3}, v{t3}, v{t2}")
    e(f"v_lshlrev_b32 v{V_QX}, 11, v{V_QX}\nv_lshl_add_u32 v{V_QX}, v{t3}, 4, v{V_QX}")
    e(f"v_lshrrev_b32 v{t3}, 5, v{L}\nv_lshl_add_u32 v{V_QX}, v{t3}, 6, v{V_QX}")
    for i in range(1, 4): e(f"v_add_u32 v{V_QX+i}, {i*(16384-1024)}, v{V_QX}")
    e(f"s_lshl_b32 s52, s{S_WAVE}, 2\ns_lshr_b32 s52, 0xb480, s52\ns_and_b32 s52, s52, 15")
    e(f"s_lshl_b32 s{S_XO}, s52, 14\ns_lshl_b32 s{S_M0X}, s52, 10\ns_add_u32 s{S_M0X}, s{S_M0X}, {XREG}")
    e(f"s_mul_i32 s52, s{S_WAVE}, 3")
    e(f"s_lshl_b32 s{S_XO2}, s52, 14\ns_add_u32 s{S_XO2}, s{S_XO2}, {14*16384}")
    e(f"s_lshl_b32 s{S_M0X2}, s52, 10\ns_add_u32 s{S_M0X2}, s{S_M0X2}, {XREG}")
    e(f"s_mul_i32 s{S_M0W}, s53, 8200\ns_lshl_b32 s54, s{S_HH}, 12\ns_add_u32 s{S_M0W}, s{S_M0W}, s54")
    e(f"s_mov_b32 s{S_WO}, 0")
    if opt.get("qrole"):
        e(f"s_mul_i32 s52, s{S_HH}, 7\ns_lshl_b32 s{S_XO}, s52, 14\ns_lshl_b32 s{S_M0X}, s52, 10\ns_add_u32 s{S_M0X}, s{S_M0X}, {XREG}")
        e(f"s_mul_i32 s52, s{S_HH}, 6\ns_lshl_b32 s{S_XO2}, s52, 14\ns_add_u32 s{S_XO2}, s{S_XO2}, {14*16384}")
        e(f"s_lshl_b32 s{S_M0X2}, s52, 10\ns_add_u32 s{S_M0X2}, s{S_M0X2}, {XREG}")
    e(f"s_mul_i32 s52, s{S_B}, 425984\ns_lshl_b32 s54, s{S_HP}, 9")
    e("s_mov_b32 s10, 425984\ns_mov_b32 s11, 0x20000\ns_mov_b32 s15, 0x20000")
    e(f"s_sub_u32 s14, {8388608+4096}, s54")
    e("s_waitcnt lgkmcnt(0)")
    e("s_add_u32 s8, s40, s52\ns_addc_u32 s9, s41, 0")
    e("s_add_u32 s12, s46, s54\ns_addc_u32 s13, s47, 0\ns_sub_u32 s12, s12, 4096\ns_subb_u32 s13, s13, 0")
    e("s_cmp_eq_u32 s53, 1\ns_cbranch_scc1 L1_p1")
    head, _, _ = finalize_straight(P.ins, tag="k1head")
    out = list(head)
    for p in range(2):
        out += gen_path(p, head, opt)
    out.append(Ins("L1_end:")); out.append(Ins("s_endpgm"))
    Q = Prog(); Q.ins = out
    return Q.text(), DESC.format(name=name)

def setup2(p, opt):
    P = Prog(); e = P.e
    L = V_LANE
    t0, t1, t2, t3 = V_T, V_T + 1, V_T + 2, V_T + 3
    kv = (42, 43) if p == 0 else (44, 45)
    e(f"s_lshl_b32 s52, s{S_B}, 5\ns_lshl_b32 s54, s{S_HP}, 1\ns_add_u32 s52, s52, s54\ns_add_u32 s52, s52, s{S_HH}")
    if opt.get("kvrot", 1) == 1: e(f"s_lshr_b32 s54, s52, 5\ns_mul_i32 s54, s54, 11\ns_add_u32 s54, s54, s52\ns_and_b32 s54, s54, 31\ns_lshl_b32 s{S_KX}, s54, 13")
    else: e(f"s_mov_b32 s{S_KX}, 0")
    if opt.get("kvsame"): e(f"s_mov_b32 s52, s{S_HH}")
    e("s_lshl_b32 s54, s52, 18")
    e("s_add_u32 s72, s42, s54\ns_addc_u32 s73, s43, 0\ns_mov_b32 s74, 262144\ns_mov_b32 s75, 0x20000")
    e(f"s_add_u32 s16, s{kv[0]}, s54\ns_addc_u32 s17, s{kv[1]}, 0\ns_mov_b32 s18, 262144\ns_mov_b32 s19, 0x20000")
    e(f"s_mul_i32 s52, s{S_B}, {WS_O_BYTES_PER_B}")
    e(f"s_add_u32 s20, s4, s52\ns_addc_u32 s21, s5, 0\ns_mov_b32 s22, {WS_O_BYTES_PER_B}\ns_mov_b32 s23, 0x20000")
    e("s_mov_b32 s56, s6\ns_mov_b32 s57, s7\ns_mov_b32 s58, 8388608\ns_mov_b32 s59, 0x20000")
    e(f"s_lshl_b32 s{S_M0KV}, s{S_WAVE}, 13")
    e(f"s_mov_b32 s78, 256\ns_mov_b32 s79, 0x20000\ns_lshl_b32 s80, s{S_B}, 4")
    e(f"v_and_b32 v{V_QRW}, 1, v{t1}\nv_mul_u32_u24 v{V_QRW}, 8200, v{V_QRW}")
    e(f"v_lshrrev_b32 v{V_QRX}, 1, v{t1}\nv_lshl_add_u32 v{V_QRW}, v{V_QRX}, 12, v{V_QRW}")
    e(f"v_and_b32 v{V_QRX}, 15, v{L}\nv_lshl_add_u32 v{V_QRW}, v{V_QRX}, 4, v{V_QRW}")
    e(f"s_lshl_b32 s54, s{S_HH}, 11\nv_add_u32 v{V_QRW}, s54, v{V_QRW}")
    e(f"v_and_b32 v{t3}, 1, v{t0}\nv_lshlrev_b32 v{t3}, 1, v{t3}\nv_xor_b32 v{t3}, v{t3}, v{t1}\nv_lshlrev_b32 v{t3}, 4, v{t3}")
    e(f"v_and_b32 v{V_QRX2}, 7, v{L}\nv_lshl_add_u32 v{V_QRX2}, v{V_QRX2}, 6, v{t3}")
    e(f"v_lshrrev_b32 v{V_QRX}, 3, v{V_QRX}\nv_lshl_add_u32 v{V_QRX}, v{V_QRX}, 10, v{V_QRX2}")
    e(f"v_add_u32 v{V_QRX}, {XREG}, v{V_QRX}\nv_add_u32 v{V_QRX2}, {SLOT}, v{V_QRX}")
    e(f"v_mov_b32 v{V_BW}, v{V_QRW}\nv_mov_b32 v{V_BX}, v{V_QRX}")
    e(f"v_lshl_add_u32 v{V_KA}, v{t0}, 10, v{t3}\nv_lshl_add_u32 v{V_KA}, v{t2}, 6, v{V_KA}")
    e(f"s_lshl_b32 s54, s{S_HH}, 14\ns_add_u32 s54, s54, {2*SLOT}\nv_add_u32 v{V_KA}, s54, v{V_KA}")
    e(f"v_lshlrev_b32 v{V_VA0}, 10, v{t1}\nv_lshl_add_u32 v{V_VA0}, v{t0}, 6, v{V_VA0}\nv_lshl_add_u32 v{V_VA0}, v{t2}, 3, v{V_VA0}")
    e(f"s_add_u32 s54, s54, 8192\nv_add_u32 v{V_VA0}, s54, v{V_VA0}")
    e(f"v_and_b32 v{t3}, 1, v{t1}\nv_lshl_add_u32 v{V_VA0}, v{t3}, 5, v{V_VA0}\nv_xor_b32 v{V_VA1}, 32, v{V_VA0}")
    e(f"v_lshlrev_b32 v{V_KV}, 8, v{t0}\nv_lshl_add_u32 v{V_KV}, v{t1}, 6, v{V_KV}\nv_lshl_add_u32 v{V_KV}, v{t2}, 4, v{V_KV}")
    e(f"v_xor_b32 v{V_KV+1}, 32, v{V_KV}\nv_lshlrev_b32 v{V_PF}, 7, v{L}")
    e(f"v_lshlrev_b32 v{t3}, 4, v{L}\nv_add_u32 v{t3}, s{S_M0KV}, v{t3}")
    for t in range(4): e(f"v_add_u32 v{V_RW+t}, {((2+t)%5)*SLOT}, v{t3}")
    e(f"s_mov_b32 s{S_DST}, 0\ns_mov_b32 s{S_RD}, 0\ns_mov_b32 s{S_KA}, 0\ns_mov_b32 s{S_KO}, s{S_KX}\ns_or_b32 s{S_KO2}, s{S_KX}, 4096\ns_mov_b32 s{S_FLAG}, 0\ns_mov_b32 s{S_PREV}, {4*SLOT}")
    return [i.text for i in P.ins]

def gen_path(p, head, opt):
    verbose = opt.get("verbose", False)
    KVF = opt.get("kvflags", "nt")
    NR = opt.get("nr", 4)
    nxa = 4 if p == 0 else 3
    tag = f"p{p}"
    out = []
    vmq = []
    def vm_wait(tags):
        last = max((k for k, t in enumerate(vmq) if t in tags), default=None)
        if last is None: return 63
        return min(63, len(vmq) - 1 - last)
    role = opt.get("qrole")
    def dmaW(s, slot):
        if role and p == 1: return []
        L = [f"s_add_u32 m0, s{S_M0W}, {slot}"]
        for i in range(4): L.append(f"buffer_load_dwordx4 v{V_QW+i}, s[12:15], s{S_WO} offen offset:{i*1024} {opt.get('wqf','')} lds")
        vmq.extend([("W", s)] * 4)
        if role:
            L += [f"s_add_u32 m0, m0, 8200", f"s_add_u32 s70, s{S_WO}, 65536"]
            for i in range(4): L.append(f"buffer_load_dwordx4 v{V_QW+i}, s[12:15], s70 offen offset:{i*1024} {opt.get('wqf','')} lds")
            vmq.extend([("W", s)] * 4)
        L.append(f"s_add_u32 s{S_WO}, s{S_WO}, 262144")
        return L
    def dmaX(which, sig, slot):
        if role == 1 and p == 1: return []
        if role == 2 and p == 0: return []
        n = nxa if which == "A" else 3
        if role: n = 7 if which == "A" else 6
        m0r, so = (S_M0X, S_XO) if which == "A" else (S_M0X2, S_XO2)
        L = [f"s_add_u32 m0, s{m0r}, {slot}"]
        for i in range(min(n, 4)): L.append(f"buffer_load_dwordx4 v{V_QX+i}, s[8:11], s{so} offen offset:{i*1024} {opt.get('xf','')} lds")
        if n > 4:
            L += [f"s_add_u32 m0, m0, 4096", f"s_add_u32 s70, s{so}, 65536"]
            for i in range(n - 4): L.append(f"buffer_load_dwordx4 v{V_QX+i}, s[8:11], s70 offen offset:{i*1024} {opt.get('xf','')} lds")
        L.append(f"s_add_u32 s{so}, s{so}, 128")
        vmq.extend([("X" + which, sig)] * n)
        return L
    KVADV = [f"s_add_u32 s{S_KA}, s{S_KA}, 8192", f"s_xor_b32 s{S_KO}, s{S_KA}, s{S_KX}", f"s_or_b32 s{S_KO2}, s{S_KO}, 4096"]
    KVRST = f"s_mov_b32 s{S_KA}, 0\ns_mov_b32 s{S_KO}, s{S_KX}\ns_or_b32 s{S_KO2}, s{S_KX}, 4096"
    def dmaKV(base, t, track=True):
        L = [f"s_add_u32 m0, s{S_M0KV}, {base}"]
        for i in range(4): L.append(f"buffer_load_dwordx4 v{V_KV+(i&1)}, s[16:19], s{S_KO} offen offset:{i*1024} {KVF} lds")
        L.append("s_add_u32 m0, m0, 4096")
        for i in range(4): L.append(f"buffer_load_dwordx4 v{V_KV+(i&1)}, s[16:19], s{S_KO2} offen offset:{i*1024} {KVF} lds")
        L += KVADV
        if track: vmq.extend([("KV", t)] * 8)
        return L
    def regKV(k):
        t, i = divmod(k, 8)
        L = [f"buffer_load_dwordx4 {ar(RREG(t,i))}, v{V_KV+(i&1)}, s[16:19], s{S_KO if i < 4 else S_KO2} offen offset:{(i&3)*1024} {KVF}"]
        if i == 7: L += KVADV
        vmq.append(("R", t))
        return L
    def wrKV(t): return [f"ds_write_b128 v{V_RW+t}, {ar(RREG(t,i))} offset:{i*1024}" for i in range(8)]
    def mt_of(c): return 6 * p + c if c < 6 else 12
    def readQ(s):
        buf = s % 2; kh = s % 2
        order = [f"ds_read_b64_tr_b16 {ar(QA(buf,j2,u)+2*uk,2)}, v{V_QRW} offset:{uk*1024+j2*256+u*8}"
                 for j2 in range(4) for u in range(2) for uk in range(2)]
        xs = []
        for c in range(7):
            mt = mt_of(c)
            if mt < 7: xs.append(f"ds_read_b128 {ar(QB(buf,c))}, v{V_QRX} offset:{mt*2048+kh*512}")
            else: xs.append(f"ds_read_b128 {ar(QB(buf,c))}, v{V_QRX2} offset:{(mt-7)*2048+kh*512}")
        return order[:2] + xs + order[2:]
    def adv_rd(s):
        L = ring_next(S_RD) + [f"v_add_u32 v{V_QRW}, s{S_RD}, v{V_BW}"]
        if (s + 1) % 2 == 0:
            L += [f"v_add_u32 v{V_QRX}, s{S_RD}, v{V_BX}", f"s_add_u32 s{S_T}, s{S_RD}, {SLOT}",
                  f"s_cmp_eq_u32 s{S_T}, {SLOT*NSLOT}\ns_cselect_b32 s{S_T}, 0, s{S_T}", f"v_add_u32 v{V_QRX2}, s{S_T}, v{V_BX}"]
        return L
    def need(s): return {("W", s), ("XA", s // 2), ("XB", s // 2)}
    P = Prog(); e = P.e
    e(f"L1_p{p}:")
    P.extend(dmaW(0, 0)); P.extend(dmaX("A", 0, 0)); P.extend(dmaX("B", 0, SLOT)); P.extend(dmaW(1, SLOT))
    P.extend(setup2(p, opt))
    if opt.get("qpf"):
        e(f"s_mov_b32 s69, {opt.get('qpf0',5)*8192}\ns_xor_b32 s68, s69, s{S_KX}\nv_lshlrev_b32 v228, 6, v{V_LANE}")
    if opt.get("early", 1) >= 1:
        P.extend(dmaW(2, 2 * SLOT)); P.extend(dmaX("A", 1, 2 * SLOT)); P.extend(dmaX("B", 1, 3 * SLOT))
    w0 = vm_wait(need(0))
    if opt.get("cpf", True):
        e(f"s_lshr_b32 s{S_PFO}, s2, 3\ns_lshl_b32 s{S_PFO}, s{S_PFO}, 2\ns_add_u32 s{S_PFO}, s{S_PFO}, s{S_WAVE}")
        if opt.get("thin", True):
            pf = code_pf(opt.get("kname", "attn_kernel"), "L_code_end", S_PFO, 226, V_KV)
            pf[1] = f"v_lshl_add_u32 v226, s{S_PFO}, 10, v{V_KV}"
            P.extend(pf)
        else:
            e(f"s_and_b32 s{S_PFO}, s{S_PFO}, 15")
            P.extend(code_pf(opt.get("kname", "attn_kernel"), "L_code_end", S_PFO, 226, V_PF))
        vmq.append(("T", "code")); w0 = min(63, w0 + 1)
    e(f"s_waitcnt vmcnt({w0})\ns_barrier")
    P.extend(stamp(1, opt))
    P.extend(readQ(0)); P.extend(adv_rd(0))
    if opt.get("early", 1) < 1:
        P.extend(dmaW(2, 2 * SLOT)); P.extend(dmaX("A", 1, 2 * SLOT)); P.extend(dmaX("B", 1, 3 * SLOT))
    seq, lg, vm = finalize_straight(P.ins, head, tag=tag + "pro", verbose=verbose)
    out += seq
    rs0, rs1 = opt.get("rstages", (10, 26))
    rsched = {}
    for k in range(NR * 8): rsched.setdefault(rs0 + (k * (rs1 - rs0)) // (NR * 8), []).append(k)
    LD = opt.get("lead", 4)
    kv_at = {0: (27, "cur"), 1: (29, "prev"), 2: (29, "cur"), 3: (31, "prev")}
    kv_at = {t: v for t, v in kv_at.items() if t <= LD}
    if opt.get("kvlate") == 1 and LD == 2: kv_at = {0: (27, "cur"), 1: (29, "prev"), 2: (30, "prev")}
    if opt.get("kvst"):
        kv_at = {t: (st, ((2 + t) % 5) * SLOT) for t, st in enumerate(opt["kvst"]) if st < 32}
        for t, (st, _) in kv_at.items(): assert st >= (27, 29, 29, 31)[t]
    def qstage(s):
        buf = s % 2
        pl = Place()
        wtags = need(s + 1) if s < 31 else set()
        wr = []
        for t, (st, which) in kv_at.items():
            if st == s and t < NR: wtags = wtags | {("R", t)}; wr += wrKV(t)
        pl.add(None, 0, [f"s_waitcnt vmcnt({vm_wait(wtags)}) lgkmcnt(0)", "s_barrier"])
        for j2 in range(4):
            for u in range(2):
                for c in range(7):
                    if c == 6 and (j2 >> 1) != p: continue
                    d = vr(QACC(c, j2, u, p))
                    pl.add(mf(d, ar(QA(buf, j2, u)), ar(QB(buf, c)), "0" if s == 0 else d), cap=2)
        dm = []
        cur, prev = f"s{S_DST}", f"s{S_PREV}"
        if s == 0: dm += dmaW(3, 3 * SLOT) + dmaW(4, 4 * SLOT)
        sig = (s + 4) // 2
        if sig <= 15: dm += dmaX("A" if s % 2 == 0 else "B", sig, prev)
        if s + 5 <= 31: dm += dmaW(s + 5, cur)
        for k in rsched.get(s, []): dm += regKV(k)
        for t, (st, which) in kv_at.items():
            if st == s and t >= NR: dm += dmaKV(cur if which == "cur" else prev if which == "prev" else which, t)
        q0, q1 = opt.get("qpfr", (2, 24))
        if opt.get("qpf") and role and p == 1 and q0 <= s < q1:
            n = opt["qpf"]
            for q in range(n):
                isv = (s % 2) if n == 1 else (q % 2)
                srd = "s[16:19]" if isv else "s[72:75]"
                dm += [f"buffer_load_dword v255, v228, {srd}, s68 offen {opt.get('qpff','')}"]; vmq.append(("T", "kv"))
                if isv: dm += [f"s_add_u32 s69, s69, 4096", f"s_xor_b32 s68, s69, s{S_KX}"]
        if opt.get("opre") and (p == 1 or role != 1) and 2 <= s < 26:
            n = opt["opre"]; share = 52 if role == 1 else 26
            if s == 2:
                dm += [f"s_lshl_b32 s74, s{S_HP}, 1\ns_add_u32 s74, s74, s{S_HH}", f"s_mul_i32 s74, s74, {52*1024}"]
                if role != 1 and p == 1: dm += [f"s_add_u32 s74, s74, {26*1024}"]
                dm += [f"s_add_u32 s75, s74, {(share-n)*1024}", f"v_lshlrev_b32 v229, 4, v{V_LANE}"]
            for q in range(n):
                dm += [f"buffer_store_dwordx4 v[244:247], v229, s[20:23], s74 offen offset:{q*1024} {opt.get('osf','')}"]; vmq.append(("T", "o"))
            dm += [f"s_add_u32 s74, s74, {n*1024}", "s_min_u32 s74, s74, s75"]
        if opt.get("wothin") and 2 <= s < 26 and s % 2 == opt["wothin"] - 1:
            if s < 4: dm += [f"s_lshl_b32 s38, s2, 2\ns_add_u32 s38, s38, s{S_WAVE}", "s_lshl_b32 s38, s38, 13", "s_add_u32 s71, s38, 7168"]
            dm += [f"buffer_load_dword v255, v{V_KV}, s[56:59], s38 offen", "s_add_u32 s38, s38, 1024", "s_min_u32 s38, s38, s71"]; vmq.append(("T", "wo"))
        if s == opt.get("wost"):
            dm += [f"s_lshl_b32 s38, s2, 2\ns_add_u32 s38, s38, s{S_WAVE}", "s_lshl_b32 s38, s38, 13", f"buffer_load_dword v255, v{V_PF}, s[56:59], s38 offen"]; vmq.append(("T", "wo"))
        if s in opt.get("cpf2", []):
            dm += ["global_load_dword v255, v[226:227], off"]; vmq.append(("T", "code"))
        dm += [f"s_mov_b32 s{S_PREV}, s{S_DST}"] + ring_next(S_DST)
        if any(isvm(x) for x in dm): pl.spread(1, 50, dm, vmcap=1)
        else: pl.put(40, dm)
        pos = 1
        if s < 31:
            pos = pl.put(1, readQ(s + 1), step=1)
            pos = pl.put(pos + 1, adv_rd(s + 1))
        if wr: pl.put(pos + 1, wr, step=1)
        res = pl.ins()
        abl = opt.get("abl", "")
        if 4 <= s < 26:
            if "nodma" in abl: res = [x for x in res if x.kind != "dma"]
            if "noread" in abl: res = [x for x in res if x.kind != "dsr"]
            if "nobar" in abl: res = [x for x in res if x.op != "s_barrier"]
            if "chain" in abl:
                k = 0; r2 = []
                ch = int(abl.split("chain")[1][0])
                for x in res:
                    if x.kind == "mfma":
                        ops = x.text.split(None, 1)[1].split(", ")
                        if k % ch == 0: dkeep = ops[0]
                        x = Ins(mf(dkeep, ops[1], ops[2], dkeep)); k += 1
                    r2.append(x)
                res = r2
        return res
    stages = [qstage(s) for s in range(32)]
    txt = lambda L: [i.text for i in L]
    LO = opt.get('lo', 4); HI = LO
    while HI + 2 <= 32 and txt(stages[HI]) == txt(stages[LO]) and txt(stages[HI + 1]) == txt(stages[LO + 1]): HI += 2
    if opt.get("qunroll"): HI = LO + 2
    if p == 0: print("qproj loop stages", LO, HI)
    seq = []
    for s in range(LO): seq += stages[s]
    seq += I(stamp(2, opt)) + [Ins(f"s_mov_b32 s{S_CNT}, {(HI-LO)//2}")]
    stag = opt.get("stag", 0)
    if stag:
        if opt.get("emu"):
            seq += I([f"s_bitcmp1_b32 s2, 3", f"s_cselect_b32 s{S_CNT}, {(HI-LO)//2+opt['emu'][1]}, {(HI-LO)//2+opt['emu'][0]}",
                      "s_cselect_b32 s81, 4, 0", "s_add_u32 s82, s80, 4", "s_add_u32 s80, s80, s81"])
        elif opt.get("stagall"):
            seq += I([f"s_mov_b32 s{S_CNT}, {(HI-LO)//2+stag}"])
        elif opt.get("stagl", 1) == 1:
            seq += I([f"s_bitcmp1_b32 s2, {opt.get('stagbit',3)}", f"s_cselect_b32 s{S_CNT}, {(HI-LO)//2+stag}, s{S_CNT}"])
        else:
            seq += I([f"s_lshr_b32 s66, s2, 3", f"s_and_b32 s66, s66, {opt['stagl']}", f"s_mul_i32 s66, s66, {stag}", f"s_add_u32 s{S_CNT}, s{S_CNT}, s66"])
        stages[LO + 1] = stages[LO + 1] + I([f"s_and_b32 s{S_WO}, s{S_WO}, 0x3fffff", f"s_and_b32 s{S_XO}, s{S_XO}, 0xfffffbff", f"s_and_b32 s{S_XO2}, s{S_XO2}, 0xfffffbff"])
    seq, lg, vm = finalize_straight(seq, out, lg, vm, tag=tag + "q01", verbose=verbose)
    out += seq
    body = [Ins(".p2align 6"), Ins(f"L1_q{p}:")] + stages[LO] + stages[LO + 1] + \
           I([f"s_sub_u32 s{S_CNT}, s{S_CNT}, 1", f"s_cmp_lg_u32 s{S_CNT}, 0", f"s_cbranch_scc1 L1_q{p}"])
    body, lg, vm = finalize_loop(body, out, lg, vm, tag=tag + "qloop", verbose=verbose)
    out += body
    seq = []
    for s in range(HI, 32):
        if s == 26: seq += I(stamp(3, opt))
        seq += stages[s]
    TILES = [6, 0, 1, 2, 3, 4, 5] if p == 0 else [0, 1, 2, 3, 4, 5]
    U = len(TILES)
    E = Prog(); e = E.e
    E.extend(stamp(4, opt))
    e(f"s_mov_b32 s{S_T}, {f32bits(QSCALE):#x}\ns_mov_b32 s{S_T+1}, {f32bits(QSCALE):#x}")
    if p == 0: e(f"v_subrev_u32 v{V_T}, {SLOT}, v{V_RW}")
    else: e(f"v_subrev_u32 v{V_T}, {SLOT+8192}, v{V_RW}")
    for c in [6, 0, 1, 2, 3, 4, 5]:
        for j2 in range(4):
            if c == 6 and (j2 >> 1) != p: continue
            r = QACC(c, j2, 0, p)
            for h in range(0, 8, 2): e(f"v_pk_mul_f32 v[{r+h}:{r+h+1}], v[{r+h}:{r+h+1}], s[{S_T}:{S_T+1}]")
            for h in range(4): e(f"v_cvt_pk_bf16_f32 v{r+h}, v{r+2*h}, v{r+2*h+1}")
            if c == 6 and p == 1: e(f"ds_write_b128 v{V_T}, {vr(r)} offset:{(j2&1)*1024}")
            else:
                for h in range(4): e(f"v_accvgpr_write_b32 a{Q_(c,j2)+h}, v{r+h}")
    e(f"v_mov_b32 v{V_T+2}, 0x3f803f80")
    for h in range(4): e(f"v_accvgpr_write_b32 a{ONES+h}, v{V_T+2}")
    e(f"s_waitcnt vmcnt({vm_wait({('KV',0)})}) lgkmcnt(0)\ns_barrier")
    E.extend(stamp(5, opt))
    def readK(kts=(0, 1)):
        return [f"ds_read_b128 {ar(K_(kt,ds))}, v{V_KA} offset:{kt*4096+ds*256}" for kt in kts for ds in range(4)]
    def readV(dt):
        return [f"ds_read_b64_tr_b16 {ar(V_(dt)+2*kt,2)}, v{V_VA0+(dt&1)} offset:{kt*4096+(dt>>1)*256}" for kt in range(2)]
    if p == 0:
        for i in range(2): e(f"ds_read_b128 {ar(Q_(6, 2+i))}, v{V_T} offset:{i*1024}")
    E.extend(readK())
    if p == 0: e("s_waitcnt lgkmcnt(8)")
    MK = opt.get("mkeys", 2)
    def qk_all(nk):
        L = []
        for c in sorted(TILES):
            for kt in range(nk):
                for ds in range(4):
                    d = vr(c * 8 + kt * 4)
                    L.append(mf(d, ar(K_(kt, ds)), ar(Q_(c, ds)), "0" if ds == 0 else d))
        return L
    pl = Place()
    for m in qk_all(MK): pl.add(m, 2)
    ex = []
    for t in range(LD + 1):
        if t not in kv_at: ex += dmaKV(((2 + t) % 5) * SLOT, t)
    ex += [f"s_lshl_b32 s{S_PFO}, s2, 2\ns_add_u32 s{S_PFO}, s{S_PFO}, s{S_WAVE}", f"s_lshl_b32 s{S_PFO}, s{S_PFO}, 13"]
    if any(isvm(x) for x in ex): pl.spread(0, len(pl.m) - 2, ex, vmcap=1)
    else: pl.put(18, ex)
    pl.put(1, [x for dt in range(8) for x in readV(dt)], step=1)
    E.ins += pl.ins()
    for c in sorted(TILES):
        r = c * 8
        if MK == 2: e(f"v_max3_f32 v{r}, v{r}, v{r+1}, v{r+2}\nv_max3_f32 v{r+3}, v{r+3}, v{r+4}, v{r+5}\nv_max3_f32 v{r}, v{r}, v{r+6}, v{r+7}\nv_max_f32 v{r}, v{r}, v{r+3}")
        else: e(f"v_max3_f32 v{r}, v{r}, v{r+1}, v{r+2}\nv_max_f32 v{r}, v{r}, v{r+3}")
    seq += E.ins
    seq, lg, vm = finalize_straight(seq, out, lg, vm, tag=tag + "qtail", verbose=verbose)
    out += seq
    E = Prog(); e = E.e
    e(f"L1_m{p}:")
    e("s_waitcnt lgkmcnt(0)")
    for c in TILES: e(f"v_mov_b32 v{c*8+1}, v{c*8}")
    for c in TILES: e(f"v_permlane32_swap_b32 v{c*8}, v{c*8+1}")
    for c in TILES: e(f"v_max_f32 v{c*8}, v{c*8}, v{c*8+1}\nv_mov_b32 v{c*8+1}, v{c*8}")
    for c in TILES: e(f"v_permlane16_swap_b32 v{c*8}, v{c*8+1}")
    for c in TILES: e(f"v_max_f32 v{c*8}, v{c*8}, v{c*8+1}")
    for c in TILES:
        for h in range(4): e(f"v_sub_f32 v{NEGM(c)+h}, 0, v{c*8}")
    e(f"s_mov_b32 s{S_DST}, {((3+LD)%5)*SLOT}\ns_mov_b32 s{S_RD}, {2*SLOT}")
    E.extend(stamp(6, opt))
    pre_a = E.ins

    T0 = opt.get("t0", 30)
    groups = opt.get("groups", [[[6, 0, 1, 2, 3, 4, 5]], [[0, 1, 2, 3, 4, 5]]])[p]
    visits = [(t, TILES) for t in range(T0)] + [(t, g) for g in groups for t in range(T0, 32)]
    units = [(t, c) for t, g in visits for c in g]
    vend = []
    for t, g in visits: vend.append((vend[-1] if vend else -1) + len(g))
    N = len(units)
    pl = Place()
    slot_start = []
    for n in range(N + 2):
        slot_start.append(len(pl.m))
        qk = units[n] if n < N else None
        sm = units[n - 1] if 1 <= n <= N else None
        pv = units[n - 2] if n >= 2 else None
        def Qm(kt, ds):
            if not qk: return None
            d = vr(S_(n % 2, kt))
            return mf(d, ar(K_(kt, ds)), ar(Q_(qk[1], ds)), vr(NEGM(qk[1])) if ds == 0 else d)
        fst = pv is not None and pv[0] == 0
        def Pm(dt):
            if not pv: return None
            d = O_(pv[1], dt)
            return mf(d, ar(V_(dt)), vr(P_(n % 2)), "0" if fst else d)
        def Lm():
            if not pv: return None
            d = ar(L_(pv[1]))
            return mf(d, ar(ONES), vr(P_(n % 2)), "0" if fst else d)
        sb = (n - 1) % 2
        def Ex(i): return [f"v_exp_f32 v{S_(sb,0)+i}, v{S_(sb,0)+i}"] if sm else []
        def Cv(i): return [f"v_cvt_pk_bf16_f32 v{P_(sb)+i}, v{S_(sb,0)+2*i}, v{S_(sb,0)+2*i+1}"] if sm else []
        pl.add(None, 0)
        for ds in range(4): pl.add(Qm(0, ds), 0, Ex(ds))
        pl.add(Pm(0), 1, Cv(0)); pl.add(Pm(1), 1, Cv(1))
        pl.add(Pm(2), 2); pl.add(Pm(3), 2)
        pl.add(None, 0)
        for ds in range(4): pl.add(Qm(1, ds), 0, Ex(4 + ds))
        pl.add(Pm(4), 1, Cv(2)); pl.add(Pm(5), 1, Cv(3))
        pl.add(Pm(6), 2); pl.add(Pm(7), 2)
        pl.add(Lm(), 2)
    slot_start.append(len(pl.m))
    G = lambda n, k: slot_start[n] + k
    at = lambda n, k, items: pl.at(G(n, k), items)
    kx, vx = opt.get("kx", 0), opt.get("vx", 0)
    slot_of = lambda t: ((2 + t) % 5) * SLOT
    for vi in range(len(visits) - 1):
        n = vend[vi]
        tail = vi + 1 > T0
        k0 = readK((0,)); k1 = readK((1,))
        W = (lambda nn, kk, x: None) if tail else (lambda nn, kk, x: at(nn, kk, [x]))
        if kx == 0 or tail:
            at(n, 7, k0[:2]); at(n, 8, k0[2:]); at(n, 16, k1[:2]); at(n, 17, k1[2:])
            W(n, 18, "s_waitcnt lgkmcnt(4)")
            W(n + 1, 8, "s_waitcnt lgkmcnt(0)")
        else:
            at(n + 1, 0, k0 + k1 + [f"s_waitcnt lgkmcnt({4 if kx == 1 else 0})"])
            if kx == 1: at(n + 1, 8, ["s_waitcnt lgkmcnt(0)"])
        m = n + 2
        v = [readV(dt) for dt in range(8)]
        if vx == 0 or tail:
            at(m, 5, v[0][:1]); at(m, 6, v[0][1:]); at(m, 7, v[1]); at(m, 8, v[2])
            at(m, 14, v[3][:1]); at(m, 15, v[3][1:]); at(m, 16, v[4]); at(m, 17, v[5]); at(m, 18, v[6])
            W(m + 1, 4, "s_waitcnt lgkmcnt(6)")
            at(m + 1, 5, v[7][:1]); at(m + 1, 6, v[7][1:])
            W(m + 1, 8, "s_waitcnt lgkmcnt(2)")
            W(m + 1, 16, "s_waitcnt lgkmcnt(0)")
        else:
            at(m + 1, 0 if vx == 1 else 4, [x for f in v for x in f])
            at(m + 1, 4, [f"s_waitcnt lgkmcnt({8 if vx < 3 else 0})"])
            if vx < 3: at(m + 1, 8, ["s_waitcnt lgkmcnt(0)"])
        if not tail:
            T4 = S_T + 4
            at(n - 1, 5, [f"s_add_u32 s{T4}, s{S_RD}, {SLOT}"])
            at(n - 1, 7, [f"s_cmp_eq_u32 s{T4}, {SLOT*NSLOT}\ns_cselect_b32 s{T4}, 0, s{T4}"])
            at(n - 1, 14, [f"s_sub_u32 s{S_DELTA}, s{T4}, s{S_RD}"]); at(n - 1, 15, [f"s_mov_b32 s{S_RD}, s{T4}"])
            adv = lambda r: f"v_add_u32 v{r}, s{S_DELTA}, v{r}"
        else:
            d = slot_of(visits[vi + 1][0]) - slot_of(visits[vi][0])
            adv = lambda r: f"v_add_u32 v{r}, {d}, v{r}" if d >= 0 else f"v_subrev_u32 v{r}, {-d}, v{r}"
        pl.g[G(n, 5)].insert(len(pl.g[G(n, 5)]), adv(V_KA)); pl.cap[G(n, 5)] -= 1
        at(n + 1, 14, [adv(V_VA0)]); at(n + 1, 15, [adv(V_VA1)])
    BP = opt.get("bp", 3)
    NIT = (T0 - 2) // 2
    assert (T0 - 2) % 2 == 0
    for j in range(31):
        if j < T0:
            g = G(U * j + BP, 0); nxt = G(U * (j + 1) + BP, 0) if j + 1 < T0 else G(vend[j + 1], 0)
        else:
            g = G(vend[j], 0)
        if j >= T0 or j == 30:
            w = 0 if j == 30 else min(8 * (LD - 1), vm_wait({('KV', j + 1)}))
            pl.g[g] += [f"s_waitcnt vmcnt({w})", "s_barrier"]
            if j == 30:
                pf = [f"buffer_load_dword v255, v{V_PF}, s[56:59], s{S_PFO} offen"]
                if opt.get("wost") is None and not opt.get("wothin"): pl.put(g + 1, pf)
            continue
        assert j + LD + 1 >= 31 or j + 1 < T0 or True
        pl.g[g] += [f"s_waitcnt vmcnt({min(8 * (LD - 1), vm_wait({('KV', j + 1)}))})", "s_barrier"]
        dm = dmaKV(f"s{S_DST}", j + LD + 1) + ring_next(S_DST)
        if opt.get("dmadelay") is None:
            pl.spread(g, min(nxt, G(U * (j + 1), 0)), dm, vmcap=opt.get("vmcap", 2), group=opt.get("dmagroup", 8))
        else:
            full = G(U * (j + 1) + BP, 0)
            lo = g + int((full - g) * opt["dmadelay"])
            pl.spread(lo, min(full, max(nxt, lo + 60)), dm, vmcap=1, group=8)
    assert T0 - 1 + LD + 1 >= 31, "all steps must have been issued before the tail"
    assert T0 - 1 + LD + 1 - 5 < T0, "dummy loads must not overwrite live tail slots"
    R_ = lambda c: NEGM(c)
    V_SA, V_SUM = 253, 254
    def norm_store(r, rc, j, mt, packed):
        L = []
        if packed:
            for h in range(0, 8, 2): L.append(f"v_pk_mul_f32 v[{r+h}:{r+h+1}], v[{r+h}:{r+h+1}], v[{rc}:{rc+1}] op_sel_hi:[1,0]")
        else:
            for h in range(8): L.append(f"v_mul_f32 v{r+h}, v{r+h}, v{rc}")
        for h in range(4): L.append(f"v_cvt_pk_bf16_f32 v{r+h}, v{r+2*h}, v{r+2*h+1}")
        L.append(f"s_add_u32 s{S_T+5}, s{S_T+3}, {(j*13+mt)*1024}")
        L.append(f"buffer_store_dwordx4 {vr(r)}, v{V_SA}, s[20:23], s{S_T+5} offen {opt.get('osf','')}")
        return L
    done = []
    def finish(c, packed):
        L = [f"v_accvgpr_read_b32 v{R_(c)+2}, a{L_(c)}", f"v_rcp_f32 v{R_(c)}, v{R_(c)+2}",
             f"v_add_f32 v{V_SUM}, v{V_SUM}, v{R_(c)+2}" if done else f"v_mov_b32 v{V_SUM}, v{R_(c)+2}"]
        for j in range(4):
            if c < 6: L += norm_store(c * 32 + j * 8, R_(c), j, mt_of(c), packed)
            else:
                stg = done[0] * 32 + j * 8
                L += [f"v_accvgpr_read_b32 v{stg+i}, a{208+8*j+i}" for i in range(8)] + norm_store(stg, R_(c), j, 12, packed)
        done.append(c)
        return L
    at(U * T0, 7, [f"v_lshlrev_b32 v{V_SA}, 4, v{V_LANE}", f"s_lshl_b32 s{S_T+3}, s{S_HP}, 1"])
    at(U * T0, 8, [f"s_add_u32 s{S_T+3}, s{S_T+3}, s{S_HH}", f"s_mul_i32 s{S_T+3}, s{S_T+3}, {4*13*1024}"])
    late = []
    pos = 0
    dens = opt.get("dens", 2)
    order = [n for n, (t, c) in enumerate(units) if t == 31]
    pend6 = None
    for n in order:
        c = units[n][1]
        if c == 6 and not done: pend6 = n; continue
        todo = [c] + ([6] if pend6 is not None else [])
        pend6 = None
        for cc in todo:
            start = G(n + 3, 1) if n + 3 <= N + 1 else len(pl.m)
            if start >= len(pl.m) - 4 or late or not opt.get("prog", 1): late.append(cc); continue
            pos = max(pos, start)
            items = finish(cc, False)
            k = 0
            while k < len(items) and pos < len(pl.m):
                if pl.m[pos]:
                    room = max(pl.cap[pos], 0) + (dens - 2 if pl.cap[pos] > 0 else dens - 2)
                    room = max(room, 0)
                    take = items[k:k + room]; pl.at(pos, take); k += len(take)
                pos += 1
            if k < len(items): pl.at(len(pl.m) - 1, items[k:]); pos = len(pl.m)
    seq = pre_a + pl.ins(0, G(2 * U, 0)) + I(stamp(7, opt)) + [Ins(f"s_mov_b32 s{S_CNT}, {NIT}")]
    seq, lg, vm = finalize_straight(seq, out, lg, vm, tag=tag + "a0", verbose=verbose)
    out += seq
    per = G(4 * U, 0) - G(2 * U, 0)
    for it in range(1, NIT):
        for k in range(per):
            a, b = G(2 * U, 0) + k, G(2 * U, 0) + it * per + k
            assert pl.m[a] == pl.m[b] and pl.g[a] == pl.g[b], (it, k, pl.m[a], pl.m[b], pl.g[a], pl.g[b])
    lst = []
    if opt.get("prof2"):
        lst = I(["s_waitcnt lgkmcnt(0)", "s_memrealtime s[98:99]", "s_memtime s[100:101]", f"s_add_u32 s66, s{S_CNT}, 1", "s_and_b32 s66, s66, 0xfe", "s_sub_u32 s66, 38, s66", "s_add_u32 s67, s66, 1",
                 "s_waitcnt lgkmcnt(0)", "v_mov_b32 v252, s98", f"v_cmp_eq_u32 vcc, s66, v{V_LANE}", "v_cndmask_b32 v251, v251, v252, vcc",
                 "v_mov_b32 v252, s100", f"v_cmp_eq_u32 vcc, s67, v{V_LANE}", "v_cndmask_b32 v251, v251, v252, vcc"])
    body = [Ins(".p2align 6"), Ins(f"L1_a{p}:")] + pl.ins(G(2 * U, 0), G(4 * U, 0)) + lst + \
           I([f"s_sub_u32 s{S_CNT}, s{S_CNT}, 1", f"s_cmp_lg_u32 s{S_CNT}, 0", f"s_cbranch_scc1 L1_a{p}"])
    body, lg, vm = finalize_loop(body, out, lg, vm, tag=tag + "aloop", verbose=verbose)
    out += body
    seq = I(stamp(8, opt)) + pl.ins(G(T0 * U, 0), len(pl.m))
    E = Prog(); e = E.e
    e(f"L1_e{p}:")
    E.extend(stamp(9, opt))
    xs = 139264
    if 6 in late and not done: late = [c for c in late if c != 6][:1] + [6] + [c for c in late if c != 6][1:]
    for c in late: E.extend(finish(c, True))
    e(f"v_lshlrev_b32 v{V_T}, 2, v{V_LANE}\nv_add_u32 v{V_T}, {xs}, v{V_T}\ns_lshl_b32 s{S_T+2}, s{S_WAVE}, 8\nv_add_u32 v236, s{S_T+2}, v{V_T}")
    e(f"ds_write_b32 v236, v{V_SUM}")
    E.extend(stamp(10, opt))
    e("s_waitcnt vmcnt(0) lgkmcnt(0)\ns_barrier")
    for w in range(4): e(f"ds_read_b32 v{216+w}, v{V_T} offset:{w*256}")
    e(f"s_mov_b32 s{S_T+5}, 0x5f800000")
    e("v_add_f32 v216, v216, v217\nv_add_f32 v218, v218, v219\nv_add_f32 v216, v216, v218")
    e(f"v_cmp_ngt_f32 vcc, s{S_T+5}, v216")
    e(f"s_cmp_lg_u32 s{S_FLAG}, 0\ns_cbranch_scc1 L2_entry")
    e(f"s_cbranch_vccz L2_entry")
    seq += E.ins
    seq, lg, vm = finalize_straight(seq, out, lg, vm, tag=tag + "tail", verbose=verbose)
    out += seq
    F = Prog(); e = F.e
    e(f"L1_fb{p}:")
    e("s_waitcnt vmcnt(0) lgkmcnt(0)\ns_barrier")
    back = (2 - (2 + 31) % 5) * SLOT
    assert back < 0
    for r in (V_KA, V_VA0, V_VA1): e(f"v_subrev_u32 v{r}, {-back}, v{r}")
    for c in TILES: e(f"v_mov_b32 v{64+c}, 0xff800000")
    e(KVRST + f"\ns_mov_b32 s{S_CNT}, 32\ns_mov_b32 s{S_FLAG}, 1")
    fpre, _, _ = finalize_straight(F.ins, [], [], [], tag=tag + "fb0")
    F = Prog(); e = F.e
    e(f"L1_fl{p}:")
    F.extend(dmaKV(2 * SLOT, 0, track=False))
    e("s_waitcnt vmcnt(0)\ns_barrier")
    F.extend(readK())
    F.extend(qk_all(2))
    for c in sorted(TILES):
        r = c * 8
        e(f"v_max3_f32 v{r}, v{r}, v{r+1}, v{r+2}\nv_max3_f32 v{r+3}, v{r+3}, v{r+4}, v{r+5}\nv_max3_f32 v{r}, v{r}, v{r+6}, v{r+7}")
        e(f"v_max3_f32 v{64+c}, v{64+c}, v{r}, v{r+3}")
    e("s_barrier")
    e(f"s_sub_u32 s{S_CNT}, s{S_CNT}, 1\ns_cmp_lg_u32 s{S_CNT}, 0\ns_cbranch_scc1 L1_fl{p}")
    fl, _, _ = finalize_loop(F.ins, fpre, [], [], tag=tag + "fbl")
    F = Prog(); e = F.e
    e(KVRST)
    for t in range(LD + 1): F.extend(dmaKV(((2 + t) % 5) * SLOT, t, track=False))
    for c in TILES: e(f"v_mov_b32 v{c*8}, v{64+c}")
    e("s_waitcnt vmcnt(0)\ns_barrier")
    F.extend(readK())
    for dt in range(8): F.extend(readV(dt))
    e(f"s_branch L1_m{p}")
    fpost, _, _ = finalize_straight(F.ins, fl, [], [], tag=tag + "fb2")
    out += fpre + fl + fpost
    return out
```

```python
from asmgen import *

WS_O_BYTES_PER_B = 128 * 13 * 1024

def mf(d, a, b, c):
    return f"v_mfma_f32_16x16x32_bf16 {d}, {a}, {b}, {c}"
def vr(i, n=4): return f"v[{i}:{i+n-1}]"
def ar(i, n=4): return f"a[{i}:{i+n-1}]"

def gen_k2(name="oproj_kernel", opt=None):
    opt = opt or {}
    P = Prog()
    e = P.e
    SLOT = 8448
    WREG = 4 * SLOT
    def acc(c, j2, u, half_local=True):
        if c < 6: return (c * 8 + j2 * 2 + u) * 4
        return (48 + j2 * 2 + u) * 4
    def Bf(i, c): return (i % 4) * 28 + c * 4
    deep = opt.get("deep", 0)
    rov = opt.get("rov", 0)
    def Af(i, j2, u): return 112 + (i if deep and i < 4 else 2 if rov and i == 31 else i % 2) * 32 + (j2 * 2 + u) * 4
    V_OA, V_OB, V_OC = 208, 209, 210
    V_W = 212
    V_RD = 216
    V_T = 220
    from gen_k1 import stamp as stamp0, stamp_store, V_LANE, S_WAVE
    fused = opt.get("fused", False)
    SB = 20 if fused else 0
    def stamp(k, o): return stamp0(k + SB, o)
    if fused:
        e("L2_entry:")
        e(f"s_mov_b32 s26, s{S_WAVE}\nv_mov_b32 v221, v{V_LANE}")
        e("v_mov_b32 v226, 0\nv_mov_b32 v227, 1")
        P.extend(stamp(0, opt))
        e("s_cmp_lg_u32 s26, 0\ns_cbranch_scc1 L2_pub")
        e("s_mov_b64 exec, 1")
        e("buffer_atomic_add v227, v226, s[76:79], s80 offen sc1")
        e("s_mov_b64 exec, -1")
        e("L2_pub:")
    else:
        e(f".p2align 8\n.type {name},@function\n{name}:")
        e("s_cmp_ge_u32 s2, 256\ns_cbranch_scc1 L2_end")
        P.extend(stamp(0, opt))
    e("s_load_dwordx2 s[4:5], s[0:1], 32")
    e("s_load_dwordx2 s[6:7], s[0:1], 40")
    e("s_load_dwordx2 s[24:25], s[0:1], 56")
    if not fused:
        e("v_lshrrev_b32 v220, 6, v0")
        e("v_and_b32 v221, 63, v0")
        e("v_readfirstlane_b32 s26, v220")
    e("s_and_b32 s27, s2, 7")
    e("s_lshr_b32 s28, s2, 3")
    if opt.get("map", 0) != 1:
        e("s_lshr_b32 s29, s27, 1\ns_lshl_b32 s29, s29, 2\ns_lshr_b32 s30, s28, 3\ns_add_u32 s29, s29, s30")
        e("s_and_b32 s30, s27, 1\ns_lshl_b32 s30, s30, 2\ns_lshr_b32 s31, s28, 1\ns_and_b32 s31, s31, 3\ns_add_u32 s30, s30, s31")
    else:
        e("s_lshl_b32 s29, s27, 1\ns_lshr_b32 s30, s28, 4\ns_add_u32 s29, s29, s30")
        e("s_lshr_b32 s30, s28, 1\ns_and_b32 s30, s30, 7")
    e("s_and_b32 s31, s28, 1")
    e("s_waitcnt lgkmcnt(0)")
    e(f"s_mul_i32 s32, s29, {WS_O_BYTES_PER_B}")
    e(f"s_add_u32 s8, s24, s32\ns_addc_u32 s9, s25, 0\ns_mov_b32 s10, {WS_O_BYTES_PER_B}\ns_mov_b32 s11, 0x20000")
    e("s_lshl_b32 s32, s30, 8")
    e("s_add_u32 s12, s4, s32\ns_addc_u32 s13, s5, 0\ns_sub_u32 s14, 8388608, s32\ns_mov_b32 s15, 0x20000")
    e("s_mul_i32 s32, s29, 425984")
    e("s_add_u32 s16, s6, s32\ns_addc_u32 s17, s7, 0\ns_mov_b32 s18, 425984\ns_mov_b32 s19, 0x20000")
    e(f"s_mul_i32 s32, s26, {32*13312}")
    e("s_mul_i32 s33, s31, 6144")
    e("s_add_u32 s33, s33, s32")
    e("v_lshlrev_b32 v222, 4, v221")
    e(f"v_add_u32 v{V_OA}, s33, v222")
    e(f"v_add_u32 v{V_OB}, 4096, v{V_OA}")
    e("s_add_u32 s33, s32, 12288")
    e(f"v_add_u32 v{V_OC}, s33, v222")
    e("v_lshrrev_b32 v223, 2, v221\nv_and_b32 v223, 3, v223\nv_lshlrev_b32 v223, 11, v223")
    e("v_lshrrev_b32 v224, 4, v221\nv_lshlrev_b32 v224, 6, v224")
    e("v_and_b32 v225, 3, v221\nv_lshlrev_b32 v225, 4, v225")
    e("v_add3_u32 v223, v223, v224, v225")
    e("s_lshl_b32 s32, s26, 21")
    e(f"v_add_u32 v{V_W}, s32, v223")
    for i in range(1, 4):
        e(f"v_add_u32 v{V_W+i}, {i*(8*2048-1024)}, v{V_W}")
    e("v_lshrrev_b32 v223, 4, v221")
    e("v_and_b32 v224, 1, v223\nv_mul_u32_u24 v224, 4104, v224")
    e("v_lshrrev_b32 v223, 1, v223\nv_lshlrev_b32 v223, 10, v223")
    e("v_and_b32 v225, 15, v221\nv_lshlrev_b32 v225, 4, v225")
    e("v_add3_u32 v223, v223, v224, v225")
    e(f"s_mul_i32 s34, s26, {WREG}")
    e(f"v_add_u32 v{V_RD}, s34, v223")
    e("s_lshl_b32 s32, s31, 9")
    e(f"v_add_u32 v{V_RD+1}, s32, v{V_RD}")
    e("s_sub_u32 s32, 512, s32")
    e(f"v_add_u32 v{V_RD+2}, s32, v{V_RD}")
    e("s_mov_b32 s36, 0\ns_mov_b32 s37, 0\ns_mov_b32 s38, 8192")
    for k in range(4):
        e(f"s_add_u32 s{40+2*k}, s34, {k*SLOT}\ns_add_u32 s{41+2*k}, s34, {k*SLOT+4104}")
    def loadO(i):
        L = []
        for c in range(7):
            if c < 4: L.append(f"buffer_load_dwordx4 {ar(Bf(i,c))}, v{V_OA}, s[8:11], s36 offen offset:{c*1024} {opt.get('olf','')}")
            elif c < 6: L.append(f"buffer_load_dwordx4 {ar(Bf(i,c))}, v{V_OB}, s[8:11], s36 offen offset:{(c-4)*1024} {opt.get('olf','')}")
            else: L.append(f"buffer_load_dwordx4 {ar(Bf(i,c))}, v{V_OC}, s[8:11], s36 offen {opt.get('olf','')}")
        L.append("s_add_u32 s36, s36, 13312")
        return L
    def loadW(i):
        k = i % 4
        L = [f"s_mov_b32 m0, s{40+2*k}"]
        for q in range(4): L.append(f"buffer_load_dwordx4 v{V_W+q}, s[12:15], s37 offen offset:{q*1024} {opt.get('wof','')} lds")
        L.append(f"s_mov_b32 m0, s{41+2*k}")
        for q in range(4): L.append(f"buffer_load_dwordx4 v{V_W+q}, s[12:15], s38 offen offset:{q*1024} {opt.get('wof','')} lds")
        L.append("s_add_u32 s37, s37, 65536\ns_add_u32 s38, s38, 65536")
        return L
    def readA(i):
        L = []
        for jl in range(4):
            for u in range(2):
                for uk in range(2):
                    a = Af(i, jl, u) + 2 * uk
                    off = (i % 4) * SLOT + uk * 2048 + (jl & 1) * 256 + u * 8
                    L.append(f"ds_read_b64_tr_b16 {ar(a,2)}, v{V_RD+1+(jl>>1)} offset:{off}")
        return L
    if not fused:
        P.extend(loadW(0))
        for i in range(3):
            P.extend(loadO(i)); P.extend(loadW(i + 1))
        e("s_waitcnt vmcnt(45)")
        P.extend(stamp(1, opt))
        P.extend(readA(0))
        vmw0 = [30, 30, 30, 30]
    else:
        if deep:
            for i in range(4): P.extend(loadW(i))
            e("s_lshl_b32 s80, s29, 4")
            for i in range(4):
                e(f"s_waitcnt vmcnt({8*(3-i)})"); P.extend(readA(i))
            e("buffer_load_dword v228, v226, s[76:79], s80 offen sc1")
            e("s_waitcnt lgkmcnt(0)")
            for i in range(4, 8): P.extend(loadW(i))
            e("s_cmp_lg_u32 s26, 0\ns_cbranch_scc1 L2_go")
            e("s_mov_b32 s53, 0x400000")
            e("s_waitcnt vmcnt(32)")
            e("L2_poll:")
            e("v_readfirstlane_b32 s54, v228")
            e("s_sub_u32 s53, s53, 1\ns_cbranch_scc1 L2_go")
            e("s_cmp_ge_u32 s54, 16\ns_cbranch_scc1 L2_go")
            e(f"s_sleep {opt.get('psleep', 2)}")
            e("buffer_load_dword v228, v226, s[76:79], s80 offen sc1")
            e("s_waitcnt vmcnt(0)\ns_branch L2_poll")
            e("L2_go:")
            e("s_barrier")
            P.extend(stamp(1, opt))
            for i in range(3): P.extend(loadO(i))
            vmw0 = [14, 14, 14, 14, 14, 22, 30, 30]
        else:
            wpre = opt.get("wpre", 4)
            for i in range(wpre): P.extend(loadW(i))
            if not opt.get("emu"): e("s_lshl_b32 s80, s29, 4")
            e("s_cmp_lg_u32 s26, 0\ns_cbranch_scc1 L2_go")
            e("s_mov_b64 exec, 1")
            e("s_mov_b32 s53, 0x400000")
            e("L2_poll:")
            e("buffer_load_dword v228, v226, s[76:79], s80 offen sc1")
            e("s_waitcnt vmcnt(0)")
            e("v_readfirstlane_b32 s54, v228")
            e("s_sub_u32 s53, s53, 1\ns_cbranch_scc1 L2_polled")
            e(f"s_cmp_ge_u32 s54, {8 if opt.get('emu') else 16}\ns_cbranch_scc1 L2_polled")
            e(f"s_sleep {opt.get('psleep', 2)}\ns_branch L2_poll")
            e("L2_polled:")
            e("s_mov_b64 exec, -1")
            e("L2_go:")
            e(f"s_waitcnt vmcnt({8*(wpre-1)})")
            P.extend(readA(0))
            e("s_barrier")
            P.extend(stamp(1, opt))
            q = []
            for i in range(3):
                P.extend(loadO(i)); q += [("O", i)] * 7
                if i + 1 >= wpre: P.extend(loadW(i + 1)); q += [("W", i + 1)] * 8
            vmw0 = []
            for i in range(4):
                last = max(k for k, t in enumerate(q) if t in (("O", i), ("W", i + 1)))
                vmw0.append(len(q) - 1 - last)
                q += [("O", i + 3)] * 7 + [("W", i + 4)] * 8
    pro, lg, vm = finalize_straight(P.ins, tag="k2pro")
    out = list(pro)

    def kstep(i, first=False, loads=True, reads=True, vmw=30, wload=True):
        S = Prog()
        S.e(f"s_waitcnt vmcnt({vmw}) lgkmcnt(0)")
        extras = []
        if reads: extras += readA(i + 1)
        ld = []
        if loads: ld = loadO(i + 3) + (loadW(i + 4) if wload else [])
        mfs = []
        for jl in range(4):
            for u in range(2):
                for c in range(7):
                    if c == 6 and jl >= 2: continue
                    d = vr(acc(c, jl, u))
                    mfs.append(mf(d, ar(Af(i, jl, u)), ar(Bf(i, c)), "0" if first else d))
        gaps = [[] for _ in mfs]
        gi = 1
        for x in ld:
            gaps[min(gi, len(mfs)-1)].append(x)
            if x.startswith("buffer"): gi += 3
        gi = 2
        for k, x in enumerate(extras):
            gaps[gi].append(x); gi += (1 if k % 2 == 0 else 2)
        for m, g in zip(mfs, gaps):
            S.e(m); S.extend(g)
        return S.ins
    seq = []
    if deep:
        for i in range(4): seq += kstep(i, first=(i == 0), vmw=vmw0[i], reads=(i == 3), wload=False)
        seq.append(Ins("s_waitcnt vmcnt(7)"))
    else:
        for i in range(4): seq += kstep(i, first=(i == 0), vmw=vmw0[i])
    seq.append(Ins("s_mov_b32 s39, 6"))
    emu = opt.get("emu")
    if emu:
        seq += [Ins("s_cmp_eq_u32 s81, 0"), Ins(f"s_cselect_b32 s39, {emu[2]}, {emu[4]}")]
    seq, lg, vm = finalize_straight(seq, out, lg, vm, tag="k2peel")
    out += seq
    body = [Ins(".p2align 6"), Ins("L2_loop:")]
    for i in range(4, 8): body += kstep(i)
    if emu:
        body += [Ins(f"s_cmp_ge_u32 s36, {24*13312}"), Ins("s_cselect_b32 s36, 0, s36"), Ins("s_cselect_b32 s37, 0, s37"), Ins("s_cselect_b32 s38, 8192, s38")]
    body += [Ins("s_sub_u32 s39, s39, 1"), Ins("s_cmp_lg_u32 s39, 0"), Ins("s_cbranch_scc1 L2_loop")]
    body, lg, vm = finalize_loop(body, out, lg, vm, tag="k2loop")
    out += body
    if emu:
        X = Prog(); x = X.e
        x("s_cmp_lg_u32 s81, 0\ns_cbranch_scc1 L2_x2")
        X.extend(stamp(6, opt))
        x("s_mov_b32 s81, 1\ns_mov_b64 exec, 1\ns_mov_b32 s53, 0x100000")
        x("L2_poll2:\nbuffer_load_dword v228, v226, s[76:79], s82 offen sc1\ns_waitcnt vmcnt(0)\nv_readfirstlane_b32 s54, v228")
        x("s_sub_u32 s53, s53, 1\ns_cbranch_scc1 L2_p2d\ns_cmp_ge_u32 s54, 8\ns_cbranch_scc1 L2_p2d\ns_sleep 2\ns_branch L2_poll2")
        x(f"L2_p2d:\ns_mov_b64 exec, -1")
        X.extend(stamp(7, opt))
        x(f"s_mov_b32 s39, {emu[3]}\ns_branch L2_loop\nL2_x2:")
        xs, _, _ = finalize_straight(X.ins, out, [], [], tag="emu")
        out += xs
    seq = []
    S = kstep(28)
    S = [x for x in S if not (x.kind == "dma" or "m0" in x.wr or x.text.startswith("s_add_u32 s37") or x.text.startswith("s_add_u32 s38"))]
    seq += S
    if rov:
        S = kstep(29, loads=False, vmw=22)
        ex = ["s_waitcnt vmcnt(7)"] + readA(31)
        S2 = []; k = 0
        for x in S:
            S2.append(x)
            if x.kind == "mfma":
                k += 1
                if k >= 30 and ex: S2.append(Ins(ex.pop(0)))
        seq += S2
    else:
        seq += kstep(29, loads=False, vmw=22)
        seq += kstep(30, loads=False, vmw=7)
        seq += kstep(31, loads=False, reads=False, vmw=0)
    seq, lg, vm = finalize_straight(seq, out, lg, vm, tag="k2tail")
    out += seq
    def owner(pt): return pt % 4 if pt < 24 else pt - 24
    E = Prog(); e = E.e
    E.extend(stamp(2, opt))
    if not rov: e("s_barrier")
    e("v_lshlrev_b32 v222, 4, v221")
    e("v_add_u32 v223, 65536, v222\nv_add_u32 v224, 131072, v222")
    e("v_and_b32 v225, 15, v221\nv_lshlrev_b32 v225, 11, v225")
    e("v_lshrrev_b32 v226, 4, v221\nv_lshlrev_b32 v226, 4, v226")
    e("s_lshl_b32 s32, s30, 8")
    e("v_add3_u32 v225, v225, v226, s32")
    e("s_lshl_b32 s33, s31, 7")
    e("s_sub_u32 s35, 128, s33")
    e(f"s_mul_i32 s36, s31, {6*32768}")
    if rov: e("s_waitcnt vmcnt(0) lgkmcnt(0)\ns_barrier")
    e("s_cmp_eq_u32 s26, 1\ns_cbranch_scc1 L2_e1\ns_cmp_eq_u32 s26, 2\ns_cbranch_scc1 L2_e2\ns_cmp_eq_u32 s26, 3\ns_cbranch_scc1 L2_e3")
    pre, lg, vm = finalize_straight(E.ins, out, lg, vm, tag="k2epre")
    out += pre
    def ldsaddr(pt, src, u):
        off = (pt * 3 + src) * 2048 + u * 1024
        return f"v{222 + off // 65536}", off % 65536
    for w in range(4):
        E = Prog(); e = E.e
        e(f"L2_e{w}:")
        order = [pt for pt in range(26) if owner(pt) != w] + [pt for pt in range(26) if owner(pt) == w]
        pend = []
        nm = 0
        for pt in order:
            o = owner(pt)
            c, jl = (pt // 4, pt % 4) if pt < 24 else (6, pt - 24)
            for u in range(2):
                if rov:
                    d = vr(acc(c, jl, u))
                    for i in (30, 31):
                        e(mf(d, ar(Af(i, jl, u)), ar(Bf(i, c)), d)); nm += 1
                        if pend and pend[0][0] <= nm: e(pend.pop(0)[1])
                if o != w:
                    a, off = ldsaddr(pt, (w - o - 1) % 4, u)
                    pend.append((nm + 6, f"ds_write_b128 {a}, {vr(acc(c,jl,u))} offset:{off}"))
        for _, x in pend: e(x)
        e("s_waitcnt lgkmcnt(0)\ns_barrier")
        E.extend(stamp(3, opt))
        mine = [pt for pt in range(26) if owner(pt) == w]
        free = []
        for pt in range(26):
            if owner(pt) != w:
                c, jl = (pt // 4, pt % 4) if pt < 24 else (6, pt - 24)
                free += [acc(c, jl, 0), acc(c, jl, 1)]
        free += [228, 232, 236, 240]
        fi = 0
        tmp = {}
        for pt in mine:
            for src in range(3):
                for u in range(2):
                    a, off = ldsaddr(pt, src, u)
                    tmp[(pt, src, u)] = free[fi]; fi += 1
                    e(f"ds_read_b128 {vr(tmp[(pt,src,u)])}, {a} offset:{off}")
        for pt in mine:
            c, jl = (pt // 4, pt % 4) if pt < 24 else (6, pt - 24)
            for u in range(2):
                r = acc(c, jl, u)
                t0, t1, t2 = (tmp[(pt, s, u)] for s in range(3))
                for h in (0, 2):
                    e(f"v_pk_add_f32 v[{r+h}:{r+h+1}], v[{r+h}:{r+h+1}], v[{t0+h}:{t0+h+1}]")
                    e(f"v_pk_add_f32 v[{t1+h}:{t1+h+1}], v[{t1+h}:{t1+h+1}], v[{t2+h}:{t2+h+1}]")
                for h in (0, 2):
                    e(f"v_pk_add_f32 v[{r+h}:{r+h+1}], v[{r+h}:{r+h+1}], v[{t1+h}:{t1+h+1}]")
            r = acc(c, jl, 0)
            e(f"v_cvt_pk_bf16_f32 v{r}, v{r}, v{r+1}\nv_cvt_pk_bf16_f32 v{r+1}, v{r+2}, v{r+3}")
            e(f"v_cvt_pk_bf16_f32 v{r+2}, v{r+4}, v{r+5}\nv_cvt_pk_bf16_f32 v{r+3}, v{r+6}, v{r+7}")
            js = "s33" if jl < 2 else "s35"
            if c < 6: e(f"s_add_u32 s37, s36, {c*32768}\ns_add_u32 s37, s37, {js}")
            else: e(f"s_add_u32 s37, {js}, {12*32768}")
            e(f"buffer_store_dwordx4 {vr(r)}, v225, s[16:19], s37 offen offset:{(jl&1)*64} {opt.get('outf','')}")
        E.extend(stamp(4, opt))
        if opt.get("prof"): e("s_waitcnt vmcnt(0)")
        E.extend(stamp(5, opt))
        E.extend(stamp_store(6, opt, 24, 0x8000000 if fused else 0x8100000, 26))
        e("s_endpgm")
        s2, _, _ = finalize_straight(E.ins, out, [], [], tag=f"k2e{w}")
        out += s2
    if not fused:
        out.append(Ins("L2_end:")); out.append(Ins("s_endpgm"))
    Q = Prog(); Q.ins = out
    desc = f""".amdhsa_kernel {name}
  .amdhsa_next_free_vgpr 512
  .amdhsa_next_free_sgpr 102
  .amdhsa_accum_offset 256
  .amdhsa_group_segment_fixed_size 0
  .amdhsa_kernarg_size 64
  .amdhsa_user_sgpr_count 2
  .amdhsa_user_sgpr_kernarg_segment_ptr 1
  .amdhsa_system_sgpr_workgroup_id_x 1
.end_amdhsa_kernel
"""
    return Q.text(), desc
```

```python
from asmgen import *
from gen_k2 import mf, vr, ar, WS_O_BYTES_PER_B
import struct, math
import gen_op

SLOT = 32768
NSLOT = 5
QSCALE = math.log2(math.e) / math.sqrt(128.0)
def f32bits(x): return struct.unpack("<I", struct.pack("<f", x))[0]

def O_(c, dt): return vr(c * 32 + dt * 4) if c < 6 else ar(208 + dt * 4)
def NEGM(c): return 192 + 4 * c
def S_(buf, kt): return 220 + buf * 8 + kt * 4
def P_(buf): return 236 + buf * 4
V_KA, V_VA0, V_VA1, V_LANE = 244, 245, 246, 247
V_KV = 248
V_PF = 250
V_T = 252
V_QW, V_QX = 208, 212
V_QRW, V_QRX, V_QRX2, V_BW, V_BX = 216, 217, 218, 219, 220
V_RW = 221
def Q_(c, ds): return c * 16 + ds * 4
def K_(kt, ds): return 112 + kt * 16 + ds * 4
def V_(dt): return 144 + dt * 4
def L_(c): return 176 + 4 * c
ONES = 204
def QA(buf, j2, u): return 112 + buf * 60 + (j2 * 2 + u) * 4
def QB(buf, c): return 112 + buf * 60 + 32 + c * 4
def QACC(c, j2, u, p):
    if c < 6: return (c * 8 + j2 * 2 + u) * 4
    return (48 + (j2 - 2 * p) * 2 + u) * 4
def RREG(t, i):
    k = t * 8 + i
    return 4 * k if k < 28 else 232 + 4 * (k - 28)
S_WAVE, S_HH, S_B, S_HP, S_CNT, S_DST = 24, 25, 26, 27, 28, 29
S_XO, S_WO, S_KO, S_KO2, S_DELTA = 30, 31, 32, 33, 34
S_M0W, S_M0X, S_M0KV, S_RD = 35, 36, 37, 39
S_T = 40
S_FLAG, S_XO2, S_M0X2, S_PREV, S_PFO = 48, 49, 50, 51, 55
S_KA, S_KX = 64, 65
XREG = 16640

def stamp(k, opt):
    if not opt.get("prof"): return []
    return ["s_waitcnt lgkmcnt(0)", "s_memrealtime s[98:99]", "s_memtime s[100:101]", "s_waitcnt lgkmcnt(0)",
            f"v_writelane_b32 v251, s98, {2*k}", f"v_writelane_b32 v251, s100, {2*k+1}"]
def stamp_store(n, opt, wsreg, base, wave):
    if not opt.get("prof"): return []
    return [f"s_add_u32 s60, s{wsreg}, {base}", f"s_addc_u32 s61, s{wsreg+1}, 0", "s_mov_b32 s62, 0x100000", "s_mov_b32 s63, 0x20000",
         f"s_lshl_b32 s55, s2, 2", f"s_add_u32 s55, s55, s{wave}", "s_lshl_b32 s55, s55, 8",
         "v_mbcnt_lo_u32_b32 v250, -1, 0", "v_mbcnt_hi_u32_b32 v250, -1, v250", "v_lshlrev_b32 v250, 2, v250",
         "buffer_store_dword v251, v250, s[60:63], s55 offen"]

def code_pf(lo, hi, idx_sgpr, va, lane128, tmp=S_T+6, fwd=False):
    return [f"s_getpc_b64 s[{tmp}:{tmp+1}]\ns_add_u32 s{tmp}, s{tmp}, {lo}-.\ns_addc_u32 s{tmp+1}, s{tmp+1}, 0" if fwd else
            f"s_getpc_b64 s[{tmp}:{tmp+1}]\ns_sub_u32 s{tmp}, s{tmp}, .-{lo}\ns_subb_u32 s{tmp+1}, s{tmp+1}, 0",
            f"v_lshl_add_u32 v{va}, s{idx_sgpr}, 13, v{lane128}",
            f"v_min_u32 v{va}, {hi}-{lo}-4, v{va}",
            f"v_mov_b32 v{va+1}, s{tmp+1}",
            f"v_add_co_u32 v{va}, vcc, s{tmp}, v{va}\ns_nop 1\nv_addc_co_u32 v{va+1}, vcc, 0, v{va+1}, vcc",
            f"global_load_dword v255, v[{va}:{va+1}], off"]
def cost(x): return 1 + x.count("\n")
def isvm(x): return x.startswith("buffer") or x.startswith("global")

class Place:
    def __init__(self): self.m = []; self.g = []; self.cap = []
    def add(self, m, cap=2, fixed=()):
        self.m.append(m); self.g.append(list(fixed)); self.cap.append(cap)
    def at(self, g, items):
        for it in items:
            self.g[g].append(it); self.cap[g] -= cost(it)
    def put(self, pos, items, hi=None, step=0):
        hi = len(self.m) - 1 if hi is None else hi
        for it in items:
            while pos < hi and self.cap[pos] < min(cost(it), 2): pos += 1
            self.at(pos, [it])
            last = pos
            pos = min(pos + step, hi)
        return last
    def spread(self, lo, hi, items, vmcap=2, group=1):
        nb = sum(1 for x in items if isvm(x))
        cand = [k for k in range(lo + 1, hi) if self.cap[k] >= vmcap]
        assert len(cand) >= nb, (len(cand), nb)
        ng = -(-nb // group)
        pick = []
        for gi in range(ng):
            st = (gi * len(cand)) // ng
            for q in range(min(group, nb - gi * group)): pick.append(cand[st + q])
        assert pick == sorted(set(pick)), pick
        bi = 0; prev = lo
        for idx, x in enumerate(items):
            if isvm(x):
                g = pick[bi]; bi += 1
                self.g[g].append(x); self.cap[g] -= vmcap; prev = g
            else:
                lim = pick[bi] if bi < nb else hi
                q = prev
                while q < lim - 1 and (self.cap[q] < cost(x) or q in pick[bi:]): q += 1
                if self.cap[q] < cost(x): q = prev if bi > 0 or True else q
                self.at(q, [x]); prev = q
        return prev
    def ins(self, lo=0, hi=None):
        out = []
        for k in range(lo, len(self.m) if hi is None else hi):
            if self.m[k]: out.append(Ins(self.m[k]))
            for x in self.g[k]:
                for line in x.split("\n"): out.append(Ins(line))
        return out

def ring_next(reg):
    return [f"s_add_u32 s{reg}, s{reg}, {SLOT}", f"s_cmp_eq_u32 s{reg}, {SLOT*NSLOT}\ns_cselect_b32 s{reg}, 0, s{reg}"]
def I(lst): return [Ins(l) for x in lst for l in x.split("\n")]

DESC = """.amdhsa_kernel {name}
  .amdhsa_next_free_vgpr 512
  .amdhsa_next_free_sgpr 102
  .amdhsa_accum_offset 256
  .amdhsa_group_segment_fixed_size 0
  .amdhsa_kernarg_size 64
  .amdhsa_user_sgpr_count 2
  .amdhsa_user_sgpr_kernarg_segment_ptr 1
  .amdhsa_system_sgpr_workgroup_id_x 1
.end_amdhsa_kernel
"""

def gen_k1(name="attn_kernel", opt=None):
    opt = opt or {}
    P = Prog(); e = P.e
    e(f".p2align 8\n.type {name},@function\n{name}:")
    e("s_cmp_ge_u32 s2, 256\ns_cbranch_scc1 L1_end")
    P.extend(stamp(0, opt))
    e("s_load_dwordx4 s[40:43], s[0:1], 0")
    e("s_load_dwordx4 s[44:47], s[0:1], 16")
    e("s_load_dwordx2 s[4:5], s[0:1], 56")
    e("s_load_dwordx2 s[6:7], s[0:1], 32")
    e("s_load_dwordx2 s[76:77], s[0:1], 48")
    e(f"s_load_dwordx2 s[{gen_op.SOUT}:{gen_op.SOUT+1}], s[0:1], 40")
    L = V_LANE
    t0, t1, t2, t3 = V_T, V_T + 1, V_T + 2, V_T + 3
    e(f"v_lshrrev_b32 v{t0}, 6, v0")
    e(f"v_and_b32 v{L}, 63, v0")
    e(f"v_readfirstlane_b32 s{S_WAVE}, v{t0}")
    e("s_and_b32 s90, s2, 7\ns_lshr_b32 s91, s2, 3")
    if opt.get("map", 0) == 0:
        e(f"s_lshr_b32 s{S_B}, s90, 1\ns_lshl_b32 s{S_B}, s{S_B}, 2\ns_lshr_b32 s52, s91, 3\ns_add_u32 s{S_B}, s{S_B}, s52")
        e(f"s_and_b32 s{S_HP}, s90, 1\ns_lshl_b32 s{S_HP}, s{S_HP}, 3\ns_and_b32 s52, s91, 7\ns_add_u32 s{S_HP}, s{S_HP}, s52")
    elif opt["map"] == 1:
        e(f"s_lshl_b32 s{S_B}, s90, 1\ns_lshr_b32 s52, s91, 4\ns_add_u32 s{S_B}, s{S_B}, s52\ns_and_b32 s{S_HP}, s91, 15")
    elif opt["map"] == 2:
        e(f"s_lshr_b32 s{S_B}, s90, 2\ns_lshl_b32 s{S_B}, s{S_B}, 3\ns_lshr_b32 s52, s91, 2\ns_add_u32 s{S_B}, s{S_B}, s52")
        e(f"s_and_b32 s{S_HP}, s90, 3\ns_lshl_b32 s{S_HP}, s{S_HP}, 2\ns_and_b32 s52, s91, 3\ns_add_u32 s{S_HP}, s{S_HP}, s52")
    else:
        e(f"s_lshr_b32 s{S_B}, s91, 1\ns_lshl_b32 s{S_HP}, s90, 1\ns_and_b32 s52, s91, 1\ns_add_u32 s{S_HP}, s{S_HP}, s52")
    if opt.get("hpx"): e(f"s_xor_b32 s{S_HP}, s{S_HP}, {opt['hpx']}")
    e(f"s_lshr_b32 s{S_HH}, s{S_WAVE}, 1\ns_and_b32 s53, s{S_WAVE}, 1")
    e(f"v_lshrrev_b32 v{t0}, 2, v{L}\nv_and_b32 v{t0}, 3, v{t0}")
    e(f"v_lshrrev_b32 v{t1}, 4, v{L}")
    e(f"v_and_b32 v{t2}, 3, v{L}")
    e(f"v_lshlrev_b32 v{V_QW}, 13, v{t0}\nv_lshl_add_u32 v{V_QW}, v{t1}, 6, v{V_QW}\nv_lshl_add_u32 v{V_QW}, v{t2}, 4, v{V_QW}")
    e(f"s_lshl_b32 s52, s{S_WAVE}, 16\ns_add_u32 s52, s52, 4096\nv_add_u32 v{V_QW}, s52, v{V_QW}")
    for i in range(1, 4):
        d = (i & 1) * 4 * 8192 + (i >> 1) * 256 - i * 1024
        e(f"v_add_u32 v{V_QW+i}, {d}, v{V_QW}" if d >= 0 else f"v_subrev_u32 v{V_QW+i}, {-d}, v{V_QW}")
    e(f"v_lshrrev_b32 v{V_QX}, 2, v{L}\nv_and_b32 v{V_QX}, 7, v{V_QX}")
    e(f"v_lshrrev_b32 v{t3}, 2, v{V_QX}\nv_lshlrev_b32 v{t3}, 1, v{t3}\nv_xor_b32 v{t3}, v{t3}, v{t2}")
    e(f"v_lshlrev_b32 v{V_QX}, 11, v{V_QX}\nv_lshl_add_u32 v{V_QX}, v{t3}, 4, v{V_QX}")
    e(f"v_lshrrev_b32 v{t3}, 5, v{L}\nv_lshl_add_u32 v{V_QX}, v{t3}, 6, v{V_QX}")
    for i in range(1, 4): e(f"v_add_u32 v{V_QX+i}, {i*(16384-1024)}, v{V_QX}")
    e(f"s_lshl_b32 s52, s{S_WAVE}, 2\ns_lshr_b32 s52, 0xb480, s52\ns_and_b32 s52, s52, 15")
    e(f"s_lshl_b32 s{S_XO}, s52, 14\ns_lshl_b32 s{S_M0X}, s52, 10\ns_add_u32 s{S_M0X}, s{S_M0X}, {XREG}")
    e(f"s_mul_i32 s52, s{S_WAVE}, 3")
    e(f"s_lshl_b32 s{S_XO2}, s52, 14\ns_add_u32 s{S_XO2}, s{S_XO2}, {14*16384}")
    e(f"s_lshl_b32 s{S_M0X2}, s52, 10\ns_add_u32 s{S_M0X2}, s{S_M0X2}, {XREG}")
    e(f"s_mul_i32 s{S_M0W}, s53, 8200\ns_lshl_b32 s54, s{S_HH}, 12\ns_add_u32 s{S_M0W}, s{S_M0W}, s54")
    e(f"s_mov_b32 s{S_WO}, 0")
    if opt.get("qrole"):
        e(f"s_mul_i32 s52, s{S_HH}, 7\ns_lshl_b32 s{S_XO}, s52, 14\ns_lshl_b32 s{S_M0X}, s52, 10\ns_add_u32 s{S_M0X}, s{S_M0X}, {XREG}")
        e(f"s_mul_i32 s52, s{S_HH}, 6\ns_lshl_b32 s{S_XO2}, s52, 14\ns_add_u32 s{S_XO2}, s{S_XO2}, {14*16384}")
        e(f"s_lshl_b32 s{S_M0X2}, s52, 10\ns_add_u32 s{S_M0X2}, s{S_M0X2}, {XREG}")
    e(f"s_mul_i32 s52, s{S_B}, 425984\ns_lshl_b32 s54, s{S_HP}, 9")
    e("s_mov_b32 s10, 425984\ns_mov_b32 s11, 0x20000\ns_mov_b32 s15, 0x20000")
    e(f"s_sub_u32 s14, {8388608+4096}, s54")
    e("s_waitcnt lgkmcnt(0)")
    e("s_add_u32 s8, s40, s52\ns_addc_u32 s9, s41, 0")
    e("s_add_u32 s12, s46, s54\ns_addc_u32 s13, s47, 0\ns_sub_u32 s12, s12, 4096\ns_subb_u32 s13, s13, 0")
    e("s_cmp_eq_u32 s53, 1\ns_cbranch_scc1 L1_p1")
    head, _, _ = finalize_straight(P.ins, tag="k1head")
    out = list(head)
    for p in range(2):
        out += gen_path(p, head, opt)
    out.append(Ins("L1_end:")); out.append(Ins("s_endpgm"))
    Q = Prog(); Q.ins = out
    return Q.text(), DESC.format(name=name)

def setup2(p, opt):
    P = Prog(); e = P.e
    L = V_LANE
    t0, t1, t2, t3 = V_T, V_T + 1, V_T + 2, V_T + 3
    kv = (42, 43) if p == 0 else (44, 45)
    e(f"s_lshl_b32 s52, s{S_B}, 5\ns_lshl_b32 s54, s{S_HP}, 1\ns_add_u32 s52, s52, s54\ns_add_u32 s52, s52, s{S_HH}")
    if opt.get("kvrot", 1) == 1: e(f"s_lshr_b32 s54, s52, 5\ns_mul_i32 s54, s54, 11\ns_add_u32 s54, s54, s52\ns_and_b32 s54, s54, 31\ns_lshl_b32 s{S_KX}, s54, 13")
    else: e(f"s_mov_b32 s{S_KX}, 0")
    if opt.get("kvsame"): e(f"s_mov_b32 s52, s{S_HH}")
    e("s_lshl_b32 s54, s52, 18")
    e(f"s_add_u32 s16, s{kv[0]}, s54\ns_addc_u32 s17, s{kv[1]}, 0\ns_mov_b32 s18, 262144\ns_mov_b32 s19, 0x20000")
    e(f"s_mul_i32 s52, s{S_B}, {WS_O_BYTES_PER_B}")
    e(f"s_add_u32 s20, s4, s52\ns_addc_u32 s21, s5, 0\ns_mov_b32 s22, {WS_O_BYTES_PER_B}\ns_mov_b32 s23, 0x20000")
    e("s_mov_b32 s56, s6\ns_mov_b32 s57, s7\ns_mov_b32 s58, 8388608\ns_mov_b32 s59, 0x20000")
    e(f"s_lshl_b32 s{S_M0KV}, s{S_WAVE}, 13")
    e(f"s_mov_b32 s78, 256\ns_mov_b32 s79, 0x20000\ns_lshl_b32 s80, s{S_B}, 4")
    e(f"v_and_b32 v{V_QRW}, 1, v{t1}\nv_mul_u32_u24 v{V_QRW}, 8200, v{V_QRW}")
    e(f"v_lshrrev_b32 v{V_QRX}, 1, v{t1}\nv_lshl_add_u32 v{V_QRW}, v{V_QRX}, 12, v{V_QRW}")
    e(f"v_and_b32 v{V_QRX}, 15, v{L}\nv_lshl_add_u32 v{V_QRW}, v{V_QRX}, 4, v{V_QRW}")
    e(f"s_lshl_b32 s54, s{S_HH}, 11\nv_add_u32 v{V_QRW}, s54, v{V_QRW}")
    e(f"v_and_b32 v{t3}, 1, v{t0}\nv_lshlrev_b32 v{t3}, 1, v{t3}\nv_xor_b32 v{t3}, v{t3}, v{t1}\nv_lshlrev_b32 v{t3}, 4, v{t3}")
    e(f"v_and_b32 v{V_QRX2}, 7, v{L}\nv_lshl_add_u32 v{V_QRX2}, v{V_QRX2}, 6, v{t3}")
    e(f"v_lshrrev_b32 v{V_QRX}, 3, v{V_QRX}\nv_lshl_add_u32 v{V_QRX}, v{V_QRX}, 10, v{V_QRX2}")
    e(f"v_add_u32 v{V_QRX}, {XREG}, v{V_QRX}\nv_add_u32 v{V_QRX2}, {SLOT}, v{V_QRX}")
    e(f"v_mov_b32 v{V_BW}, v{V_QRW}\nv_mov_b32 v{V_BX}, v{V_QRX}")
    e(f"v_lshl_add_u32 v{V_KA}, v{t0}, 10, v{t3}\nv_lshl_add_u32 v{V_KA}, v{t2}, 6, v{V_KA}")
    e(f"s_lshl_b32 s54, s{S_HH}, 14\ns_add_u32 s54, s54, {2*SLOT}\nv_add_u32 v{V_KA}, s54, v{V_KA}")
    e(f"v_lshlrev_b32 v{V_VA0}, 10, v{t1}\nv_lshl_add_u32 v{V_VA0}, v{t0}, 6, v{V_VA0}\nv_lshl_add_u32 v{V_VA0}, v{t2}, 3, v{V_VA0}")
    e(f"s_add_u32 s54, s54, 8192\nv_add_u32 v{V_VA0}, s54, v{V_VA0}")
    e(f"v_and_b32 v{t3}, 1, v{t1}\nv_lshl_add_u32 v{V_VA0}, v{t3}, 5, v{V_VA0}\nv_xor_b32 v{V_VA1}, 32, v{V_VA0}")
    e(f"v_lshlrev_b32 v{V_KV}, 8, v{t0}\nv_lshl_add_u32 v{V_KV}, v{t1}, 6, v{V_KV}\nv_lshl_add_u32 v{V_KV}, v{t2}, 4, v{V_KV}")
    e(f"v_xor_b32 v{V_KV+1}, 32, v{V_KV}\nv_lshlrev_b32 v{V_PF}, 7, v{L}")
    e(f"v_lshlrev_b32 v{t3}, 4, v{L}\nv_add_u32 v{t3}, s{S_M0KV}, v{t3}")
    for t in range(4): e(f"v_add_u32 v{V_RW+t}, {((2+t)%5)*SLOT}, v{t3}")
    e(f"s_mov_b32 s{S_DST}, 0\ns_mov_b32 s{S_RD}, 0\ns_mov_b32 s{S_KA}, 0\ns_mov_b32 s{S_KO}, s{S_KX}\ns_or_b32 s{S_KO2}, s{S_KX}, 4096\ns_mov_b32 s{S_FLAG}, 0\ns_mov_b32 s{S_PREV}, {4*SLOT}")
    P.extend(gen_op.op_scalar_setup(opt, S_WAVE))
    return [i.text for i in P.ins]

def gen_path(p, head, opt):
    verbose = opt.get("verbose", False)
    KVF = opt.get("kvflags", "nt")
    NR = opt.get("nr", 4)
    nxa = 4 if p == 0 else 3
    tag = f"p{p}"
    out = []
    vmq = []
    def vm_wait(tags):
        last = max((k for k, t in enumerate(vmq) if t in tags), default=None)
        if last is None: return 63
        return min(63, len(vmq) - 1 - last)
    role = opt.get("qrole")
    def dmaW(s, slot):
        if role and p == 1: return []
        L = [f"s_add_u32 m0, s{S_M0W}, {slot}"]
        for i in range(4): L.append(f"buffer_load_dwordx4 v{V_QW+i}, s[12:15], s{S_WO} offen offset:{i*1024} {opt.get('wqf','')} lds")
        vmq.extend([("W", s)] * 4)
        if role:
            L += [f"s_add_u32 m0, m0, 8200", f"s_add_u32 s70, s{S_WO}, 65536"]
            for i in range(4): L.append(f"buffer_load_dwordx4 v{V_QW+i}, s[12:15], s70 offen offset:{i*1024} {opt.get('wqf','')} lds")
            vmq.extend([("W", s)] * 4)
        L.append(f"s_add_u32 s{S_WO}, s{S_WO}, 262144")
        return L
    def dmaX(which, sig, slot):
        if role == 1 and p == 1: return []
        if role == 2 and p == 0: return []
        n = nxa if which == "A" else 3
        if role: n = 7 if which == "A" else 6
        m0r, so = (S_M0X, S_XO) if which == "A" else (S_M0X2, S_XO2)
        L = [f"s_add_u32 m0, s{m0r}, {slot}"]
        for i in range(min(n, 4)): L.append(f"buffer_load_dwordx4 v{V_QX+i}, s[8:11], s{so} offen offset:{i*1024} {opt.get('xf','')} lds")
        if n > 4:
            L += [f"s_add_u32 m0, m0, 4096", f"s_add_u32 s70, s{so}, 65536"]
            for i in range(n - 4): L.append(f"buffer_load_dwordx4 v{V_QX+i}, s[8:11], s70 offen offset:{i*1024} {opt.get('xf','')} lds")
        L.append(f"s_add_u32 s{so}, s{so}, 128")
        vmq.extend([("X" + which, sig)] * n)
        return L
    KVADV = [f"s_add_u32 s{S_KA}, s{S_KA}, 8192", f"s_xor_b32 s{S_KO}, s{S_KA}, s{S_KX}", f"s_or_b32 s{S_KO2}, s{S_KO}, 4096"]
    KVRST = f"s_mov_b32 s{S_KA}, 0\ns_mov_b32 s{S_KO}, s{S_KX}\ns_or_b32 s{S_KO2}, s{S_KX}, 4096"
    def dmaKV(base, t, track=True):
        L = [f"s_add_u32 m0, s{S_M0KV}, {base}"]
        for i in range(4): L.append(f"buffer_load_dwordx4 v{V_KV+(i&1)}, s[16:19], s{S_KO} offen offset:{i*1024} {KVF} lds")
        L.append("s_add_u32 m0, m0, 4096")
        for i in range(4): L.append(f"buffer_load_dwordx4 v{V_KV+(i&1)}, s[16:19], s{S_KO2} offen offset:{i*1024} {KVF} lds")
        L += KVADV
        if track: vmq.extend([("KV", t)] * 8)
        return L
    def regKV(k):
        t, i = divmod(k, 8)
        L = [f"buffer_load_dwordx4 {ar(RREG(t,i))}, v{V_KV+(i&1)}, s[16:19], s{S_KO if i < 4 else S_KO2} offen offset:{(i&3)*1024} {KVF}"]
        if i == 7: L += KVADV
        vmq.append(("R", t))
        return L
    def wrKV(t): return [f"ds_write_b128 v{V_RW+t}, {ar(RREG(t,i))} offset:{i*1024}" for i in range(8)]
    def mt_of(c): return 6 * p + c if c < 6 else 12
    def readQ(s):
        buf = s % 2; kh = s % 2
        order = [f"ds_read_b64_tr_b16 {ar(QA(buf,j2,u)+2*uk,2)}, v{V_QRW} offset:{uk*1024+j2*256+u*8}"
                 for j2 in range(4) for u in range(2) for uk in range(2)]
        xs = []
        for c in range(7):
            mt = mt_of(c)
            if mt < 7: xs.append(f"ds_read_b128 {ar(QB(buf,c))}, v{V_QRX} offset:{mt*2048+kh*512}")
            else: xs.append(f"ds_read_b128 {ar(QB(buf,c))}, v{V_QRX2} offset:{(mt-7)*2048+kh*512}")
        return order[:2] + xs + order[2:]
    def adv_rd(s):
        L = ring_next(S_RD) + [f"v_add_u32 v{V_QRW}, s{S_RD}, v{V_BW}"]
        if (s + 1) % 2 == 0:
            L += [f"v_add_u32 v{V_QRX}, s{S_RD}, v{V_BX}", f"s_add_u32 s{S_T}, s{S_RD}, {SLOT}",
                  f"s_cmp_eq_u32 s{S_T}, {SLOT*NSLOT}\ns_cselect_b32 s{S_T}, 0, s{S_T}", f"v_add_u32 v{V_QRX2}, s{S_T}, v{V_BX}"]
        return L
    def need(s): return {("W", s), ("XA", s // 2), ("XB", s // 2)}
    P = Prog(); e = P.e
    e(f"L1_p{p}:")
    P.extend(dmaW(0, 0)); P.extend(dmaX("A", 0, 0)); P.extend(dmaX("B", 0, SLOT)); P.extend(dmaW(1, SLOT))
    P.extend(setup2(p, opt))
    if opt.get("qpf"):
        e(f"s_mov_b32 s69, {opt.get('qpf0',5)*8192}\ns_xor_b32 s68, s69, s{S_KX}\nv_lshlrev_b32 v228, 6, v{V_LANE}")
    if opt.get("early", 1) >= 1:
        P.extend(dmaW(2, 2 * SLOT)); P.extend(dmaX("A", 1, 2 * SLOT)); P.extend(dmaX("B", 1, 3 * SLOT))
    w0 = vm_wait(need(0))
    if opt.get("cpf", True):
        e(f"s_lshr_b32 s{S_PFO}, s2, 3\ns_lshl_b32 s{S_PFO}, s{S_PFO}, 2\ns_add_u32 s{S_PFO}, s{S_PFO}, s{S_WAVE}")
        if opt.get("thin", True):
            pf = code_pf(opt.get("kname", "attn_kernel"), "L_code_end", S_PFO, 226, V_KV)
            pf[1] = f"v_lshl_add_u32 v226, s{S_PFO}, 10, v{V_KV}"
            P.extend(pf)
        else:
            e(f"s_and_b32 s{S_PFO}, s{S_PFO}, 15")
            P.extend(code_pf(opt.get("kname", "attn_kernel"), "L_code_end", S_PFO, 226, V_PF))
        vmq.append(("T", "code")); w0 = min(63, w0 + 1)
    e(f"s_waitcnt vmcnt({w0})\ns_barrier")
    P.extend(stamp(1, opt))
    P.extend(readQ(0)); P.extend(adv_rd(0))
    if opt.get("early", 1) < 1:
        P.extend(dmaW(2, 2 * SLOT)); P.extend(dmaX("A", 1, 2 * SLOT)); P.extend(dmaX("B", 1, 3 * SLOT))
    seq, lg, vm = finalize_straight(P.ins, head, tag=tag + "pro", verbose=verbose)
    out += seq
    rs0, rs1 = opt.get("rstages", (10, 26))
    rsched = {}
    for k in range(NR * 8): rsched.setdefault(rs0 + (k * (rs1 - rs0)) // (NR * 8), []).append(k)
    LD = opt.get("lead", 4)
    kv_at = {0: (27, "cur"), 1: (29, "prev"), 2: (29, "cur"), 3: (31, "prev")}
    kv_at = {t: v for t, v in kv_at.items() if t <= LD}
    if opt.get("kvlate") == 1 and LD == 2: kv_at = {0: (27, "cur"), 1: (29, "prev"), 2: (30, "prev")}
    if opt.get("kvst"):
        kv_at = {t: (st, ((2 + t) % 5) * SLOT) for t, st in enumerate(opt["kvst"]) if st < 32}
        for t, (st, _) in kv_at.items(): assert st >= (27, 29, 29, 31)[t]
    def qstage(s):
        buf = s % 2
        pl = Place()
        wtags = need(s + 1) if s < 31 else set()
        wr = []
        for t, (st, which) in kv_at.items():
            if st == s and t < NR: wtags = wtags | {("R", t)}; wr += wrKV(t)
        pl.add(None, 0, [f"s_waitcnt vmcnt({vm_wait(wtags)}) lgkmcnt(0)", "s_barrier"])
        for j2 in range(4):
            for u in range(2):
                for c in range(7):
                    if c == 6 and (j2 >> 1) != p: continue
                    d = vr(QACC(c, j2, u, p))
                    pl.add(mf(d, ar(QA(buf, j2, u)), ar(QB(buf, c)), "0" if s == 0 else d), cap=2)
        dm = []
        cur, prev = f"s{S_DST}", f"s{S_PREV}"
        if s == 0: dm += dmaW(3, 3 * SLOT) + dmaW(4, 4 * SLOT)
        sig = (s + 4) // 2
        if sig <= 15: dm += dmaX("A" if s % 2 == 0 else "B", sig, prev)
        if s + 5 <= 31: dm += dmaW(s + 5, cur)
        for k in rsched.get(s, []): dm += regKV(k)
        for t, (st, which) in kv_at.items():
            if st == s and t >= NR: dm += dmaKV(cur if which == "cur" else prev if which == "prev" else which, t)
        q0, q1 = opt.get("qpfr", (2, 24))
        if opt.get("qpf") and role and p == 1 and q0 <= s < q1:
            n = opt["qpf"]
            for q in range(n):
                isv = (s % 2) if n == 1 else (q % 2)
                srd = "s[16:19]" if isv else "s[72:75]"
                dm += [f"buffer_load_dword v255, v228, {srd}, s68 offen {opt.get('qpff','')}"]; vmq.append(("T", "kv"))
                if isv: dm += [f"s_add_u32 s69, s69, 4096", f"s_xor_b32 s68, s69, s{S_KX}"]
        if opt.get("opre") and (p == 1 or role != 1) and 2 <= s < 26:
            n = opt["opre"]; share = 52 if role == 1 else 26
            if s == 2:
                dm += [f"s_lshl_b32 s74, s{S_HP}, 1\ns_add_u32 s74, s74, s{S_HH}", f"s_mul_i32 s74, s74, {52*1024}"]
                if role != 1 and p == 1: dm += [f"s_add_u32 s74, s74, {26*1024}"]
                dm += [f"s_add_u32 s75, s74, {(share-n)*1024}", f"v_lshlrev_b32 v229, 4, v{V_LANE}"]
            for q in range(n):
                dm += [f"buffer_store_dwordx4 v[244:247], v229, s[20:23], s74 offen offset:{q*1024} {opt.get('osf','')}"]; vmq.append(("T", "o"))
            dm += [f"s_add_u32 s74, s74, {n*1024}", "s_min_u32 s74, s74, s75"]
        if opt.get("wothin") and 2 <= s < 26 and s % 2 == opt["wothin"] - 1:
            if s < 4: dm += [f"s_lshl_b32 s38, s2, 2\ns_add_u32 s38, s38, s{S_WAVE}", "s_lshl_b32 s38, s38, 13", "s_add_u32 s71, s38, 7168"]
            dm += [f"buffer_load_dword v255, v{V_KV}, s[56:59], s38 offen", "s_add_u32 s38, s38, 1024", "s_min_u32 s38, s38, s71"]; vmq.append(("T", "wo"))
        if s == opt.get("wost"):
            dm += [f"s_lshl_b32 s38, s2, 2\ns_add_u32 s38, s38, s{S_WAVE}", "s_lshl_b32 s38, s38, 13", f"buffer_load_dword v255, v{V_PF}, s[56:59], s38 offen"]; vmq.append(("T", "wo"))
        if s in opt.get("cpf2", []):
            dm += ["global_load_dword v255, v[226:227], off"]; vmq.append(("T", "code"))
        dm += [f"s_mov_b32 s{S_PREV}, s{S_DST}"] + ring_next(S_DST)
        if any(isvm(x) for x in dm): pl.spread(1, 50, dm, vmcap=1)
        else: pl.put(40, dm)
        pos = 1
        if s < 31:
            pos = pl.put(1, readQ(s + 1), step=1)
            pos = pl.put(pos + 1, adv_rd(s + 1))
        if wr: pl.put(pos + 1, wr, step=1)
        res = pl.ins()
        abl = opt.get("abl", "")
        if 4 <= s < 26:
            if "nodma" in abl: res = [x for x in res if x.kind != "dma"]
            if "noread" in abl: res = [x for x in res if x.kind != "dsr"]
            if "nobar" in abl: res = [x for x in res if x.op != "s_barrier"]
            if "chain" in abl:
                k = 0; r2 = []
                ch = int(abl.split("chain")[1][0])
                for x in res:
                    if x.kind == "mfma":
                        ops = x.text.split(None, 1)[1].split(", ")
                        if k % ch == 0: dkeep = ops[0]
                        x = Ins(mf(dkeep, ops[1], ops[2], dkeep)); k += 1
                    r2.append(x)
                res = r2
        return res
    stages = [qstage(s) for s in range(32)]
    txt = lambda L: [i.text for i in L]
    LO = opt.get('lo', 4); HI = LO
    while HI + 2 <= 32 and txt(stages[HI]) == txt(stages[LO]) and txt(stages[HI + 1]) == txt(stages[LO + 1]): HI += 2
    if opt.get("qunroll"): HI = LO + 2
    if p == 0: print("qproj loop stages", LO, HI)
    seq = []
    for s in range(LO): seq += stages[s]
    seq += I(stamp(2, opt)) + [Ins(f"s_mov_b32 s{S_CNT}, {(HI-LO)//2}")]
    stag = opt.get("stag", 0)
    if stag:
        if opt.get("emu"):
            seq += I([f"s_bitcmp1_b32 s2, 3", f"s_cselect_b32 s{S_CNT}, {(HI-LO)//2+opt['emu'][1]}, {(HI-LO)//2+opt['emu'][0]}",
                      "s_cselect_b32 s81, 4, 0", "s_add_u32 s82, s80, 4", "s_add_u32 s80, s80, s81"])
        elif opt.get("stagall"):
            seq += I([f"s_mov_b32 s{S_CNT}, {(HI-LO)//2+stag}"])
        elif opt.get("stagl", 1) == 1:
            seq += I([f"s_bitcmp1_b32 s2, {opt.get('stagbit',3)}", f"s_cselect_b32 s{S_CNT}, {(HI-LO)//2+stag}, s{S_CNT}"])
        else:
            seq += I([f"s_lshr_b32 s66, s2, 3", f"s_and_b32 s66, s66, {opt['stagl']}", f"s_mul_i32 s66, s66, {stag}", f"s_add_u32 s{S_CNT}, s{S_CNT}, s66"])
        stages[LO + 1] = stages[LO + 1] + I([f"s_and_b32 s{S_WO}, s{S_WO}, 0x3fffff", f"s_and_b32 s{S_XO}, s{S_XO}, 0xfffffbff", f"s_and_b32 s{S_XO2}, s{S_XO2}, 0xfffffbff"])
    seq, lg, vm = finalize_straight(seq, out, lg, vm, tag=tag + "q01", verbose=verbose)
    out += seq
    body = [Ins(".p2align 6"), Ins(f"L1_q{p}:")] + stages[LO] + stages[LO + 1] + \
           I([f"s_sub_u32 s{S_CNT}, s{S_CNT}, 1", f"s_cmp_lg_u32 s{S_CNT}, 0", f"s_cbranch_scc1 L1_q{p}"])
    body, lg, vm = finalize_loop(body, out, lg, vm, tag=tag + "qloop", verbose=verbose)
    out += body
    seq = []
    for s in range(HI, 32):
        if s == 26: seq += I(stamp(3, opt))
        seq += stages[s]
    TILES = [6, 0, 1, 2, 3, 4, 5] if p == 0 else [0, 1, 2, 3, 4, 5]
    U = len(TILES)
    E = Prog(); e = E.e
    E.extend(stamp(4, opt))
    e(f"s_mov_b32 s{S_T}, {f32bits(QSCALE):#x}\ns_mov_b32 s{S_T+1}, {f32bits(QSCALE):#x}")
    if p == 0 or opt.get("dyn"):
        e(f"v_mov_b32 v230, 0\ns_mov_b64 exec, 1\nbuffer_load_dword v251 , v230, s[{gen_op.SF}:{gen_op.SF+3}], s{gen_op.S_FW} offen sc1 nt\ns_mov_b64 exec, -1".replace("v251 ", "v253"))
        vmq.append(("T", "base"))
    if p == 0: e(f"v_subrev_u32 v{V_T}, {SLOT}, v{V_RW}")
    else: e(f"v_subrev_u32 v{V_T}, {SLOT+8192}, v{V_RW}")
    for c in [6, 0, 1, 2, 3, 4, 5]:
        for j2 in range(4):
            if c == 6 and (j2 >> 1) != p: continue
            r = QACC(c, j2, 0, p)
            for h in range(0, 8, 2): e(f"v_pk_mul_f32 v[{r+h}:{r+h+1}], v[{r+h}:{r+h+1}], s[{S_T}:{S_T+1}]")
            for h in range(4): e(f"v_cvt_pk_bf16_f32 v{r+h}, v{r+2*h}, v{r+2*h+1}")
            if c == 6 and p == 1: e(f"ds_write_b128 v{V_T}, {vr(r)} offset:{(j2&1)*1024}")
            else:
                for h in range(4): e(f"v_accvgpr_write_b32 a{Q_(c,j2)+h}, v{r+h}")
    e(f"v_mov_b32 v{V_T+2}, 0x3f803f80")
    for h in range(4): e(f"v_accvgpr_write_b32 a{ONES+h}, v{V_T+2}")
    e(f"s_waitcnt vmcnt({vm_wait({('KV',0)})}) lgkmcnt(0)\ns_barrier")
    E.extend(stamp(5, opt))
    def readK(kts=(0, 1)):
        return [f"ds_read_b128 {ar(K_(kt,ds))}, v{V_KA} offset:{kt*4096+ds*256}" for kt in kts for ds in range(4)]
    def readV(dt):
        return [f"ds_read_b64_tr_b16 {ar(V_(dt)+2*kt,2)}, v{V_VA0+(dt&1)} offset:{kt*4096+(dt>>1)*256}" for kt in range(2)]
    if p == 0:
        for i in range(2): e(f"ds_read_b128 {ar(Q_(6, 2+i))}, v{V_T} offset:{i*1024}")
    E.extend(readK())
    if p == 0: e("s_waitcnt lgkmcnt(8)")
    MK = opt.get("mkeys", 2)
    def qk_all(nk):
        L = []
        for c in sorted(TILES):
            for kt in range(nk):
                for ds in range(4):
                    d = vr(c * 8 + kt * 4)
                    L.append(mf(d, ar(K_(kt, ds)), ar(Q_(c, ds)), "0" if ds == 0 else d))
        return L
    pl = Place()
    for m in qk_all(MK): pl.add(m, 2)
    ex = []
    for t in range(LD + 1):
        if t not in kv_at: ex += dmaKV(((2 + t) % 5) * SLOT, t)
    ex += [f"s_lshl_b32 s{S_PFO}, s2, 2\ns_add_u32 s{S_PFO}, s{S_PFO}, s{S_WAVE}", f"s_lshl_b32 s{S_PFO}, s{S_PFO}, 13"]
    if any(isvm(x) for x in ex): pl.spread(0, len(pl.m) - 2, ex, vmcap=1)
    else: pl.put(18, ex)
    pl.put(1, [x for dt in range(8) for x in readV(dt)], step=1)
    E.ins += pl.ins()
    for c in sorted(TILES):
        r = c * 8
        if MK == 2: e(f"v_max3_f32 v{r}, v{r}, v{r+1}, v{r+2}\nv_max3_f32 v{r+3}, v{r+3}, v{r+4}, v{r+5}\nv_max3_f32 v{r}, v{r}, v{r+6}, v{r+7}\nv_max_f32 v{r}, v{r}, v{r+3}")
        else: e(f"v_max3_f32 v{r}, v{r}, v{r+1}, v{r+2}\nv_max_f32 v{r}, v{r}, v{r+3}")
    seq += E.ins
    seq, lg, vm = finalize_straight(seq, out, lg, vm, tag=tag + "qtail", verbose=verbose)
    out += seq
    E = Prog(); e = E.e
    e(f"L1_m{p}:")
    e("s_waitcnt lgkmcnt(0)")
    for c in TILES: e(f"v_mov_b32 v{c*8+1}, v{c*8}")
    for c in TILES: e(f"v_permlane32_swap_b32 v{c*8}, v{c*8+1}")
    for c in TILES: e(f"v_max_f32 v{c*8}, v{c*8}, v{c*8+1}\nv_mov_b32 v{c*8+1}, v{c*8}")
    for c in TILES: e(f"v_permlane16_swap_b32 v{c*8}, v{c*8+1}")
    for c in TILES: e(f"v_max_f32 v{c*8}, v{c*8}, v{c*8+1}")
    for c in TILES:
        for h in range(4): e(f"v_sub_f32 v{NEGM(c)+h}, 0, v{c*8}")
    e(f"s_mov_b32 s{S_DST}, {((3+LD)%5)*SLOT}\ns_mov_b32 s{S_RD}, {2*SLOT}")
    E.extend(stamp(6, opt))
    pre_a = E.ins

    T0 = opt.get("t0", 30)
    groups = opt.get("groups", [[[6, 0, 1, 2, 3, 4, 5]], [[0, 1, 2, 3, 4, 5]]])[p]
    visits = [(t, TILES) for t in range(T0)] + [(t, g) for g in groups for t in range(T0, 32)]
    units = [(t, c) for t, g in visits for c in g]
    vend = []
    for t, g in visits: vend.append((vend[-1] if vend else -1) + len(g))
    N = len(units)
    pl = Place()
    slot_start = []
    for n in range(N + 2):
        slot_start.append(len(pl.m))
        qk = units[n] if n < N else None
        sm = units[n - 1] if 1 <= n <= N else None
        pv = units[n - 2] if n >= 2 else None
        def Qm(kt, ds):
            if not qk: return None
            d = vr(S_(n % 2, kt))
            return mf(d, ar(K_(kt, ds)), ar(Q_(qk[1], ds)), vr(NEGM(qk[1])) if ds == 0 else d)
        fst = pv is not None and pv[0] == 0
        def Pm(dt):
            if not pv: return None
            d = O_(pv[1], dt)
            return mf(d, ar(V_(dt)), vr(P_(n % 2)), "0" if fst else d)
        def Lm():
            if not pv: return None
            d = ar(L_(pv[1]))
            return mf(d, ar(ONES), vr(P_(n % 2)), "0" if fst else d)
        sb = (n - 1) % 2
        def Ex(i): return [f"v_exp_f32 v{S_(sb,0)+i}, v{S_(sb,0)+i}"] if sm else []
        def Cv(i): return [f"v_cvt_pk_bf16_f32 v{P_(sb)+i}, v{S_(sb,0)+2*i}, v{S_(sb,0)+2*i+1}"] if sm else []
        pl.add(None, 0)
        for ds in range(4): pl.add(Qm(0, ds), 0, Ex(ds))
        pl.add(Pm(0), 1, Cv(0)); pl.add(Pm(1), 1, Cv(1))
        pl.add(Pm(2), 2); pl.add(Pm(3), 2)
        pl.add(None, 0)
        for ds in range(4): pl.add(Qm(1, ds), 0, Ex(4 + ds))
        pl.add(Pm(4), 1, Cv(2)); pl.add(Pm(5), 1, Cv(3))
        pl.add(Pm(6), 2); pl.add(Pm(7), 2)
        pl.add(Lm(), 2)
    slot_start.append(len(pl.m))
    G = lambda n, k: slot_start[n] + k
    at = lambda n, k, items: pl.at(G(n, k), items)
    kx, vx = opt.get("kx", 0), opt.get("vx", 0)
    slot_of = lambda t: ((2 + t) % 5) * SLOT
    for vi in range(len(visits) - 1):
        n = vend[vi]
        tail = vi + 1 > T0
        k0 = readK((0,)); k1 = readK((1,))
        W = (lambda nn, kk, x: None) if tail else (lambda nn, kk, x: at(nn, kk, [x]))
        if kx == 0 or tail:
            at(n, 7, k0[:2]); at(n, 8, k0[2:]); at(n, 16, k1[:2]); at(n, 17, k1[2:])
            W(n, 18, "s_waitcnt lgkmcnt(4)")
            W(n + 1, 8, "s_waitcnt lgkmcnt(0)")
        else:
            at(n + 1, 0, k0 + k1 + [f"s_waitcnt lgkmcnt({4 if kx == 1 else 0})"])
            if kx == 1: at(n + 1, 8, ["s_waitcnt lgkmcnt(0)"])
        m = n + 2
        v = [readV(dt) for dt in range(8)]
        if vx == 0 or tail:
            at(m, 5, v[0][:1]); at(m, 6, v[0][1:]); at(m, 7, v[1]); at(m, 8, v[2])
            at(m, 14, v[3][:1]); at(m, 15, v[3][1:]); at(m, 16, v[4]); at(m, 17, v[5]); at(m, 18, v[6])
            W(m + 1, 4, "s_waitcnt lgkmcnt(6)")
            at(m + 1, 5, v[7][:1]); at(m + 1, 6, v[7][1:])
            W(m + 1, 8, "s_waitcnt lgkmcnt(2)")
            W(m + 1, 16, "s_waitcnt lgkmcnt(0)")
        else:
            at(m + 1, 0 if vx == 1 else 4, [x for f in v for x in f])
            at(m + 1, 4, [f"s_waitcnt lgkmcnt({8 if vx < 3 else 0})"])
            if vx < 3: at(m + 1, 8, ["s_waitcnt lgkmcnt(0)"])
        if not tail:
            T4 = S_T + 4
            at(n - 1, 5, [f"s_add_u32 s{T4}, s{S_RD}, {SLOT}"])
            at(n - 1, 7, [f"s_cmp_eq_u32 s{T4}, {SLOT*NSLOT}\ns_cselect_b32 s{T4}, 0, s{T4}"])
            at(n - 1, 14, [f"s_sub_u32 s{S_DELTA}, s{T4}, s{S_RD}"]); at(n - 1, 15, [f"s_mov_b32 s{S_RD}, s{T4}"])
            adv = lambda r: f"v_add_u32 v{r}, s{S_DELTA}, v{r}"
        else:
            d = slot_of(visits[vi + 1][0]) - slot_of(visits[vi][0])
            adv = lambda r: f"v_add_u32 v{r}, {d}, v{r}" if d >= 0 else f"v_subrev_u32 v{r}, {-d}, v{r}"
        pl.g[G(n, 5)].insert(len(pl.g[G(n, 5)]), adv(V_KA)); pl.cap[G(n, 5)] -= 1
        at(n + 1, 14, [adv(V_VA0)]); at(n + 1, 15, [adv(V_VA1)])
    BP = opt.get("bp", 3)
    NIT = (T0 - 2) // 2
    assert (T0 - 2) % 2 == 0
    for j in range(31):
        if j < T0:
            g = G(U * j + BP, 0); nxt = G(U * (j + 1) + BP, 0) if j + 1 < T0 else G(vend[j + 1], 0)
        else:
            g = G(vend[j], 0)
        if j >= T0 or j == 30:
            w = 0 if j == 30 else min(8 * (LD - 1), vm_wait({('KV', j + 1)}))
            pl.g[g] += [f"s_waitcnt vmcnt({w})", "s_barrier"]
            if j == 30:
                pf = [f"buffer_load_dword v255, v{V_PF}, s[56:59], s{S_PFO} offen"]
                if opt.get("wost") is None and not opt.get("wothin"): pl.put(g + 1, pf)
            continue
        assert j + LD + 1 >= 31 or j + 1 < T0 or True
        pl.g[g] += [f"s_waitcnt vmcnt({min(8 * (LD - 1), vm_wait({('KV', j + 1)}))})", "s_barrier"]
        dm = dmaKV(f"s{S_DST}", j + LD + 1) + ring_next(S_DST)
        if opt.get("dmadelay") is None:
            pl.spread(g, min(nxt, G(U * (j + 1), 0)), dm, vmcap=opt.get("vmcap", 2), group=opt.get("dmagroup", 8))
        else:
            full = G(U * (j + 1) + BP, 0)
            lo = g + int((full - g) * opt["dmadelay"])
            pl.spread(lo, min(full, max(nxt, lo + 60)), dm, vmcap=1, group=8)
    if opt.get("wearly", 1): pl.g[G(N + 1, 0)] += ["s_waitcnt lgkmcnt(0)", "s_barrier"]
    assert T0 - 1 + LD + 1 >= 31, "all steps must have been issued before the tail"
    assert T0 - 1 + LD + 1 - 5 < T0, "dummy loads must not overwrite live tail slots"
    R_ = lambda c: NEGM(c)
    V_SA, V_SUM = 253, 254
    def norm_store(r, rc, j, mt, packed):
        L = []
        if packed:
            for h in range(0, 8, 2): L.append(f"v_pk_mul_f32 v[{r+h}:{r+h+1}], v[{r+h}:{r+h+1}], v[{rc}:{rc+1}] op_sel_hi:[1,0]")
        else:
            for h in range(8): L.append(f"v_mul_f32 v{r+h}, v{r+h}, v{rc}")
        for h in range(4): L.append(f"v_cvt_pk_bf16_f32 v{r+h}, v{r+2*h}, v{r+2*h+1}")
        L.append(f"s_add_u32 s{S_T+5}, s{S_T+3}, {(j*13+mt)*1024}")
        L.append(f"buffer_store_dwordx4 {vr(r)}, v{V_SA}, s[20:23], s{S_T+5} offen {opt.get('osf','')}")
        return L
    done = []
    def finish(c, packed):
        L = [f"v_accvgpr_read_b32 v{R_(c)+2}, a{L_(c)}", f"v_rcp_f32 v{R_(c)}, v{R_(c)+2}",
             f"v_add_f32 v{V_SUM}, v{V_SUM}, v{R_(c)+2}" if done else f"v_mov_b32 v{V_SUM}, v{R_(c)+2}"]
        for j in range(4):
            if c < 6: L += norm_store(c * 32 + j * 8, R_(c), j, mt_of(c), packed)
            else:
                stg = done[0] * 32 + j * 8
                L += [f"v_accvgpr_read_b32 v{stg+i}, a{208+8*j+i}" for i in range(8)] + norm_store(stg, R_(c), j, 12, packed)
        done.append(c)
        return L
    at(U * T0, 7, [f"v_lshlrev_b32 v{V_SA}, 4, v{V_LANE}", f"s_lshl_b32 s{S_T+3}, s{S_HP}, 1"])
    at(U * T0, 8, [f"s_add_u32 s{S_T+3}, s{S_T+3}, s{S_HH}", f"s_mul_i32 s{S_T+3}, s{S_T+3}, {4*13*1024}"])
    late = []
    pos = 0
    dens = opt.get("dens", 2)
    order = [n for n, (t, c) in enumerate(units) if t == 31]
    pend6 = None
    for n in order:
        c = units[n][1]
        if c == 6 and not done: pend6 = n; continue
        todo = [c] + ([6] if pend6 is not None else [])
        pend6 = None
        for cc in todo:
            start = G(n + 3, 1) if n + 3 <= N + 1 else len(pl.m)
            if start >= len(pl.m) - 4 or late or not opt.get("prog", 1): late.append(cc); continue
            pos = max(pos, start)
            items = finish(cc, False)
            k = 0
            while k < len(items) and pos < len(pl.m):
                if pl.m[pos]:
                    room = max(pl.cap[pos], 0) + (dens - 2 if pl.cap[pos] > 0 else dens - 2)
                    room = max(room, 0)
                    take = items[k:k + room]; pl.at(pos, take); k += len(take)
                pos += 1
            if k < len(items): pl.at(len(pl.m) - 1, items[k:]); pos = len(pl.m)
    cap = []
    if p == 0 or opt.get("dyn"): cap = I([f"s_cmp_lg_u32 s{S_FLAG}, 0\ns_cbranch_scc1 L1_nb{p}", f"v_readfirstlane_b32 s{gen_op.S_BASE}, v253", f"L1_nb{p}:"])
    seq = pre_a + pl.ins(0, G(2 * U, 0)) + cap + I(stamp(7, opt)) + [Ins(f"s_mov_b32 s{S_CNT}, {NIT}")]
    seq, lg, vm = finalize_straight(seq, out, lg, vm, tag=tag + "a0", verbose=verbose)
    out += seq
    per = G(4 * U, 0) - G(2 * U, 0)
    for it in range(1, NIT):
        for k in range(per):
            a, b = G(2 * U, 0) + k, G(2 * U, 0) + it * per + k
            assert pl.m[a] == pl.m[b] and pl.g[a] == pl.g[b], (it, k, pl.m[a], pl.m[b], pl.g[a], pl.g[b])
    lst = []
    if opt.get("prof2"):
        lst = I(["s_waitcnt lgkmcnt(0)", "s_memrealtime s[98:99]", "s_memtime s[100:101]", f"s_add_u32 s52, s{S_CNT}, 1", "s_and_b32 s52, s52, 0xfe", "s_sub_u32 s52, 38, s52", "s_add_u32 s53, s52, 1",
                 "s_waitcnt lgkmcnt(0)", "v_mov_b32 v252, s98", f"v_cmp_eq_u32 vcc, s52, v{V_LANE}", "v_cndmask_b32 v251, v251, v252, vcc",
                 "v_mov_b32 v252, s100", f"v_cmp_eq_u32 vcc, s53, v{V_LANE}", "v_cndmask_b32 v251, v251, v252, vcc"])
    body = [Ins(".p2align 6"), Ins(f"L1_a{p}:")] + pl.ins(G(2 * U, 0), G(4 * U, 0)) + lst + \
           I([f"s_sub_u32 s{S_CNT}, s{S_CNT}, 1", f"s_cmp_lg_u32 s{S_CNT}, 0", f"s_cbranch_scc1 L1_a{p}"])
    body, lg, vm = finalize_loop(body, out, lg, vm, tag=tag + "aloop", verbose=verbose)
    out += body
    seq = I(stamp(8, opt)) + pl.ins(G(T0 * U, 0), len(pl.m))
    E = Prog(); e = E.e
    e(f"L1_e{p}:")
    E.extend(stamp(9, opt))
    xs = 139264
    if opt.get("wearly", 1) == 1:
        E.extend(gen_op.op_vector_setup(opt, V_LANE, S_WAVE, S_HP)); E.extend(gen_op.w_first(opt))
    if 6 in late and not done: late = [c for c in late if c != 6][:1] + [6] + [c for c in late if c != 6][1:]
    for c in late: E.extend(finish(c, True))
    e(f"v_lshlrev_b32 v{V_T}, 2, v{V_LANE}\nv_add_u32 v{V_T}, {xs}, v{V_T}\ns_lshl_b32 s{S_T+2}, s{S_WAVE}, 8\nv_add_u32 v240, s{S_T+2}, v{V_T}")
    e(f"ds_write_b32 v240, v{V_SUM}")
    E.extend(stamp(10, opt))
    if opt.get("wearly", 1) != 1: E.extend(gen_op.op_vector_setup(opt, V_LANE, S_WAVE, S_HP))
    if opt.get("wearly", 1) == 2: E.extend(gen_op.w_first(opt))
    if opt.get("dyn"): e(f"s_lshl_b32 s{S_T+6}, 1, s{S_HP}\nv_mov_b32 v241, s{S_T+6}")
    else: e("v_mov_b32 v241, 1")
    if opt.get("dyn") and opt.get("prepoll", 1): e(gen_op.pollw())
    e("s_waitcnt vmcnt(0) lgkmcnt(0)\ns_barrier")
    for w in range(4): e(f"ds_read_b32 v{216+w}, v{V_T} offset:{w*256}")
    e(f"s_mov_b32 s{S_T+5}, 0x5f800000")
    e("v_add_f32 v216, v216, v217\nv_add_f32 v218, v218, v219\nv_add_f32 v216, v216, v218")
    e(f"v_cmp_ngt_f32 vcc, s{S_T+5}, v216")
    e(f"s_cmp_lg_u32 s{S_FLAG}, 0\ns_cbranch_scc1 L1_ok{p}")
    e(f"s_cbranch_vccnz L1_fb{p}")
    e(f"L1_ok{p}:")
    E.extend(stamp(20, opt))
    if p == 0:
        e(f"s_cmp_lg_u32 s{S_WAVE}, 0\ns_cbranch_scc1 L2_main")
        if opt.get("dyn"): e(f"s_and_b32 s{S_T+6}, s{S_HP}, 3\ns_lshl_b32 s{gen_op.S_FP}, s{S_B}, 2\ns_add_u32 s{gen_op.S_FP}, s{gen_op.S_FP}, s{S_T+6}\ns_mul_i32 s{gen_op.S_FP}, s{gen_op.S_FP}, {gen_op.FSTRIDE}\ns_mov_b64 exec, 1")
        else: e(f"s_mul_i32 s{gen_op.S_FP}, s{S_B}, {gen_op.FSTRIDE}\ns_mov_b64 exec, 1")
        e(f"buffer_atomic_add v241, v{gen_op.V_ZERO}, s[{gen_op.SF}:{gen_op.SF+3}], s{gen_op.S_FP} offen sc1")
        e(f"buffer_atomic_add v241, v{gen_op.V_ZERO}, s[76:79], s80 offen sc1\ns_mov_b64 exec, -1")
    e("s_branch L2_main")
    seq += E.ins
    seq, lg, vm = finalize_straight(seq, out, lg, vm, tag=tag + "tail", verbose=verbose)
    out += seq
    F = Prog(); e = F.e
    e(f"L1_fb{p}:")
    e("s_waitcnt vmcnt(0) lgkmcnt(0)\ns_barrier")
    back = (2 - (2 + 31) % 5) * SLOT
    assert back < 0
    for r in (V_KA, V_VA0, V_VA1): e(f"v_subrev_u32 v{r}, {-back}, v{r}")
    for c in TILES: e(f"v_mov_b32 v{64+c}, 0xff800000")
    e(KVRST + f"\ns_mov_b32 s{S_CNT}, 32\ns_mov_b32 s{S_FLAG}, 1")
    fpre, _, _ = finalize_straight(F.ins, [], [], [], tag=tag + "fb0")
    F = Prog(); e = F.e
    e(f"L1_fl{p}:")
    F.extend(dmaKV(2 * SLOT, 0, track=False))
    e("s_waitcnt vmcnt(0)\ns_barrier")
    F.extend(readK())
    F.extend(qk_all(2))
    for c in sorted(TILES):
        r = c * 8
        e(f"v_max3_f32 v{r}, v{r}, v{r+1}, v{r+2}\nv_max3_f32 v{r+3}, v{r+3}, v{r+4}, v{r+5}\nv_max3_f32 v{r}, v{r}, v{r+6}, v{r+7}")
        e(f"v_max3_f32 v{64+c}, v{64+c}, v{r}, v{r+3}")
    e("s_barrier")
    e(f"s_sub_u32 s{S_CNT}, s{S_CNT}, 1\ns_cmp_lg_u32 s{S_CNT}, 0\ns_cbranch_scc1 L1_fl{p}")
    fl, _, _ = finalize_loop(F.ins, fpre, [], [], tag=tag + "fbl")
    F = Prog(); e = F.e
    e(KVRST)
    for t in range(LD + 1): F.extend(dmaKV(((2 + t) % 5) * SLOT, t, track=False))
    for c in TILES: e(f"v_mov_b32 v{c*8}, v{64+c}")
    e("s_waitcnt vmcnt(0)\ns_barrier")
    F.extend(readK())
    for dt in range(8): F.extend(readV(dt))
    e(f"s_branch L1_m{p}")
    fpost, _, _ = finalize_straight(F.ins, fl, [], [], tag=tag + "fb2")
    out += fpre + fl + fpost
    return out
```

```python
from asmgen import *
from gen_k2 import mf, vr, ar, WS_O_BYTES_PER_B

SLOT = 8448
WREG = 4 * SLOT
V_OA, V_OB, V_OC = 220, 221, 222
V_W = 224
V_RD = 228
V_POLL, V_ZERO = 230, 231
V_X = 232
SO, SW, SOUT = 60, 84, 88
S_OO, S_W1, S_W2 = 92, 93, 94
S_REM, S_NXT, S_LB = 95, 96, 97
SF = 72
S_FW, S_BASE, S_FP = 95, 96, 38
FSTRIDE = 4352
S_IDX, S_STEP = 52, 53
S_OB, S_NB, S_HALF = 81, 82, 83
S_FO = 66
S_X = 67
def acc(c, j2, u): return (c * 8 + j2 * 2 + u) * 4 if c < 6 else (48 + j2 * 2 + u) * 4
def Bf(i, c): return 112 + (i % 4) * 28 + c * 4
DEEP = [0]
def Af(i, j2, u): return (i if DEEP[0] and i < 3 else 2 if i == 31 else i % 2) * 32 + (j2 * 2 + u) * 4
srd = lambda r: f"s[{r}:{r+3}]"

def op_scalar_setup(opt, S_WAVE):
    L = ["s_and_b32 s67, s2, 7", "s_lshr_b32 s68, s2, 3",
         f"s_lshr_b32 s{S_OB}, s67, 1", f"s_lshl_b32 s{S_OB}, s{S_OB}, 2", "s_lshr_b32 s69, s68, 3", f"s_add_u32 s{S_OB}, s{S_OB}, s69",
         f"s_and_b32 s{S_NB}, s67, 1", f"s_lshl_b32 s{S_NB}, s{S_NB}, 2", "s_lshr_b32 s69, s68, 1", "s_and_b32 s69, s69, 3", f"s_add_u32 s{S_NB}, s{S_NB}, s69",
         f"s_and_b32 s{S_HALF}, s68, 1",
         f"s_mul_i32 s69, s{S_OB}, {WS_O_BYTES_PER_B}",
         f"s_add_u32 s{SO}, s4, s69", f"s_addc_u32 s{SO+1}, s5, 0", f"s_mov_b32 s{SO+2}, {WS_O_BYTES_PER_B}", f"s_mov_b32 s{SO+3}, 0x20000",
         f"s_lshl_b32 s69, s{S_NB}, 8",
         f"s_add_u32 s{SW}, s6, s69", f"s_addc_u32 s{SW+1}, s7, 0", f"s_sub_u32 s{SW+2}, 8388608, s69", f"s_mov_b32 s{SW+3}, 0x20000",
         f"s_mul_i32 s69, s{S_OB}, 425984",
         f"s_add_u32 s{SOUT}, s{SOUT}, s69", f"s_addc_u32 s{SOUT+1}, s{SOUT+1}, 0", f"s_mov_b32 s{SOUT+2}, 425984", f"s_mov_b32 s{SOUT+3}, 0x20000",
         f"s_add_u32 s{SF}, s4, 0x4000000", f"s_addc_u32 s{SF+1}, s5, 0", f"s_mov_b32 s{SF+2}, 0x80000", f"s_mov_b32 s{SF+3}, 0x20000",
         f"s_mul_i32 s{S_FW}, s{S_OB}, {FSTRIDE}" if not opt.get("dyn") else f"s_lshl_b32 s69, s{S_OB}, 2\ns_add_u32 s69, s69, s{S_WAVE}\ns_mul_i32 s{S_FW}, s69, {FSTRIDE}",
         f"s_lshl_b32 s{S_FO}, s{S_OB}, 4", f"s_mul_i32 s{S_LB}, s{S_WAVE}, {WREG}"]
    return L

def poll_issue(): return f"s_mov_b64 exec, 1\nbuffer_load_dword v{V_POLL}, v{V_ZERO}, s[76:79], s{S_FO} offen sc1\ns_mov_b64 exec, -1"

def op_vector_setup(opt, V_LANE, S_WAVE, S_HP):
    t0, t1, t2 = V_X, V_X + 1, V_X + 2
    L = [f"s_mul_i32 s67, s{S_HALF}, 6144", f"v_lshlrev_b32 v{t0}, 4, v{V_LANE}",
         f"v_add_u32 v{V_OA}, s67, v{t0}", f"v_add_u32 v{V_OB}, 4096, v{V_OA}", f"v_add_u32 v{V_OC}, 12288, v{t0}",
         f"v_lshrrev_b32 v{t0}, 2, v{V_LANE}", f"v_and_b32 v{t0}, 3, v{t0}", f"v_lshlrev_b32 v{t0}, 11, v{t0}",
         f"v_lshrrev_b32 v{t1}, 4, v{V_LANE}", f"v_lshl_add_u32 v{t0}, v{t1}, 6, v{t0}",
         f"v_and_b32 v{t2}, 3, v{V_LANE}", f"v_lshl_add_u32 v{V_W}, v{t2}, 4, v{t0}"]
    for i in range(1, 4): L.append(f"v_add_u32 v{V_W+i}, {i*(8*2048-1024)}, v{V_W}")
    L += [f"v_and_b32 v{t0}, 1, v{t1}", f"v_mul_u32_u24 v{t0}, 4104, v{t0}", f"v_lshrrev_b32 v{t1}, 1, v{t1}", f"v_lshl_add_u32 v{t0}, v{t1}, 10, v{t0}",
          f"v_and_b32 v{t2}, 15, v{V_LANE}", f"v_lshl_add_u32 v{t0}, v{t2}, 4, v{t0}",
          f"s_lshl_b32 s67, s{S_HALF}, 9", f"s_add_u32 s68, s{S_LB}, s67", f"v_add_u32 v{V_RD}, s68, v{t0}",
          f"s_sub_u32 s67, 512, s67", f"s_add_u32 s68, s{S_LB}, s67", f"v_add_u32 v{V_RD+1}, s68, v{t0}",
          f"v_mov_b32 v{V_ZERO}, 0",
          ]
    if not opt.get("dyn"):
        L += [f"s_mul_i32 s{S_OO}, s{S_WAVE}, {32*13312}", f"s_lshl_b32 s{S_W1}, s{S_WAVE}, 21", f"s_add_u32 s{S_W2}, s{S_W1}, 8192"]
    else:
        L += [f"s_bitcmp1_b32 s{S_WAVE}, 0\ns_cselect_b32 s{S_STEP}, 12, 4",
              f"s_and_b32 s{S_IDX}, s{S_HP}, 12", f"s_add_u32 s{S_IDX}, s{S_IDX}, s{S_WAVE}", f"s_add_u32 s{S_IDX}, s{S_IDX}, s{S_STEP}", f"s_and_b32 s{S_IDX}, s{S_IDX}, 15",
              f"s_mul_i32 s{S_OO}, s{S_IDX}, {8*13312}", f"s_lshl_b32 s{S_W1}, s{S_IDX}, 19", f"s_add_u32 s{S_W2}, s{S_W1}, 8192"]
    return L

def pollw(): return f"s_mov_b64 exec, 1\nbuffer_load_dword v{V_POLL}, v{V_ZERO}, {srd(SF)}, s{S_FW} offen sc1\ns_mov_b64 exec, -1"
def ready(lab, have, sleep=2):
    L = []
    if have: L += [f"v_readfirstlane_b32 s67, v{V_POLL}", f"s_sub_u32 s67, s67, s{S_BASE}", f"s_bitcmp1_b32 s67, s{S_IDX}\ns_cbranch_scc1 {lab}_k"]
    L += [f"s_mov_b32 s69, 0x3fffff\ns_mov_b64 exec, 1",
          f"{lab}_p:",
          f"s_and_b32 s68, s69, 15\ns_cbranch_scc0 {lab}_d",
          f"buffer_load_dword v{V_POLL}, v{V_ZERO}, {srd(SF)}, s{S_FW} offen sc1", "s_waitcnt vmcnt(0)",
          f"v_readfirstlane_b32 s67, v{V_POLL}", f"s_sub_u32 s67, s67, s{S_BASE}", f"s_branch {lab}_c",
          f"{lab}_d:",
          f"buffer_load_dword v{V_POLL}, v{V_ZERO}, s[76:79], s{S_FO} offen sc1", "s_waitcnt vmcnt(0)",
          f"v_readfirstlane_b32 s67, v{V_POLL}",
          f"{lab}_c:",
          f"s_bitcmp1_b32 s67, s{S_IDX}\ns_cbranch_scc1 {lab}_o",
          f"s_sub_u32 s69, s69, 1\ns_cbranch_scc1 {lab}_o",
          f"s_sleep {sleep}\ns_branch {lab}_p",
          f"{lab}_o:", "s_mov_b64 exec, -1",
          f"{lab}_k:"]
    return L
ADVW = [f"s_add_u32 s67, s{S_IDX}, s{S_STEP}", "s_and_b32 s67, s67, 15", f"s_lshl_b32 s68, s67, 19",
        f"s_bitcmp0_b32 s70, 0\ns_cselect_b32 s{S_IDX}, s67, s{S_IDX}\ns_cselect_b32 s{S_W1}, s68, s{S_W1}", f"s_add_u32 s{S_W2}, s{S_W1}, 8192"]
ADVO = [f"s_mul_i32 s67, s{S_IDX}, {8*13312}", f"s_bitcmp0_b32 s70, 0\ns_cselect_b32 s{S_OO}, s67, s{S_OO}"]

def loadO(i, opt):
    L = []
    for c in range(7):
        v, off = (V_OA, c * 1024) if c < 4 else (V_OB, (c - 4) * 1024) if c < 6 else (V_OC, 0)
        L.append(f"buffer_load_dwordx4 {ar(Bf(i,c))}, v{v}, {srd(SO)}, s{S_OO} offen offset:{off} sc1")
    L.append(f"s_add_u32 s{S_OO}, s{S_OO}, 13312")
    return L
def loadW(i, opt):
    k = i % 4
    L = [f"s_add_u32 m0, s{S_LB}, {k*SLOT}"]
    for q in range(4): L.append(f"buffer_load_dwordx4 v{V_W+q}, {srd(SW)}, s{S_W1} offen offset:{q*1024} lds")
    L.append(f"s_add_u32 m0, s{S_LB}, {k*SLOT+4104}")
    for q in range(4): L.append(f"buffer_load_dwordx4 v{V_W+q}, {srd(SW)}, s{S_W2} offen offset:{q*1024} lds")
    L += [f"s_add_u32 s{S_W1}, s{S_W1}, 65536", f"s_add_u32 s{S_W2}, s{S_W2}, 65536"]
    return L
def readA(i):
    L = []
    for jl in range(4):
        for u in range(2):
            for uk in range(2):
                off = (i % 4) * SLOT + uk * 2048 + (jl & 1) * 256 + u * 8
                L.append(f"ds_read_b64_tr_b16 {ar(Af(i,jl,u)+2*uk,2)}, v{V_RD+(jl>>1)} offset:{off}")
    return L
def w_first(opt):
    L = []
    for i in range(4): L += loadW(i, opt)
    return L

def gen_main(opt, stamp, stamp_store, V_LANE, S_WAVE):
    deep = opt.get("deep", 0); DEEP[0] = deep
    P = Prog(); e = P.e
    e("L2_main:")
    q = []
    def wait_cnt(lab, n, first_wait):
        e(f"s_cmp_lg_u32 s{S_WAVE}, 0\ns_cbranch_scc1 {lab}_go")
        e(f"s_mov_b32 s69, 0x3fffff\ns_mov_b64 exec, 1")
        e(f"{lab}_poll:")
        e(f"s_and_b32 s68, s69, 15\ns_cbranch_scc0 {lab}_dbg")
        e(f"buffer_load_dword v{V_POLL}, v{V_ZERO}, {srd(SF)}, s{S_FW} offen sc1\ns_waitcnt vmcnt(0)")
        e(f"v_readfirstlane_b32 s67, v{V_POLL}\ns_sub_u32 s67, s67, s{S_BASE}\ns_branch {lab}_chk")
        e(f"{lab}_dbg:")
        e(f"buffer_load_dword v{V_POLL}, v{V_ZERO}, s[76:79], s{S_FO} offen sc1\ns_waitcnt vmcnt(0)")
        e(f"v_readfirstlane_b32 s67, v{V_POLL}")
        e(f"{lab}_chk:")
        e(f"s_cmp_eq_u32 s67, {n}\ns_cbranch_scc1 {lab}_ok")
        e(f"s_sub_u32 s69, s69, 1\ns_cbranch_scc1 {lab}_ok")
        e(f"s_sleep {opt.get('psleep', 2)}\ns_branch {lab}_poll")
        e(f"{lab}_ok:\ns_mov_b64 exec, -1")
        e(f"{lab}_go:")
        e("s_barrier")
    if opt.get("gate"): wait_cnt("L2_g", opt["gate"], 0)
    if not opt.get("wearly", 1): P.extend(w_first(opt))
    dyn = opt.get("dyn")
    if dyn: P.extend(ready("L2_f", bool(opt.get("prepoll", 1)), opt.get("psleep", 2)))
    elif opt.get("gate") != 16: wait_cnt("L2", 16, 0)
    P.extend(stamp(21, opt))
    for i in range(3): P.extend(loadO(i, opt)); q += [("O", i)] * 7
    e("s_waitcnt vmcnt(45)")
    P.extend(readA(0))
    pro, lg, _ = finalize_straight(P.ins, [], [], [], tag="oppro")
    vm = [set(f"a{Bf(i,c)+r}" for r in range(4)) for i in range(3) for c in range(7)]
    out = list(pro)
    def kstep(i, first=False, vmw=None):
        S = Prog()
        ol = i + 3 <= 31; wl = i + 4 <= 31 and not (deep and i < 3); rd = i + 1 <= 30 and not (deep and i < 2)
        last = max((k for k, t in enumerate(q) if t in (("O", i), ("W", i + 1))), default=-1)
        S.e(f"s_waitcnt vmcnt({min(30, len(q) - 1 - last)}) lgkmcnt(0)")
        inloop = 4 <= i < 28
        if dyn and inloop and i % 4 == 1: S.extend(ready("L2_c", True, opt.get("psleep", 2))); S.extend(ADVO)
        mfs = [mf(vr(acc(c, jl, u)), ar(Af(i, jl, u)), ar(Bf(i, c)), "0" if first else vr(acc(c, jl, u)))
               for jl in range(4) for u in range(2) for c in range(7) if not (c == 6 and jl >= 2)]
        gaps = [[] for _ in mfs]
        ld = (loadO(i + 3, opt) if ol else []) + (ADVW if dyn and inloop and i % 4 == 0 else []) + (loadW(i + 4, opt) if wl else [])
        if dyn and i % 4 == 2 and i < 28:
            gaps[0].append(pollw()); q.append(("P", i))
        q.extend(([("O", i + 3)] * 7 if ol else []) + ([("W", i + 4)] * 8 if wl else []))
        gi = 1
        for x in ld:
            gaps[min(gi, len(mfs) - 1)].append(x)
            if x.startswith("buffer"): gi += 3
        gi = 2
        for k, x in enumerate(readA(i + 1) if rd else []):
            gaps[gi].append(x); gi += (1 if k % 2 == 0 else 2)
        if i == 29:
            gaps[29].append("s_waitcnt vmcnt(7)")
            for k, x in enumerate(readA(31)): gaps[30 + k].append(x)
        for m, g in zip(mfs, gaps):
            S.e(m); S.extend(g)
        return S.ins
    ks = [kstep(i, first=(i == 0)) for i in range(30)]
    txt = lambda L: [x.text for x in L]
    LO = 4 if all(txt(ks[4 + k]) == txt(ks[8 + k]) for k in range(4)) else 8
    for i in range(LO, 28): assert txt(ks[i]) == txt(ks[LO + (i - LO) % 4]), i
    seq = [x for i in range(LO) for x in ks[i]] + [Ins(f"s_mov_b32 s70, {(28-LO)//4}")]
    seq, lg, vm = finalize_straight(seq, out, lg, vm, tag="oppeel")
    out += seq
    body = [Ins(".p2align 6"), Ins("L2_loop:")] + [x for i in range(LO, LO + 4) for x in ks[i]]
    body += [Ins("s_sub_u32 s70, s70, 1"), Ins("s_cmp_lg_u32 s70, 0"), Ins("s_cbranch_scc1 L2_loop")]
    if dyn:
        chk = []; skip = False
        for x in body:
            if x.text.startswith("s_mov_b32 s69, 0x3fffff"): skip = True
            if x.lab and x.lab.endswith("_k"): skip = False
            if not skip: chk.append(x)
        v1 = check_vm(chk, vm, "oploop"); vm = check_vm(chk, v1, "oploop2")
        _, lg, n = fix_lgkm(body, lg); assert n == 0
        body, _ = fix_hazards(body, out); body, _ = fix_hazards(body, body)
    else: body, lg, vm = finalize_loop(body, out, lg, vm, tag="oploop")
    out += body
    seq, lg, vm = finalize_straight(ks[28] + ks[29], out, lg, vm, tag="optail")
    out += seq
    def owner(pt): return pt % 4 if pt < 24 else pt - 24
    E = Prog(); e = E.e
    E.extend(stamp(22, opt))
    A0 = V_X
    e(f"v_lshlrev_b32 v{A0}, 4, v{V_LANE}\nv_add_u32 v{A0+1}, 65536, v{A0}\nv_add_u32 v{A0+2}, 131072, v{A0}")
    e(f"v_and_b32 v{A0+3}, 15, v{V_LANE}\nv_lshlrev_b32 v{A0+3}, 11, v{A0+3}\nv_lshrrev_b32 v{A0+4}, 4, v{V_LANE}\nv_lshlrev_b32 v{A0+4}, 4, v{A0+4}")
    e(f"s_lshl_b32 s67, s{S_NB}, 8\nv_add3_u32 v{A0+3}, v{A0+3}, v{A0+4}, s67")
    e(f"s_lshl_b32 s68, s{S_HALF}, 7\ns_sub_u32 s69, 128, s68\ns_mul_i32 s70, s{S_HALF}, {6*32768}")
    e("s_waitcnt vmcnt(0) lgkmcnt(0)\ns_barrier")
    e(f"s_cmp_eq_u32 s{S_WAVE}, 1\ns_cbranch_scc1 L2_e1\ns_cmp_eq_u32 s{S_WAVE}, 2\ns_cbranch_scc1 L2_e2\ns_cmp_eq_u32 s{S_WAVE}, 3\ns_cbranch_scc1 L2_e3")
    pre, _, _ = finalize_straight(E.ins, out, [], [], tag="opepre")
    out += pre
    def ldsaddr(pt, src, u):
        off = (pt * 3 + src) * 2048 + u * 1024
        return f"v{A0 + off // 65536}", off % 65536
    cj = lambda pt: (pt // 4, pt % 4) if pt < 24 else (6, pt - 24)
    for w in range(4):
        E = Prog(); e = E.e
        e(f"L2_e{w}:")
        order = [pt for pt in range(26) if owner(pt) != w] + [pt for pt in range(26) if owner(pt) == w]
        pend = []; nm = 0
        for pt in order:
            o = owner(pt); c, jl = cj(pt)
            for u in range(2):
                d = vr(acc(c, jl, u))
                for i in (30, 31):
                    e(mf(d, ar(Af(i, jl, u)), ar(Bf(i, c)), d)); nm += 1
                    if pend and pend[0][0] <= nm: e(pend.pop(0)[1])
                if o != w:
                    a, off = ldsaddr(pt, (w - o - 1) % 4, u)
                    pend.append((nm + 6, f"ds_write_b128 {a}, {vr(acc(c,jl,u))} offset:{off}"))
        for _, x in pend: e(x)
        e("s_waitcnt lgkmcnt(0)\ns_barrier")
        E.extend(stamp(23, opt))
        mine = [pt for pt in range(26) if owner(pt) == w]
        free = []
        for pt in range(26):
            if owner(pt) != w:
                c, jl = cj(pt); free += [acc(c, jl, 0), acc(c, jl, 1)]
        free += [208, 212, 216, 220]
        tmp = {}; fi = 0
        for pt in mine:
            for src in range(3):
                for u in range(2):
                    a, off = ldsaddr(pt, src, u)
                    tmp[(pt, src, u)] = free[fi]; fi += 1
                    e(f"ds_read_b128 {vr(tmp[(pt,src,u)])}, {a} offset:{off}")
        for pt in mine:
            c, jl = cj(pt)
            for u in range(2):
                r = acc(c, jl, u)
                t0, t1, t2 = (tmp[(pt, s, u)] for s in range(3))
                for h in (0, 2):
                    e(f"v_pk_add_f32 v[{r+h}:{r+h+1}], v[{r+h}:{r+h+1}], v[{t0+h}:{t0+h+1}]")
                    e(f"v_pk_add_f32 v[{t1+h}:{t1+h+1}], v[{t1+h}:{t1+h+1}], v[{t2+h}:{t2+h+1}]")
                for h in (0, 2):
                    e(f"v_pk_add_f32 v[{r+h}:{r+h+1}], v[{r+h}:{r+h+1}], v[{t1+h}:{t1+h+1}]")
            r = acc(c, jl, 0)
            e(f"v_cvt_pk_bf16_f32 v{r}, v{r}, v{r+1}\nv_cvt_pk_bf16_f32 v{r+1}, v{r+2}, v{r+3}")
            e(f"v_cvt_pk_bf16_f32 v{r+2}, v{r+4}, v{r+5}\nv_cvt_pk_bf16_f32 v{r+3}, v{r+6}, v{r+7}")
            js = "s68" if jl < 2 else "s69"
            if c < 6: e(f"s_add_u32 s71, s70, {c*32768}\ns_add_u32 s71, s71, {js}")
            else: e(f"s_add_u32 s71, {js}, {12*32768}")
            e(f"buffer_store_dwordx4 {vr(r)}, v{A0+3}, {srd(SOUT)}, s71 offen offset:{(jl&1)*64} {opt.get('outf','')}")
        E.extend(stamp(24, opt))
        if opt.get("prof"): e("s_waitcnt vmcnt(0)")
        E.extend(stamp(25, opt))
        E.extend(stamp_store(6, opt, 4, 0x8000000, S_WAVE))
        e("s_endpgm")
        s2, _, _ = finalize_straight(E.ins, [], [], [], tag=f"ope{w}")
        out += s2
    Q = Prog(); Q.ins = out
    return Q.text()
```

```python
from asmgen import *
from gen_k2 import mf, vr, ar, WS_O_BYTES_PER_B
import struct, math
import gen_op

SLOT = 32768
NSLOT = 5
QSCALE = math.log2(math.e) / math.sqrt(128.0)
def f32bits(x): return struct.unpack("<I", struct.pack("<f", x))[0]

def O_(c, dt): return vr(c * 32 + dt * 4) if c < 6 else ar(208 + dt * 4)
def NEGM(c): return 192 + 4 * c
def S_(buf, kt): return 220 + buf * 8 + kt * 4
def P_(buf): return 236 + buf * 4
V_KA, V_VA0, V_VA1, V_LANE = 244, 245, 246, 247
V_KV = 248
V_PF = 250
V_T = 252
V_QW, V_QX = 208, 212
V_QRW, V_QRX, V_QRX2, V_BW, V_BX = 216, 217, 218, 219, 220
V_RW = 221
def Q_(c, ds): return c * 16 + ds * 4
def K_(kt, ds): return 112 + kt * 16 + ds * 4
def V_(dt): return 144 + dt * 4
def L_(c): return 176 + 4 * c
ONES = 204
def QA(buf, j2, u): return 112 + buf * 60 + (j2 * 2 + u) * 4
def QB(buf, c): return 112 + buf * 60 + 32 + c * 4
def QACC(c, j2, u, p):
    if c < 6: return (c * 8 + j2 * 2 + u) * 4
    return (48 + (j2 - 2 * p) * 2 + u) * 4
def RREG(t, i):
    k = t * 8 + i
    return 4 * k if k < 28 else 232 + 4 * (k - 28)
S_WAVE, S_HH, S_B, S_HP, S_CNT, S_DST = 24, 25, 26, 27, 28, 29
S_XO, S_WO, S_KO, S_KO2, S_DELTA = 30, 31, 32, 33, 34
S_M0W, S_M0X, S_M0KV, S_RD = 35, 36, 37, 39
S_T = 40
S_FLAG, S_XO2, S_M0X2, S_PREV, S_PFO = 48, 49, 50, 51, 55
S_KA, S_KX = 64, 65
XREG = 16640

def stamp(k, opt):
    if not opt.get("prof"): return []
    return ["s_waitcnt lgkmcnt(0)", "s_memrealtime s[98:99]", "s_memtime s[100:101]", "s_waitcnt lgkmcnt(0)",
            f"v_writelane_b32 v251, s98, {2*k}", f"v_writelane_b32 v251, s100, {2*k+1}"]
def stamp_store(n, opt, wsreg, base, wave):
    if not opt.get("prof"): return []
    return [f"s_add_u32 s60, s{wsreg}, {base}", f"s_addc_u32 s61, s{wsreg+1}, 0", "s_mov_b32 s62, 0x100000", "s_mov_b32 s63, 0x20000",
         f"s_lshl_b32 s55, s2, 2", f"s_add_u32 s55, s55, s{wave}", "s_lshl_b32 s55, s55, 8",
         "v_mbcnt_lo_u32_b32 v250, -1, 0", "v_mbcnt_hi_u32_b32 v250, -1, v250", "v_lshlrev_b32 v250, 2, v250",
         "buffer_store_dword v251, v250, s[60:63], s55 offen"]

def code_pf(lo, hi, idx_sgpr, va, lane128, tmp=S_T+6, fwd=False):
    return [f"s_getpc_b64 s[{tmp}:{tmp+1}]\ns_add_u32 s{tmp}, s{tmp}, {lo}-.\ns_addc_u32 s{tmp+1}, s{tmp+1}, 0" if fwd else
            f"s_getpc_b64 s[{tmp}:{tmp+1}]\ns_sub_u32 s{tmp}, s{tmp}, .-{lo}\ns_subb_u32 s{tmp+1}, s{tmp+1}, 0",
            f"v_lshl_add_u32 v{va}, s{idx_sgpr}, 13, v{lane128}",
            f"v_min_u32 v{va}, {hi}-{lo}-4, v{va}",
            f"v_mov_b32 v{va+1}, s{tmp+1}",
            f"v_add_co_u32 v{va}, vcc, s{tmp}, v{va}\ns_nop 1\nv_addc_co_u32 v{va+1}, vcc, 0, v{va+1}, vcc",
            f"global_load_dword v255, v[{va}:{va+1}], off"]
def cost(x): return 1 + x.count("\n")
def isvm(x): return x.startswith("buffer") or x.startswith("global")

class Place:
    def __init__(self): self.m = []; self.g = []; self.cap = []
    def add(self, m, cap=2, fixed=()):
        self.m.append(m); self.g.append(list(fixed)); self.cap.append(cap)
    def at(self, g, items):
        for it in items:
            self.g[g].append(it); self.cap[g] -= cost(it)
    def put(self, pos, items, hi=None, step=0):
        hi = len(self.m) - 1 if hi is None else hi
        for it in items:
            while pos < hi and self.cap[pos] < min(cost(it), 2): pos += 1
            self.at(pos, [it])
            last = pos
            pos = min(pos + step, hi)
        return last
    def spread(self, lo, hi, items, vmcap=2, group=1):
        nb = sum(1 for x in items if isvm(x))
        cand = [k for k in range(lo + 1, hi) if self.cap[k] >= vmcap]
        assert len(cand) >= nb, (len(cand), nb)
        ng = -(-nb // group)
        pick = []
        for gi in range(ng):
            st = (gi * len(cand)) // ng
            for q in range(min(group, nb - gi * group)): pick.append(cand[st + q])
        assert pick == sorted(set(pick)), pick
        bi = 0; prev = lo
        for idx, x in enumerate(items):
            if isvm(x):
                g = pick[bi]; bi += 1
                self.g[g].append(x); self.cap[g] -= vmcap; prev = g
            else:
                lim = pick[bi] if bi < nb else hi
                q = prev
                while q < lim - 1 and (self.cap[q] < cost(x) or q in pick[bi:]): q += 1
                if self.cap[q] < cost(x): q = prev if bi > 0 or True else q
                self.at(q, [x]); prev = q
        return prev
    def ins(self, lo=0, hi=None):
        out = []
        for k in range(lo, len(self.m) if hi is None else hi):
            if self.m[k]: out.append(Ins(self.m[k]))
            for x in self.g[k]:
                for line in x.split("\n"): out.append(Ins(line))
        return out

def ring_next(reg):
    return [f"s_add_u32 s{reg}, s{reg}, {SLOT}", f"s_cmp_eq_u32 s{reg}, {SLOT*NSLOT}\ns_cselect_b32 s{reg}, 0, s{reg}"]
def I(lst): return [Ins(l) for x in lst for l in x.split("\n")]

DESC = """.amdhsa_kernel {name}
  .amdhsa_next_free_vgpr 512
  .amdhsa_next_free_sgpr 102
  .amdhsa_accum_offset 256
  .amdhsa_group_segment_fixed_size 0
  .amdhsa_kernarg_size 64
  .amdhsa_user_sgpr_count 2
  .amdhsa_user_sgpr_kernarg_segment_ptr 1
  .amdhsa_system_sgpr_workgroup_id_x 1
.end_amdhsa_kernel
"""

def gen_k1(name="attn_kernel", opt=None):
    opt = opt or {}
    P = Prog(); e = P.e
    e(f".p2align 8\n.type {name},@function\n{name}:")
    e("s_cmp_ge_u32 s2, 256\ns_cbranch_scc1 L1_end")
    P.extend(stamp(0, opt))
    e("s_load_dwordx4 s[40:43], s[0:1], 0")
    e("s_load_dwordx4 s[44:47], s[0:1], 16")
    e("s_load_dwordx2 s[4:5], s[0:1], 56")
    e("s_load_dwordx2 s[6:7], s[0:1], 32")
    e("s_load_dwordx2 s[76:77], s[0:1], 48")
    e(f"s_load_dwordx2 s[{gen_op.SOUT}:{gen_op.SOUT+1}], s[0:1], 40")
    L = V_LANE
    t0, t1, t2, t3 = V_T, V_T + 1, V_T + 2, V_T + 3
    e(f"v_lshrrev_b32 v{t0}, 6, v0")
    e(f"v_and_b32 v{L}, 63, v0")
    e(f"v_readfirstlane_b32 s{S_WAVE}, v{t0}")
    e("s_and_b32 s90, s2, 7\ns_lshr_b32 s91, s2, 3")
    if opt.get("map", 0) == 0:
        e(f"s_lshr_b32 s{S_B}, s90, 1\ns_lshl_b32 s{S_B}, s{S_B}, 2\ns_lshr_b32 s52, s91, 3\ns_add_u32 s{S_B}, s{S_B}, s52")
        e(f"s_and_b32 s{S_HP}, s90, 1\ns_lshl_b32 s{S_HP}, s{S_HP}, 3\ns_and_b32 s52, s91, 7\ns_add_u32 s{S_HP}, s{S_HP}, s52")
    elif opt["map"] == 1:
        e(f"s_lshl_b32 s{S_B}, s90, 1\ns_lshr_b32 s52, s91, 4\ns_add_u32 s{S_B}, s{S_B}, s52\ns_and_b32 s{S_HP}, s91, 15")
    elif opt["map"] == 2:
        e(f"s_lshr_b32 s{S_B}, s90, 2\ns_lshl_b32 s{S_B}, s{S_B}, 3\ns_lshr_b32 s52, s91, 2\ns_add_u32 s{S_B}, s{S_B}, s52")
        e(f"s_and_b32 s{S_HP}, s90, 3\ns_lshl_b32 s{S_HP}, s{S_HP}, 2\ns_and_b32 s52, s91, 3\ns_add_u32 s{S_HP}, s{S_HP}, s52")
    else:
        e(f"s_lshr_b32 s{S_B}, s91, 1\ns_lshl_b32 s{S_HP}, s90, 1\ns_and_b32 s52, s91, 1\ns_add_u32 s{S_HP}, s{S_HP}, s52")
    if opt.get("hpx"): e(f"s_xor_b32 s{S_HP}, s{S_HP}, {opt['hpx']}")
    e(f"s_lshr_b32 s{S_HH}, s{S_WAVE}, 1\ns_and_b32 s53, s{S_WAVE}, 1")
    e(f"v_lshrrev_b32 v{t0}, 2, v{L}\nv_and_b32 v{t0}, 3, v{t0}")
    e(f"v_lshrrev_b32 v{t1}, 4, v{L}")
    e(f"v_and_b32 v{t2}, 3, v{L}")
    e(f"v_lshlrev_b32 v{V_QW}, 13, v{t0}\nv_lshl_add_u32 v{V_QW}, v{t1}, 6, v{V_QW}\nv_lshl_add_u32 v{V_QW}, v{t2}, 4, v{V_QW}")
    e(f"s_lshl_b32 s52, s{S_WAVE}, 16\ns_add_u32 s52, s52, 4096\nv_add_u32 v{V_QW}, s52, v{V_QW}")
    for i in range(1, 4):
        d = (i & 1) * 4 * 8192 + (i >> 1) * 256 - i * 1024
        e(f"v_add_u32 v{V_QW+i}, {d}, v{V_QW}" if d >= 0 else f"v_subrev_u32 v{V_QW+i}, {-d}, v{V_QW}")
    e(f"v_lshrrev_b32 v{V_QX}, 2, v{L}\nv_and_b32 v{V_QX}, 7, v{V_QX}")
    e(f"v_lshrrev_b32 v{t3}, 2, v{V_QX}\nv_lshlrev_b32 v{t3}, 1, v{t3}\nv_xor_b32 v{t3}, v{t3}, v{t2}")
    e(f"v_lshlrev_b32 v{V_QX}, 11, v{V_QX}\nv_lshl_add_u32 v{V_QX}, v{t3}, 4, v{V_QX}")
    e(f"v_lshrrev_b32 v{t3}, 5, v{L}\nv_lshl_add_u32 v{V_QX}, v{t3}, 6, v{V_QX}")
    for i in range(1, 4): e(f"v_add_u32 v{V_QX+i}, {i*(16384-1024)}, v{V_QX}")
    e(f"s_lshl_b32 s52, s{S_WAVE}, 2\ns_lshr_b32 s52, 0xb480, s52\ns_and_b32 s52, s52, 15")
    e(f"s_lshl_b32 s{S_XO}, s52, 14\ns_lshl_b32 s{S_M0X}, s52, 10\ns_add_u32 s{S_M0X}, s{S_M0X}, {XREG}")
    e(f"s_mul_i32 s52, s{S_WAVE}, 3")
    e(f"s_lshl_b32 s{S_XO2}, s52, 14\ns_add_u32 s{S_XO2}, s{S_XO2}, {14*16384}")
    e(f"s_lshl_b32 s{S_M0X2}, s52, 10\ns_add_u32 s{S_M0X2}, s{S_M0X2}, {XREG}")
    e(f"s_mul_i32 s{S_M0W}, s53, 8200\ns_lshl_b32 s54, s{S_HH}, 12\ns_add_u32 s{S_M0W}, s{S_M0W}, s54")
    e(f"s_mov_b32 s{S_WO}, 0")
    if opt.get("qrole"):
        e(f"s_mul_i32 s52, s{S_HH}, 7\ns_lshl_b32 s{S_XO}, s52, 14\ns_lshl_b32 s{S_M0X}, s52, 10\ns_add_u32 s{S_M0X}, s{S_M0X}, {XREG}")
        e(f"s_mul_i32 s52, s{S_HH}, 6\ns_lshl_b32 s{S_XO2}, s52, 14\ns_add_u32 s{S_XO2}, s{S_XO2}, {14*16384}")
        e(f"s_lshl_b32 s{S_M0X2}, s52, 10\ns_add_u32 s{S_M0X2}, s{S_M0X2}, {XREG}")
    e(f"s_mul_i32 s52, s{S_B}, 425984\ns_lshl_b32 s54, s{S_HP}, 9")
    e("s_mov_b32 s10, 425984\ns_mov_b32 s11, 0x20000\ns_mov_b32 s15, 0x20000")
    e(f"s_sub_u32 s14, {8388608+4096}, s54")
    e("s_waitcnt lgkmcnt(0)")
    e("s_add_u32 s8, s40, s52\ns_addc_u32 s9, s41, 0")
    e("s_add_u32 s12, s46, s54\ns_addc_u32 s13, s47, 0\ns_sub_u32 s12, s12, 4096\ns_subb_u32 s13, s13, 0")
    e("s_cmp_eq_u32 s53, 1\ns_cbranch_scc1 L1_p1")
    head, _, _ = finalize_straight(P.ins, tag="k1head")
    out = list(head)
    for p in range(2):
        out += gen_path(p, head, opt)
    out.append(Ins("L1_end:")); out.append(Ins("s_endpgm"))
    Q = Prog(); Q.ins = out
    return Q.text(), DESC.format(name=name)

def setup2(p, opt):
    P = Prog(); e = P.e
    L = V_LANE
    t0, t1, t2, t3 = V_T, V_T + 1, V_T + 2, V_T + 3
    kv = (42, 43) if p == 0 else (44, 45)
    e(f"s_lshl_b32 s52, s{S_B}, 5\ns_lshl_b32 s54, s{S_HP}, 1\ns_add_u32 s52, s52, s54\ns_add_u32 s52, s52, s{S_HH}")
    if opt.get("kvrot", 1) == 1: e(f"s_lshr_b32 s54, s52, 5\ns_mul_i32 s54, s54, 11\ns_add_u32 s54, s54, s52\ns_and_b32 s54, s54, 31\ns_lshl_b32 s{S_KX}, s54, 13")
    else: e(f"s_mov_b32 s{S_KX}, 0")
    if opt.get("kvsame"): e(f"s_mov_b32 s52, s{S_HH}")
    e("s_lshl_b32 s54, s52, 18")
    e(f"s_add_u32 s16, s{kv[0]}, s54\ns_addc_u32 s17, s{kv[1]}, 0\ns_mov_b32 s18, 262144\ns_mov_b32 s19, 0x20000")
    e(f"s_mul_i32 s52, s{S_B}, {WS_O_BYTES_PER_B}")
    e(f"s_add_u32 s20, s4, s52\ns_addc_u32 s21, s5, 0\ns_mov_b32 s22, {WS_O_BYTES_PER_B}\ns_mov_b32 s23, 0x20000")
    e("s_mov_b32 s56, s6\ns_mov_b32 s57, s7\ns_mov_b32 s58, 8388608\ns_mov_b32 s59, 0x20000")
    e(f"s_lshl_b32 s{S_M0KV}, s{S_WAVE}, 13")
    e(f"s_mov_b32 s78, 256\ns_mov_b32 s79, 0x20000\ns_lshl_b32 s80, s{S_B}, 4")
    e(f"v_and_b32 v{V_QRW}, 1, v{t1}\nv_mul_u32_u24 v{V_QRW}, 8200, v{V_QRW}")
    e(f"v_lshrrev_b32 v{V_QRX}, 1, v{t1}\nv_lshl_add_u32 v{V_QRW}, v{V_QRX}, 12, v{V_QRW}")
    e(f"v_and_b32 v{V_QRX}, 15, v{L}\nv_lshl_add_u32 v{V_QRW}, v{V_QRX}, 4, v{V_QRW}")
    e(f"s_lshl_b32 s54, s{S_HH}, 11\nv_add_u32 v{V_QRW}, s54, v{V_QRW}")
    e(f"v_and_b32 v{t3}, 1, v{t0}\nv_lshlrev_b32 v{t3}, 1, v{t3}\nv_xor_b32 v{t3}, v{t3}, v{t1}\nv_lshlrev_b32 v{t3}, 4, v{t3}")
    e(f"v_and_b32 v{V_QRX2}, 7, v{L}\nv_lshl_add_u32 v{V_QRX2}, v{V_QRX2}, 6, v{t3}")
    e(f"v_lshrrev_b32 v{V_QRX}, 3, v{V_QRX}\nv_lshl_add_u32 v{V_QRX}, v{V_QRX}, 10, v{V_QRX2}")
    e(f"v_add_u32 v{V_QRX}, {XREG}, v{V_QRX}\nv_add_u32 v{V_QRX2}, {SLOT}, v{V_QRX}")
    e(f"v_mov_b32 v{V_BW}, v{V_QRW}\nv_mov_b32 v{V_BX}, v{V_QRX}")
    e(f"v_lshl_add_u32 v{V_KA}, v{t0}, 10, v{t3}\nv_lshl_add_u32 v{V_KA}, v{t2}, 6, v{V_KA}")
    e(f"s_lshl_b32 s54, s{S_HH}, 14\ns_add_u32 s54, s54, {2*SLOT}\nv_add_u32 v{V_KA}, s54, v{V_KA}")
    e(f"v_lshlrev_b32 v{V_VA0}, 10, v{t1}\nv_lshl_add_u32 v{V_VA0}, v{t0}, 6, v{V_VA0}\nv_lshl_add_u32 v{V_VA0}, v{t2}, 3, v{V_VA0}")
    e(f"s_add_u32 s54, s54, 8192\nv_add_u32 v{V_VA0}, s54, v{V_VA0}")
    e(f"v_and_b32 v{t3}, 1, v{t1}\nv_lshl_add_u32 v{V_VA0}, v{t3}, 5, v{V_VA0}\nv_xor_b32 v{V_VA1}, 32, v{V_VA0}")
    e(f"v_lshlrev_b32 v{V_KV}, 8, v{t0}\nv_lshl_add_u32 v{V_KV}, v{t1}, 6, v{V_KV}\nv_lshl_add_u32 v{V_KV}, v{t2}, 4, v{V_KV}")
    e(f"v_xor_b32 v{V_KV+1}, 32, v{V_KV}\nv_lshlrev_b32 v{V_PF}, 7, v{L}")
    e(f"v_lshlrev_b32 v{t3}, 4, v{L}\nv_add_u32 v{t3}, s{S_M0KV}, v{t3}")
    for t in range(4): e(f"v_add_u32 v{V_RW+t}, {((2+t)%5)*SLOT}, v{t3}")
    e(f"s_mov_b32 s{S_DST}, 0\ns_mov_b32 s{S_RD}, 0\ns_mov_b32 s{S_KA}, 0\ns_mov_b32 s{S_KO}, s{S_KX}\ns_or_b32 s{S_KO2}, s{S_KX}, 4096\ns_mov_b32 s{S_FLAG}, 0\ns_mov_b32 s{S_PREV}, {4*SLOT}")
    P.extend(gen_op.op_scalar_setup(opt, S_WAVE))
    return [i.text for i in P.ins]

def gen_path(p, head, opt):
    verbose = opt.get("verbose", False)
    KVF = opt.get("kvflags", "nt")
    NR = opt.get("nr", 4)
    nxa = 4 if p == 0 else 3
    tag = f"p{p}"
    out = []
    vmq = []
    def vm_wait(tags):
        last = max((k for k, t in enumerate(vmq) if t in tags), default=None)
        if last is None: return 63
        return min(63, len(vmq) - 1 - last)
    role = opt.get("qrole")
    def dmaW(s, slot):
        if role and p == 1: return []
        L = [f"s_add_u32 m0, s{S_M0W}, {slot}"]
        for i in range(4): L.append(f"buffer_load_dwordx4 v{V_QW+i}, s[12:15], s{S_WO} offen offset:{i*1024} {opt.get('wqf','')} lds")
        vmq.extend([("W", s)] * 4)
        if role:
            L += [f"s_add_u32 m0, m0, 8200", f"s_add_u32 s70, s{S_WO}, 65536"]
            for i in range(4): L.append(f"buffer_load_dwordx4 v{V_QW+i}, s[12:15], s70 offen offset:{i*1024} {opt.get('wqf','')} lds")
            vmq.extend([("W", s)] * 4)
        L.append(f"s_add_u32 s{S_WO}, s{S_WO}, 262144")
        return L
    def dmaX(which, sig, slot):
        if role == 1 and p == 1: return []
        if role == 2 and p == 0: return []
        n = nxa if which == "A" else 3
        if role: n = 7 if which == "A" else 6
        m0r, so = (S_M0X, S_XO) if which == "A" else (S_M0X2, S_XO2)
        L = [f"s_add_u32 m0, s{m0r}, {slot}"]
        for i in range(min(n, 4)): L.append(f"buffer_load_dwordx4 v{V_QX+i}, s[8:11], s{so} offen offset:{i*1024} {opt.get('xf','')} lds")
        if n > 4:
            L += [f"s_add_u32 m0, m0, 4096", f"s_add_u32 s70, s{so}, 65536"]
            for i in range(n - 4): L.append(f"buffer_load_dwordx4 v{V_QX+i}, s[8:11], s70 offen offset:{i*1024} {opt.get('xf','')} lds")
        L.append(f"s_add_u32 s{so}, s{so}, 128")
        vmq.extend([("X" + which, sig)] * n)
        return L
    KVADV = [f"s_add_u32 s{S_KA}, s{S_KA}, 8192", f"s_xor_b32 s{S_KO}, s{S_KA}, s{S_KX}", f"s_or_b32 s{S_KO2}, s{S_KO}, 4096"]
    KVRST = f"s_mov_b32 s{S_KA}, 0\ns_mov_b32 s{S_KO}, s{S_KX}\ns_or_b32 s{S_KO2}, s{S_KX}, 4096"
    def dmaKV(base, t, track=True):
        L = [f"s_add_u32 m0, s{S_M0KV}, {base}"]
        for i in range(4): L.append(f"buffer_load_dwordx4 v{V_KV+(i&1)}, s[16:19], s{S_KO} offen offset:{i*1024} {KVF} lds")
        L.append("s_add_u32 m0, m0, 4096")
        for i in range(4): L.append(f"buffer_load_dwordx4 v{V_KV+(i&1)}, s[16:19], s{S_KO2} offen offset:{i*1024} {KVF} lds")
        L += KVADV
        if track: vmq.extend([("KV", t)] * 8)
        return L
    def regKV(k):
        t, i = divmod(k, 8)
        L = [f"buffer_load_dwordx4 {ar(RREG(t,i))}, v{V_KV+(i&1)}, s[16:19], s{S_KO if i < 4 else S_KO2} offen offset:{(i&3)*1024} {KVF}"]
        if i == 7: L += KVADV
        vmq.append(("R", t))
        return L
    def wrKV(t): return [f"ds_write_b128 v{V_RW+t}, {ar(RREG(t,i))} offset:{i*1024}" for i in range(8)]
    def mt_of(c): return 6 * p + c if c < 6 else 12
    def readQ(s):
        buf = s % 2; kh = s % 2
        order = [f"ds_read_b64_tr_b16 {ar(QA(buf,j2,u)+2*uk,2)}, v{V_QRW} offset:{uk*1024+j2*256+u*8}"
                 for j2 in range(4) for u in range(2) for uk in range(2)]
        xs = []
        for c in range(7):
            mt = mt_of(c)
            if mt < 7: xs.append(f"ds_read_b128 {ar(QB(buf,c))}, v{V_QRX} offset:{mt*2048+kh*512}")
            else: xs.append(f"ds_read_b128 {ar(QB(buf,c))}, v{V_QRX2} offset:{(mt-7)*2048+kh*512}")
        return order[:2] + xs + order[2:]
    def adv_rd(s):
        L = ring_next(S_RD) + [f"v_add_u32 v{V_QRW}, s{S_RD}, v{V_BW}"]
        if (s + 1) % 2 == 0:
            L += [f"v_add_u32 v{V_QRX}, s{S_RD}, v{V_BX}", f"s_add_u32 s{S_T}, s{S_RD}, {SLOT}",
                  f"s_cmp_eq_u32 s{S_T}, {SLOT*NSLOT}\ns_cselect_b32 s{S_T}, 0, s{S_T}", f"v_add_u32 v{V_QRX2}, s{S_T}, v{V_BX}"]
        return L
    def need(s): return {("W", s), ("XA", s // 2), ("XB", s // 2)}
    P = Prog(); e = P.e
    e(f"L1_p{p}:")
    P.extend(dmaW(0, 0)); P.extend(dmaX("A", 0, 0)); P.extend(dmaX("B", 0, SLOT)); P.extend(dmaW(1, SLOT))
    P.extend(setup2(p, opt))
    if opt.get("qpf"):
        e(f"s_mov_b32 s69, {opt.get('qpf0',5)*8192}\ns_xor_b32 s68, s69, s{S_KX}\nv_lshlrev_b32 v228, 6, v{V_LANE}")
    if opt.get("early", 1) >= 1:
        P.extend(dmaW(2, 2 * SLOT)); P.extend(dmaX("A", 1, 2 * SLOT)); P.extend(dmaX("B", 1, 3 * SLOT))
    w0 = vm_wait(need(0))
    if opt.get("cpf", True):
        e(f"s_lshr_b32 s{S_PFO}, s2, 3\ns_lshl_b32 s{S_PFO}, s{S_PFO}, 2\ns_add_u32 s{S_PFO}, s{S_PFO}, s{S_WAVE}")
        if opt.get("thin", True):
            pf = code_pf(opt.get("kname", "attn_kernel"), "L_code_end", S_PFO, 226, V_KV)
            pf[1] = f"v_lshl_add_u32 v226, s{S_PFO}, 10, v{V_KV}"
            P.extend(pf)
        else:
            e(f"s_and_b32 s{S_PFO}, s{S_PFO}, 15")
            P.extend(code_pf(opt.get("kname", "attn_kernel"), "L_code_end", S_PFO, 226, V_PF))
        vmq.append(("T", "code")); w0 = min(63, w0 + 1)
    e(f"s_waitcnt vmcnt({w0})\ns_barrier")
    P.extend(stamp(1, opt))
    P.extend(readQ(0)); P.extend(adv_rd(0))
    if opt.get("early", 1) < 1:
        P.extend(dmaW(2, 2 * SLOT)); P.extend(dmaX("A", 1, 2 * SLOT)); P.extend(dmaX("B", 1, 3 * SLOT))
    seq, lg, vm = finalize_straight(P.ins, head, tag=tag + "pro", verbose=verbose)
    out += seq
    rs0, rs1 = opt.get("rstages", (10, 26))
    rsched = {}
    for k in range(NR * 8): rsched.setdefault(rs0 + (k * (rs1 - rs0)) // (NR * 8), []).append(k)
    LD = opt.get("lead", 4)
    kv_at = {0: (27, "cur"), 1: (29, "prev"), 2: (29, "cur"), 3: (31, "prev")}
    kv_at = {t: v for t, v in kv_at.items() if t <= LD}
    if opt.get("kvlate") == 1 and LD == 2: kv_at = {0: (27, "cur"), 1: (29, "prev"), 2: (30, "prev")}
    if opt.get("kvst"):
        kv_at = {t: (st, ((2 + t) % 5) * SLOT) for t, st in enumerate(opt["kvst"]) if st < 32}
        for t, (st, _) in kv_at.items(): assert st >= (27, 29, 29, 31)[t]
    def qstage(s):
        buf = s % 2
        pl = Place()
        wtags = need(s + 1) if s < 31 else set()
        wr = []
        for t, (st, which) in kv_at.items():
            if st == s and t < NR: wtags = wtags | {("R", t)}; wr += wrKV(t)
        pl.add(None, 0, [f"s_waitcnt vmcnt({vm_wait(wtags)}) lgkmcnt(0)", "s_barrier"])
        for j2 in range(4):
            for u in range(2):
                for c in range(7):
                    if c == 6 and (j2 >> 1) != p: continue
                    d = vr(QACC(c, j2, u, p))
                    pl.add(mf(d, ar(QA(buf, j2, u)), ar(QB(buf, c)), "0" if s == 0 else d), cap=2)
        dm = []
        cur, prev = f"s{S_DST}", f"s{S_PREV}"
        if s == 0: dm += dmaW(3, 3 * SLOT) + dmaW(4, 4 * SLOT)
        sig = (s + 4) // 2
        if sig <= 15: dm += dmaX("A" if s % 2 == 0 else "B", sig, prev)
        if s + 5 <= 31: dm += dmaW(s + 5, cur)
        for k in rsched.get(s, []): dm += regKV(k)
        for t, (st, which) in kv_at.items():
            if st == s and t >= NR: dm += dmaKV(cur if which == "cur" else prev if which == "prev" else which, t)
        q0, q1 = opt.get("qpfr", (2, 24))
        if opt.get("qpf") and role and p == 1 and q0 <= s < q1:
            n = opt["qpf"]
            for q in range(n):
                isv = (s % 2) if n == 1 else (q % 2)
                srd = "s[16:19]" if isv else "s[72:75]"
                dm += [f"buffer_load_dword v255, v228, {srd}, s68 offen {opt.get('qpff','')}"]; vmq.append(("T", "kv"))
                if isv: dm += [f"s_add_u32 s69, s69, 4096", f"s_xor_b32 s68, s69, s{S_KX}"]
        if opt.get("opre") and (p == 1 or role != 1) and 2 <= s < 26:
            n = opt["opre"]; share = 52 if role == 1 else 26
            if s == 2:
                dm += [f"s_lshl_b32 s74, s{S_HP}, 1\ns_add_u32 s74, s74, s{S_HH}", f"s_mul_i32 s74, s74, {52*1024}"]
                if role != 1 and p == 1: dm += [f"s_add_u32 s74, s74, {26*1024}"]
                dm += [f"s_add_u32 s75, s74, {(share-n)*1024}", f"v_lshlrev_b32 v229, 4, v{V_LANE}"]
            for q in range(n):
                dm += [f"buffer_store_dwordx4 v[244:247], v229, s[20:23], s74 offen offset:{q*1024} {opt.get('osf','')}"]; vmq.append(("T", "o"))
            dm += [f"s_add_u32 s74, s74, {n*1024}", "s_min_u32 s74, s74, s75"]
        if opt.get("wothin") and 2 <= s < 26 and s % 2 == opt["wothin"] - 1:
            if s < 4: dm += [f"s_lshl_b32 s38, s2, 2\ns_add_u32 s38, s38, s{S_WAVE}", "s_lshl_b32 s38, s38, 13", "s_add_u32 s71, s38, 7168"]
            dm += [f"buffer_load_dword v255, v{V_KV}, s[56:59], s38 offen", "s_add_u32 s38, s38, 1024", "s_min_u32 s38, s38, s71"]; vmq.append(("T", "wo"))
        if s == opt.get("wost"):
            dm += [f"s_lshl_b32 s38, s2, 2\ns_add_u32 s38, s38, s{S_WAVE}", "s_lshl_b32 s38, s38, 13", f"buffer_load_dword v255, v{V_PF}, s[56:59], s38 offen"]; vmq.append(("T", "wo"))
        if s in opt.get("cpf2", []):
            dm += ["global_load_dword v255, v[226:227], off"]; vmq.append(("T", "code"))
        dm += [f"s_mov_b32 s{S_PREV}, s{S_DST}"] + ring_next(S_DST)
        if any(isvm(x) for x in dm): pl.spread(1, 50, dm, vmcap=1)
        else: pl.put(40, dm)
        pos = 1
        if s < 31:
            pos = pl.put(1, readQ(s + 1), step=1)
            pos = pl.put(pos + 1, adv_rd(s + 1))
        if wr: pl.put(pos + 1, wr, step=1)
        res = pl.ins()
        abl = opt.get("abl", "")
        if 4 <= s < 26:
            if "nodma" in abl: res = [x for x in res if x.kind != "dma"]
            if "noread" in abl: res = [x for x in res if x.kind != "dsr"]
            if "nobar" in abl: res = [x for x in res if x.op != "s_barrier"]
            if "chain" in abl:
                k = 0; r2 = []
                ch = int(abl.split("chain")[1][0])
                for x in res:
                    if x.kind == "mfma":
                        ops = x.text.split(None, 1)[1].split(", ")
                        if k % ch == 0: dkeep = ops[0]
                        x = Ins(mf(dkeep, ops[1], ops[2], dkeep)); k += 1
                    r2.append(x)
                res = r2
        return res
    stages = [qstage(s) for s in range(32)]
    txt = lambda L: [i.text for i in L]
    LO = opt.get('lo', 4); HI = LO
    while HI + 2 <= 32 and txt(stages[HI]) == txt(stages[LO]) and txt(stages[HI + 1]) == txt(stages[LO + 1]): HI += 2
    if opt.get("qunroll"): HI = LO + 2
    if p == 0: print("qproj loop stages", LO, HI)
    seq = []
    for s in range(LO): seq += stages[s]
    seq += I(stamp(2, opt)) + [Ins(f"s_mov_b32 s{S_CNT}, {(HI-LO)//2}")]
    stag = opt.get("stag", 0)
    if stag:
        if opt.get("emu"):
            seq += I([f"s_bitcmp1_b32 s2, 3", f"s_cselect_b32 s{S_CNT}, {(HI-LO)//2+opt['emu'][1]}, {(HI-LO)//2+opt['emu'][0]}",
                      "s_cselect_b32 s81, 4, 0", "s_add_u32 s82, s80, 4", "s_add_u32 s80, s80, s81"])
        elif opt.get("stagall"):
            seq += I([f"s_mov_b32 s{S_CNT}, {(HI-LO)//2+stag}"])
        elif opt.get("stagl", 1) == 1:
            seq += I([f"s_bitcmp1_b32 s2, {opt.get('stagbit',3)}", f"s_cselect_b32 s{S_CNT}, {(HI-LO)//2+stag}, s{S_CNT}"])
        else:
            seq += I([f"s_lshr_b32 s66, s2, 3", f"s_and_b32 s66, s66, {opt['stagl']}", f"s_mul_i32 s66, s66, {stag}", f"s_add_u32 s{S_CNT}, s{S_CNT}, s66"])
        stages[LO + 1] = stages[LO + 1] + I([f"s_and_b32 s{S_WO}, s{S_WO}, 0x3fffff", f"s_and_b32 s{S_XO}, s{S_XO}, 0xfffffbff", f"s_and_b32 s{S_XO2}, s{S_XO2}, 0xfffffbff"])
    seq, lg, vm = finalize_straight(seq, out, lg, vm, tag=tag + "q01", verbose=verbose)
    out += seq
    body = [Ins(".p2align 6"), Ins(f"L1_q{p}:")] + stages[LO] + stages[LO + 1] + \
           I([f"s_sub_u32 s{S_CNT}, s{S_CNT}, 1", f"s_cmp_lg_u32 s{S_CNT}, 0", f"s_cbranch_scc1 L1_q{p}"])
    body, lg, vm = finalize_loop(body, out, lg, vm, tag=tag + "qloop", verbose=verbose)
    out += body
    seq = []
    for s in range(HI, 32):
        if s == 26: seq += I(stamp(3, opt))
        seq += stages[s]
    TILES = [6, 0, 1, 2, 3, 4, 5] if p == 0 else [0, 1, 2, 3, 4, 5]
    U = len(TILES)
    E = Prog(); e = E.e
    E.extend(stamp(4, opt))
    e(f"s_mov_b32 s{S_T}, {f32bits(QSCALE):#x}\ns_mov_b32 s{S_T+1}, {f32bits(QSCALE):#x}")
    if p == 0 or opt.get("dyn"):
        e(f"v_mov_b32 v230, 0\ns_mov_b64 exec, 1\nbuffer_load_dword v251 , v230, s[{gen_op.SF}:{gen_op.SF+3}], s{gen_op.S_FW} offen sc1 nt\ns_mov_b64 exec, -1".replace("v251 ", "v253"))
        vmq.append(("T", "base"))
    if p == 0: e(f"v_subrev_u32 v{V_T}, {SLOT}, v{V_RW}")
    else: e(f"v_subrev_u32 v{V_T}, {SLOT+8192}, v{V_RW}")
    def readK(kts=(0, 1)):
        return [f"ds_read_b128 {ar(K_(kt,ds))}, v{V_KA} offset:{kt*4096+ds*256}" for kt in kts for ds in range(4)]
    def readV(dt):
        return [f"ds_read_b64_tr_b16 {ar(V_(dt)+2*kt,2)}, v{V_VA0+(dt&1)} offset:{kt*4096+(dt>>1)*256}" for kt in range(2)]
    MX = lambda c: 32 * c + 8 if c < 6 else 16
    def qk0(c, kt):
        d = vr(MX(c) + kt * 4)
        return [mf(d, ar(K_(kt, ds)), ar(Q_(c, ds)), "0" if ds == 0 else d) for ds in range(4)]
    def qk_all(nk): return [m for c in sorted(TILES) for kt in range(nk) for m in qk0(c, kt)]
    def conv(c, j2, ins1=(), ins2=()):
        r = QACC(c, j2, 0, p)
        for h in range(0, 8, 2): e(f"v_pk_mul_f32 v[{r+h}:{r+h+1}], v[{r+h}:{r+h+1}], s[{S_T}:{S_T+1}]")
        E.extend(ins1)
        for h in range(4): e(f"v_cvt_pk_bf16_f32 v{r+h}, v{r+2*h}, v{r+2*h+1}")
        E.extend(ins2)
        if c == 6 and p == 1: e(f"ds_write_b128 v{V_T}, {vr(r)} offset:{(j2&1)*1024}")
        else:
            for h in range(4): e(f"v_accvgpr_write_b32 a{Q_(c,j2)+h}, v{r+h}")
    for j2 in (2 * p, 2 * p + 1): conv(6, j2)
    e(f"s_waitcnt vmcnt({vm_wait({('KV',0)})}) lgkmcnt(0)\ns_barrier")
    E.extend(stamp(5, opt))
    assert LD < 4
    side = []
    if p == 0: side += [f"ds_read_b128 {ar(Q_(6, 2+i))}, v{V_T} offset:{i*1024}" for i in range(2)]
    side += readK() + [x for dt in range(8) for x in readV(dt)]
    for t in range(LD + 1):
        if t not in kv_at: side += dmaKV(((2 + t) % 5) * SLOT, t)
    side += [f"s_lshl_b32 s{S_PFO}, s2, 2\ns_add_u32 s{S_PFO}, s{S_PFO}, s{S_WAVE}", f"s_lshl_b32 s{S_PFO}, s{S_PFO}, 13"]
    side += [f"v_and_b32 v{V_T+2}, 3, v{V_LANE}", f"v_cmp_eq_u32 vcc, 0, v{V_T+2}\nv_mov_b32 v{V_T+2}, 0x3f803f80\ns_nop 0\nv_cndmask_b32 v{V_T+2}, 0, v{V_T+2}, vcc"]
    side += [f"v_accvgpr_write_b32 a{ONES+h}, v{V_T+2}" for h in range(4)]
    mq = []
    red = lambda c: [f"v_max3_f32 v{MX(c)}, v{MX(c)}, v{MX(c)+1}, v{MX(c)+2}", f"v_max_f32 v{MX(c)}, v{MX(c)}, v{MX(c)+3}"]
    for c in range(6):
        for j2 in range(4):
            n1 = 10 if c == 0 and j2 == 0 else 3
            s1, side = side[:n1], side[n1:]
            m1, mq = mq[:1], mq[1:]
            m2 = []
            if len(mq) > 3 - j2: m2, mq = mq[:1], mq[1:]
            conv(c, j2, m1 + s1, m2)
        mq += qk0(c, 0)
        if c == 0 and p == 0: mq += qk0(6, 0)
    E.extend(side); E.extend(mq)
    for c in TILES: E.extend(red(c))
    seq += E.ins
    seq, lg, vm = finalize_straight(seq, out, lg, vm, tag=tag + "qtail", verbose=verbose)
    out += seq
    E = Prog(); e = E.e
    e(f"L1_m{p}:")
    e("s_waitcnt lgkmcnt(0)")
    for c in TILES: e(f"v_mov_b32 v{MX(c)+1}, v{MX(c)}")
    for c in TILES: e(f"v_permlane32_swap_b32 v{MX(c)}, v{MX(c)+1}")
    for c in TILES: e(f"v_max_f32 v{MX(c)}, v{MX(c)}, v{MX(c)+1}\nv_mov_b32 v{MX(c)+1}, v{MX(c)}")
    for c in TILES: e(f"v_permlane16_swap_b32 v{MX(c)}, v{MX(c)+1}")
    for c in TILES: e(f"v_max_f32 v{MX(c)}, v{MX(c)}, v{MX(c)+1}")
    for c in TILES:
        for h in range(4): e(f"v_sub_f32 v{NEGM(c)+h}, 0, v{MX(c)}")
    e(f"s_mov_b32 s{S_DST}, {((3+LD)%5)*SLOT}\ns_mov_b32 s{S_RD}, {2*SLOT}")
    E.extend(stamp(6, opt))
    pre_a = E.ins

    T0 = opt.get("t0", 30)
    groups = opt.get("groups", [[[6, 0, 1, 2, 3, 4, 5]], [[0, 1, 2, 3, 4, 5]]])[p]
    visits = [(t, TILES) for t in range(T0)] + [(t, g) for g in groups for t in range(T0, 32)]
    units = [(t, c) for t, g in visits for c in g]
    vend = []
    for t, g in visits: vend.append((vend[-1] if vend else -1) + len(g))
    N = len(units)
    pl = Place()
    slot_start = []
    for n in range(N + 2):
        slot_start.append(len(pl.m))
        qk = units[n] if n < N else None
        sm = units[n - 1] if 1 <= n <= N else None
        pv = units[n - 2] if n >= 2 else None
        def Qm(kt, ds):
            if not qk: return None
            d = vr(S_(n % 2, kt))
            return mf(d, ar(K_(kt, ds)), ar(Q_(qk[1], ds)), vr(NEGM(qk[1])) if ds == 0 else d)
        fst = pv is not None and pv[0] == 0
        def Pm(dt):
            if not pv: return None
            d = O_(pv[1], dt)
            return mf(d, ar(V_(dt)), vr(P_(n % 2)), "0" if fst else d)
        def Lm():
            if not pv: return None
            d = ar(L_(pv[1]))
            return mf(d, ar(ONES), vr(P_(n % 2)), "0" if fst else d)
        sb = (n - 1) % 2
        def Ex(i): return [f"v_exp_f32 v{S_(sb,0)+i}, v{S_(sb,0)+i}"] if sm else []
        def Cv(i): return [f"v_cvt_pk_bf16_f32 v{P_(sb)+i}, v{S_(sb,0)+2*i}, v{S_(sb,0)+2*i+1}"] if sm else []
        pl.add(None, 0)
        for ds in range(4): pl.add(Qm(0, ds), 0, Ex(ds))
        pl.add(Pm(0), 1, Cv(0)); pl.add(Pm(1), 1, Cv(1))
        pl.add(Pm(2), 2); pl.add(Pm(3), 2)
        pl.add(None, 0)
        for ds in range(4): pl.add(Qm(1, ds), 0, Ex(4 + ds))
        pl.add(Pm(4), 1, Cv(2)); pl.add(Pm(5), 1, Cv(3))
        pl.add(Pm(6), 2); pl.add(Pm(7), 2)
        pl.add(Lm(), 2)
    slot_start.append(len(pl.m))
    G = lambda n, k: slot_start[n] + k
    at = lambda n, k, items: pl.at(G(n, k), items)
    kx, vx = opt.get("kx", 0), opt.get("vx", 0)
    slot_of = lambda t: ((2 + t) % 5) * SLOT
    for vi in range(len(visits) - 1):
        n = vend[vi]
        tail = vi + 1 > T0
        k0 = readK((0,)); k1 = readK((1,))
        W = (lambda nn, kk, x: None) if tail else (lambda nn, kk, x: at(nn, kk, [x]))
        if kx == 0 or tail:
            at(n, 7, k0[:2]); at(n, 8, k0[2:]); at(n, 16, k1[:2]); at(n, 17, k1[2:])
            W(n, 18, "s_waitcnt lgkmcnt(4)")
            W(n + 1, 8, "s_waitcnt lgkmcnt(0)")
        else:
            at(n + 1, 0, k0 + k1 + [f"s_waitcnt lgkmcnt({4 if kx == 1 else 0})"])
            if kx == 1: at(n + 1, 8, ["s_waitcnt lgkmcnt(0)"])
        m = n + 2
        v = [readV(dt) for dt in range(8)]
        if vx == 0 or tail:
            at(m, 5, v[0][:1]); at(m, 6, v[0][1:]); at(m, 7, v[1]); at(m, 8, v[2])
            at(m, 14, v[3][:1]); at(m, 15, v[3][1:]); at(m, 16, v[4]); at(m, 17, v[5]); at(m, 18, v[6])
            W(m + 1, 4, "s_waitcnt lgkmcnt(6)")
            at(m + 1, 5, v[7][:1]); at(m + 1, 6, v[7][1:])
            W(m + 1, 8, "s_waitcnt lgkmcnt(2)")
            W(m + 1, 16, "s_waitcnt lgkmcnt(0)")
        else:
            at(m + 1, 0 if vx == 1 else 4, [x for f in v for x in f])
            at(m + 1, 4, [f"s_waitcnt lgkmcnt({8 if vx < 3 else 0})"])
            if vx < 3: at(m + 1, 8, ["s_waitcnt lgkmcnt(0)"])
        if not tail:
            T4 = S_T + 4
            at(n - 1, 5, [f"s_add_u32 s{T4}, s{S_RD}, {SLOT}"])
            at(n - 1, 7, [f"s_cmp_eq_u32 s{T4}, {SLOT*NSLOT}\ns_cselect_b32 s{T4}, 0, s{T4}"])
            at(n - 1, 14, [f"s_sub_u32 s{S_DELTA}, s{T4}, s{S_RD}"]); at(n - 1, 15, [f"s_mov_b32 s{S_RD}, s{T4}"])
            adv = lambda r: f"v_add_u32 v{r}, s{S_DELTA}, v{r}"
        else:
            d = slot_of(visits[vi + 1][0]) - slot_of(visits[vi][0])
            adv = lambda r: f"v_add_u32 v{r}, {d}, v{r}" if d >= 0 else f"v_subrev_u32 v{r}, {-d}, v{r}"
        pl.g[G(n, 5)].insert(len(pl.g[G(n, 5)]), adv(V_KA)); pl.cap[G(n, 5)] -= 1
        at(n + 1, 14, [adv(V_VA0)]); at(n + 1, 15, [adv(V_VA1)])
    BP = opt.get("bp", 3)
    NIT = (T0 - 2) // 2
    assert (T0 - 2) % 2 == 0
    for j in range(31):
        if j < T0:
            g = G(U * j + BP, 0); nxt = G(U * (j + 1) + BP, 0) if j + 1 < T0 else G(vend[j + 1], 0)
        else:
            g = G(vend[j], 0)
        if j >= T0 or j == 30:
            w = 0 if j == 30 else min(8 * (LD - 1), vm_wait({('KV', j + 1)}))
            pl.g[g] += [f"s_waitcnt vmcnt({w})", "s_barrier"]
            if j == 30:
                pf = [f"buffer_load_dword v255, v{V_PF}, s[56:59], s{S_PFO} offen"]
                for k in opt.get("wored", []):
                    pf += [f"s_xor_b32 s54, s{S_PFO}, {k << 15}", f"buffer_load_dword v255, v{V_PF}, s[56:59], s54 offen"]
                if opt.get("wost") is None and not opt.get("wothin"): pl.put(g + 1, pf)
            continue
        assert j + LD + 1 >= 31 or j + 1 < T0 or True
        pl.g[g] += [f"s_waitcnt vmcnt({min(8 * (LD - 1), vm_wait({('KV', j + 1)}))})", "s_barrier"]
        dm = dmaKV(f"s{S_DST}", j + LD + 1) + ring_next(S_DST)
        if opt.get("dmadelay") is None:
            pl.spread(g, min(nxt, G(U * (j + 1), 0)), dm, vmcap=opt.get("vmcap", 2), group=opt.get("dmagroup", 8))
        else:
            full = G(U * (j + 1) + BP, 0)
            lo = g + int((full - g) * opt["dmadelay"])
            pl.spread(lo, min(full, max(nxt, lo + 60)), dm, vmcap=1, group=8)
    if opt.get("wearly", 1): pl.g[G(N + 1, 0)] += ["s_waitcnt lgkmcnt(0)", "s_barrier"]
    assert T0 - 1 + LD + 1 >= 31, "all steps must have been issued before the tail"
    assert T0 - 1 + LD + 1 - 5 < T0, "dummy loads must not overwrite live tail slots"
    R_ = lambda c: NEGM(c)
    V_SA, V_SUM = 253, 254
    def norm_store(r, rc, j, mt, packed):
        L = []
        if packed:
            for h in range(0, 8, 2): L.append(f"v_pk_mul_f32 v[{r+h}:{r+h+1}], v[{r+h}:{r+h+1}], v[{rc}:{rc+1}] op_sel_hi:[1,0]")
        else:
            for h in range(8): L.append(f"v_mul_f32 v{r+h}, v{r+h}, v{rc}")
        for h in range(4): L.append(f"v_cvt_pk_bf16_f32 v{r+h}, v{r+2*h}, v{r+2*h+1}")
        L.append(f"s_add_u32 s{S_T+5}, s{S_T+3}, {(j*13+mt)*1024}")
        L.append(f"buffer_store_dwordx4 {vr(r)}, v{V_SA}, s[20:23], s{S_T+5} offen {opt.get('osf','')}")
        return L
    done = []
    def finish(c, packed):
        L = [f"v_accvgpr_read_b32 v{R_(c)+2}, a{L_(c)}", f"v_rcp_f32 v{R_(c)}, v{R_(c)+2}",
             f"v_add_f32 v{V_SUM}, v{V_SUM}, v{R_(c)+2}" if done else f"v_mov_b32 v{V_SUM}, v{R_(c)+2}"]
        for j in range(4):
            if c < 6: L += norm_store(c * 32 + j * 8, R_(c), j, mt_of(c), packed)
            else:
                stg = done[0] * 32 + j * 8
                L += [f"v_accvgpr_read_b32 v{stg+i}, a{208+8*j+i}" for i in range(8)] + norm_store(stg, R_(c), j, 12, packed)
        done.append(c)
        return L
    at(U * T0, 7, [f"v_lshlrev_b32 v{V_SA}, 4, v{V_LANE}", f"s_lshl_b32 s{S_T+3}, s{S_HP}, 1"])
    at(U * T0, 8, [f"s_add_u32 s{S_T+3}, s{S_T+3}, s{S_HH}", f"s_mul_i32 s{S_T+3}, s{S_T+3}, {4*13*1024}"])
    late = []
    pos = 0
    dens = opt.get("dens", 2)
    order = [n for n, (t, c) in enumerate(units) if t == 31]
    pend6 = None
    for n in order:
        c = units[n][1]
        if c == 6 and not done: pend6 = n; continue
        todo = [c] + ([6] if pend6 is not None else [])
        pend6 = None
        for cc in todo:
            start = G(n + 3, 1) if n + 3 <= N + 1 else len(pl.m)
            if start >= len(pl.m) - 4 or late or not opt.get("prog", 1): late.append(cc); continue
            pos = max(pos, start)
            items = finish(cc, False)
            k = 0
            while k < len(items) and pos < len(pl.m):
                if pl.m[pos]:
                    room = max(pl.cap[pos], 0) + (dens - 2 if pl.cap[pos] > 0 else dens - 2)
                    room = max(room, 0)
                    take = items[k:k + room]; pl.at(pos, take); k += len(take)
                pos += 1
            if k < len(items): pl.at(len(pl.m) - 1, items[k:]); pos = len(pl.m)
    cap = []
    if p == 0 or opt.get("dyn"): cap = I([f"s_cmp_lg_u32 s{S_FLAG}, 0\ns_cbranch_scc1 L1_nb{p}", f"v_readfirstlane_b32 s{gen_op.S_BASE}, v253", f"L1_nb{p}:"])
    seq = pre_a + pl.ins(0, G(2 * U, 0)) + cap + I(stamp(7, opt)) + [Ins(f"s_mov_b32 s{S_CNT}, {NIT}")]
    seq, lg, vm = finalize_straight(seq, out, lg, vm, tag=tag + "a0", verbose=verbose)
    out += seq
    per = G(4 * U, 0) - G(2 * U, 0)
    for it in range(1, NIT):
        for k in range(per):
            a, b = G(2 * U, 0) + k, G(2 * U, 0) + it * per + k
            assert pl.m[a] == pl.m[b] and pl.g[a] == pl.g[b], (it, k, pl.m[a], pl.m[b], pl.g[a], pl.g[b])
    lst = []
    if opt.get("prof2"):
        lst = I(["s_waitcnt lgkmcnt(0)", "s_memrealtime s[98:99]", "s_memtime s[100:101]", f"s_add_u32 s52, s{S_CNT}, 1", "s_and_b32 s52, s52, 0xfe", "s_sub_u32 s52, 38, s52", "s_add_u32 s53, s52, 1",
                 "s_waitcnt lgkmcnt(0)", "v_mov_b32 v252, s98", f"v_cmp_eq_u32 vcc, s52, v{V_LANE}", "v_cndmask_b32 v251, v251, v252, vcc",
                 "v_mov_b32 v252, s100", f"v_cmp_eq_u32 vcc, s53, v{V_LANE}", "v_cndmask_b32 v251, v251, v252, vcc"])
    body = [Ins(".p2align 6"), Ins(f"L1_a{p}:")] + pl.ins(G(2 * U, 0), G(4 * U, 0)) + lst + \
           I([f"s_sub_u32 s{S_CNT}, s{S_CNT}, 1", f"s_cmp_lg_u32 s{S_CNT}, 0", f"s_cbranch_scc1 L1_a{p}"])
    body, lg, vm = finalize_loop(body, out, lg, vm, tag=tag + "aloop", verbose=verbose)
    out += body
    seq = I(stamp(8, opt)) + pl.ins(G(T0 * U, 0), len(pl.m))
    E = Prog(); e = E.e
    e(f"L1_e{p}:")
    E.extend(stamp(9, opt))
    xs = 139264
    if opt.get("wearly", 1) == 1:
        E.extend(gen_op.op_vector_setup(opt, V_LANE, S_WAVE, S_HP)); E.extend(gen_op.w_first(opt))
    if 6 in late and not done: late = [c for c in late if c != 6][:1] + [6] + [c for c in late if c != 6][1:]
    for c in late: E.extend(finish(c, True))
    e(f"v_lshlrev_b32 v{V_T}, 2, v{V_LANE}\nv_add_u32 v{V_T}, {xs}, v{V_T}\ns_lshl_b32 s{S_T+2}, s{S_WAVE}, 8\nv_add_u32 v240, s{S_T+2}, v{V_T}")
    e(f"ds_write_b32 v240, v{V_SUM}")
    E.extend(stamp(10, opt))
    if opt.get("wearly", 1) != 1: E.extend(gen_op.op_vector_setup(opt, V_LANE, S_WAVE, S_HP))
    if opt.get("wearly", 1) == 2: E.extend(gen_op.w_first(opt))
    if opt.get("dyn"): e(f"s_lshl_b32 s{S_T+6}, 1, s{S_HP}\nv_mov_b32 v241, s{S_T+6}")
    else: e("v_mov_b32 v241, 1")
    if opt.get("dyn") and opt.get("prepoll", 1): e(gen_op.pollw())
    e("s_waitcnt vmcnt(0) lgkmcnt(0)\ns_barrier")
    for w in range(4): e(f"ds_read_b32 v{216+w}, v{V_T} offset:{w*256}")
    e(f"s_mov_b32 s{S_T+5}, 0x5f800000")
    e("v_add_f32 v216, v216, v217\nv_add_f32 v218, v218, v219\nv_add_f32 v216, v216, v218")
    e(f"v_cmp_ngt_f32 vcc, s{S_T+5}, v216")
    e(f"s_cmp_lg_u32 s{S_FLAG}, 0\ns_cbranch_scc1 L1_ok{p}")
    e(f"s_cbranch_vccnz L1_fb{p}")
    e(f"L1_ok{p}:")
    E.extend(stamp(20, opt))
    if p == 0:
        e(f"s_cmp_lg_u32 s{S_WAVE}, 0\ns_cbranch_scc1 L2_main")
        if opt.get("dyn"): e(f"s_and_b32 s{S_T+6}, s{S_HP}, 3\ns_lshl_b32 s{gen_op.S_FP}, s{S_B}, 2\ns_add_u32 s{gen_op.S_FP}, s{gen_op.S_FP}, s{S_T+6}\ns_mul_i32 s{gen_op.S_FP}, s{gen_op.S_FP}, {gen_op.FSTRIDE}\ns_mov_b64 exec, 1")
        else: e(f"s_mul_i32 s{gen_op.S_FP}, s{S_B}, {gen_op.FSTRIDE}\ns_mov_b64 exec, 1")
        e(f"buffer_atomic_add v241, v{gen_op.V_ZERO}, s[{gen_op.SF}:{gen_op.SF+3}], s{gen_op.S_FP} offen sc1")
        e(f"buffer_atomic_add v241, v{gen_op.V_ZERO}, s[76:79], s80 offen sc1\ns_mov_b64 exec, -1")
    e("s_branch L2_main")
    seq += E.ins
    seq, lg, vm = finalize_straight(seq, out, lg, vm, tag=tag + "tail", verbose=verbose)
    out += seq
    F = Prog(); e = F.e
    e(f"L1_fb{p}:")
    e("s_waitcnt vmcnt(0) lgkmcnt(0)\ns_barrier")
    back = (2 - (2 + 31) % 5) * SLOT
    assert back < 0
    for r in (V_KA, V_VA0, V_VA1): e(f"v_subrev_u32 v{r}, {-back}, v{r}")
    for c in TILES: e(f"v_mov_b32 v{24+c}, 0xff800000")
    e(KVRST + f"\ns_mov_b32 s{S_CNT}, 32\ns_mov_b32 s{S_FLAG}, 1")
    fpre, _, _ = finalize_straight(F.ins, [], [], [], tag=tag + "fb0")
    F = Prog(); e = F.e
    e(f"L1_fl{p}:")
    F.extend(dmaKV(2 * SLOT, 0, track=False))
    e("s_waitcnt vmcnt(0)\ns_barrier")
    F.extend(readK())
    F.extend(qk_all(2))
    for c in sorted(TILES):
        r = MX(c)
        e(f"v_max3_f32 v{r}, v{r}, v{r+1}, v{r+2}\nv_max3_f32 v{r+3}, v{r+3}, v{r+4}, v{r+5}\nv_max3_f32 v{r}, v{r}, v{r+6}, v{r+7}")
        e(f"v_max3_f32 v{24+c}, v{24+c}, v{r}, v{r+3}")
    e("s_barrier")
    e(f"s_sub_u32 s{S_CNT}, s{S_CNT}, 1\ns_cmp_lg_u32 s{S_CNT}, 0\ns_cbranch_scc1 L1_fl{p}")
    fl, _, _ = finalize_loop(F.ins, fpre, [], [], tag=tag + "fbl")
    F = Prog(); e = F.e
    e(KVRST)
    for t in range(LD + 1): F.extend(dmaKV(((2 + t) % 5) * SLOT, t, track=False))
    for c in TILES: e(f"v_mov_b32 v{MX(c)}, v{24+c}")
    e("s_waitcnt vmcnt(0)\ns_barrier")
    F.extend(readK())
    for dt in range(8): F.extend(readV(dt))
    e(f"s_branch L1_m{p}")
    fpost, _, _ = finalize_straight(F.ins, fl, [], [], tag=tag + "fb2")
    out += fpre + fl + fpost
    return out
```

```python
from asmgen import *
from gen_k2 import mf, vr, ar, WS_O_BYTES_PER_B
import struct, math
import gen_op

SLOT = 32768
NSLOT = 5
QSCALE = math.log2(math.e) / math.sqrt(128.0)
def f32bits(x): return struct.unpack("<I", struct.pack("<f", x))[0]

def O_(c, dt): return vr(c * 32 + dt * 4) if c < 6 else ar(208 + dt * 4)
def NEGM(c): return 192 + 4 * c
def S_(buf, kt): return 220 + buf * 8 + kt * 4
def P_(buf): return 236 + buf * 4
V_KA, V_VA0, V_VA1, V_LANE = 244, 245, 246, 247
V_KV = 248
V_PF = 250
V_T = 252
V_QW, V_QX = 208, 212
V_QRW, V_QRX, V_QRX2, V_BW, V_BX = 216, 217, 218, 219, 220
V_RW = 221
def Q_(c, ds): return c * 16 + ds * 4
def K_(kt, ds): return 112 + kt * 16 + ds * 4
def V_(dt): return 144 + dt * 4
def L_(c): return 176 + 4 * c
ONES = 204
def QA(buf, j2, u): return 112 + buf * 60 + (j2 * 2 + u) * 4
def QB(buf, c): return 112 + buf * 60 + 32 + c * 4
def QACC(c, j2, u, p):
    if c < 6: return (c * 8 + j2 * 2 + u) * 4
    return (48 + (j2 - 2 * p) * 2 + u) * 4
def RREG(t, i):
    k = t * 8 + i
    return 4 * k if k < 28 else 232 + 4 * (k - 28)
S_WAVE, S_HH, S_B, S_HP, S_CNT, S_DST = 24, 25, 26, 27, 28, 29
S_XO, S_WO, S_KO, S_KO2, S_DELTA = 30, 31, 32, 33, 34
S_M0W, S_M0X, S_M0KV, S_RD = 35, 36, 37, 39
S_T = 40
S_FLAG, S_XO2, S_M0X2, S_PREV, S_PFO = 48, 49, 50, 51, 55
S_KA, S_KX = 64, 65
XREG = 16640

def stamp(k, opt):
    if not opt.get("prof"): return []
    return ["s_waitcnt lgkmcnt(0)", "s_memrealtime s[98:99]", "s_memtime s[100:101]", "s_waitcnt lgkmcnt(0)",
            f"v_writelane_b32 v251, s98, {2*k}", f"v_writelane_b32 v251, s100, {2*k+1}"]
DD = [0]
def dbg_dump(opt, wave):
    if not opt.get("dbgdump"): return []
    DD[0] += 1; lab = f"L_dd{DD[0]}"
    L = [f"s_cmp_lg_u32 s55, {opt['dbgdump']*1024}", f"s_cbranch_scc1 {lab}", "s_mov_b64 exec, 1", "v_readlane_b32 s98, v251, 0", "v_mov_b32 v250, 0"]
    slots = [1,2,3,5,6,7,9,10,11,13,14,15]
    for sl, k in zip(slots, [1,2,3,4,6,7,8,9,20,21,22,25]):
        L += [f"v_readlane_b32 s99, v251, {2*k}", "s_nop 3", "s_sub_u32 s99, s99, s98", "v_mov_b32 v249, s99", f"buffer_store_dword v249, v250, s[76:79], 0 offen offset:{4*sl}", "s_nop 3"]
    return L + [f"{lab}:"]
def stamp_store(n, opt, wsreg, base, wave):
    if not opt.get("prof"): return []
    return [f"s_add_u32 s60, s{wsreg}, {base}", f"s_addc_u32 s61, s{wsreg+1}, 0", "s_mov_b32 s62, 0x100000", "s_mov_b32 s63, 0x20000",
         f"s_lshl_b32 s55, s2, 2", f"s_add_u32 s55, s55, s{wave}", "s_lshl_b32 s55, s55, 8",
         "v_mbcnt_lo_u32_b32 v250, -1, 0", "v_mbcnt_hi_u32_b32 v250, -1, v250", "v_lshlrev_b32 v250, 2, v250",
         "buffer_store_dword v251, v250, s[60:63], s55 offen"] + dbg_dump(opt, wave)

def code_pf(lo, hi, idx_sgpr, va, lane128, tmp=S_T+6, fwd=False):
    return [f"s_getpc_b64 s[{tmp}:{tmp+1}]\ns_add_u32 s{tmp}, s{tmp}, {lo}-.\ns_addc_u32 s{tmp+1}, s{tmp+1}, 0" if fwd else
            f"s_getpc_b64 s[{tmp}:{tmp+1}]\ns_sub_u32 s{tmp}, s{tmp}, .-{lo}\ns_subb_u32 s{tmp+1}, s{tmp+1}, 0",
            f"v_lshl_add_u32 v{va}, s{idx_sgpr}, 13, v{lane128}",
            f"v_min_u32 v{va}, {hi}-{lo}-4, v{va}",
            f"v_mov_b32 v{va+1}, s{tmp+1}",
            f"v_add_co_u32 v{va}, vcc, s{tmp}, v{va}\ns_nop 1\nv_addc_co_u32 v{va+1}, vcc, 0, v{va+1}, vcc",
            f"global_load_dword v255, v[{va}:{va+1}], off"]
def cost(x): return 1 + x.count("\n")
def isvm(x): return x.startswith("buffer") or x.startswith("global")

class Place:
    def __init__(self): self.m = []; self.g = []; self.cap = []
    def add(self, m, cap=2, fixed=()):
        self.m.append(m); self.g.append(list(fixed)); self.cap.append(cap)
    def at(self, g, items):
        for it in items:
            self.g[g].append(it); self.cap[g] -= cost(it)
    def put(self, pos, items, hi=None, step=0):
        hi = len(self.m) - 1 if hi is None else hi
        for it in items:
            while pos < hi and self.cap[pos] < min(cost(it), 2): pos += 1
            self.at(pos, [it])
            last = pos
            pos = min(pos + step, hi)
        return last
    def spread(self, lo, hi, items, vmcap=2, group=1):
        nb = sum(1 for x in items if isvm(x))
        cand = [k for k in range(lo + 1, hi) if self.cap[k] >= vmcap]
        assert len(cand) >= nb, (len(cand), nb)
        ng = -(-nb // group)
        pick = []
        for gi in range(ng):
            st = (gi * len(cand)) // ng
            for q in range(min(group, nb - gi * group)): pick.append(cand[st + q])
        assert pick == sorted(set(pick)), pick
        bi = 0; prev = lo
        for idx, x in enumerate(items):
            if isvm(x):
                g = pick[bi]; bi += 1
                self.g[g].append(x); self.cap[g] -= vmcap; prev = g
            else:
                lim = pick[bi] if bi < nb else hi
                q = prev
                while q < lim - 1 and (self.cap[q] < cost(x) or q in pick[bi:]): q += 1
                if self.cap[q] < cost(x): q = prev if bi > 0 or True else q
                self.at(q, [x]); prev = q
        return prev
    def ins(self, lo=0, hi=None):
        out = []
        for k in range(lo, len(self.m) if hi is None else hi):
            if self.m[k]: out.append(Ins(self.m[k]))
            for x in self.g[k]:
                for line in x.split("\n"): out.append(Ins(line))
        return out

def ring_next(reg):
    return [f"s_add_u32 s{reg}, s{reg}, {SLOT}", f"s_cmp_eq_u32 s{reg}, {SLOT*NSLOT}\ns_cselect_b32 s{reg}, 0, s{reg}"]
def I(lst): return [Ins(l) for x in lst for l in x.split("\n")]

DESC = """.amdhsa_kernel {name}
  .amdhsa_next_free_vgpr 512
  .amdhsa_next_free_sgpr 102
  .amdhsa_accum_offset 256
  .amdhsa_group_segment_fixed_size 0
  .amdhsa_kernarg_size 64
  .amdhsa_user_sgpr_count 2
  .amdhsa_user_sgpr_kernarg_segment_ptr 1
  .amdhsa_system_sgpr_workgroup_id_x 1
.end_amdhsa_kernel
"""

def gen_k1(name="attn_kernel", opt=None):
    opt = opt or {}
    P = Prog(); e = P.e
    e(f".p2align 8\n.type {name},@function\n{name}:")
    e("s_cmp_ge_u32 s2, 256\ns_cbranch_scc1 L1_end")
    P.extend(stamp(0, opt))
    e("s_load_dwordx4 s[40:43], s[0:1], 0")
    e("s_load_dwordx4 s[44:47], s[0:1], 16")
    e("s_load_dwordx2 s[4:5], s[0:1], 56")
    e("s_load_dwordx2 s[6:7], s[0:1], 32")
    e("s_load_dwordx2 s[76:77], s[0:1], 48")
    e(f"s_load_dwordx2 s[{gen_op.SOUT}:{gen_op.SOUT+1}], s[0:1], 40")
    L = V_LANE
    t0, t1, t2, t3 = V_T, V_T + 1, V_T + 2, V_T + 3
    e(f"v_lshrrev_b32 v{t0}, 6, v0")
    e(f"v_and_b32 v{L}, 63, v0")
    e(f"v_readfirstlane_b32 s{S_WAVE}, v{t0}")
    e("s_and_b32 s90, s2, 7\ns_lshr_b32 s91, s2, 3")
    if opt.get("map", 0) == 0:
        e(f"s_lshr_b32 s{S_B}, s90, 1\ns_lshl_b32 s{S_B}, s{S_B}, 2\ns_lshr_b32 s52, s91, 3\ns_add_u32 s{S_B}, s{S_B}, s52")
        e(f"s_and_b32 s{S_HP}, s90, 1\ns_lshl_b32 s{S_HP}, s{S_HP}, 3\ns_and_b32 s52, s91, 7\ns_add_u32 s{S_HP}, s{S_HP}, s52")
    elif opt["map"] == 1:
        e(f"s_lshl_b32 s{S_B}, s90, 1\ns_lshr_b32 s52, s91, 4\ns_add_u32 s{S_B}, s{S_B}, s52\ns_and_b32 s{S_HP}, s91, 15")
    elif opt["map"] == 2:
        e(f"s_lshr_b32 s{S_B}, s90, 2\ns_lshl_b32 s{S_B}, s{S_B}, 3\ns_lshr_b32 s52, s91, 2\ns_add_u32 s{S_B}, s{S_B}, s52")
        e(f"s_and_b32 s{S_HP}, s90, 3\ns_lshl_b32 s{S_HP}, s{S_HP}, 2\ns_and_b32 s52, s91, 3\ns_add_u32 s{S_HP}, s{S_HP}, s52")
    else:
        e(f"s_lshr_b32 s{S_B}, s91, 1\ns_lshl_b32 s{S_HP}, s90, 1\ns_and_b32 s52, s91, 1\ns_add_u32 s{S_HP}, s{S_HP}, s52")
    if opt.get("hpx"): e(f"s_xor_b32 s{S_HP}, s{S_HP}, {opt['hpx']}")
    e(f"s_lshr_b32 s{S_HH}, s{S_WAVE}, 1\ns_and_b32 s53, s{S_WAVE}, 1")
    e(f"v_lshrrev_b32 v{t0}, 2, v{L}\nv_and_b32 v{t0}, 3, v{t0}")
    e(f"v_lshrrev_b32 v{t1}, 4, v{L}")
    e(f"v_and_b32 v{t2}, 3, v{L}")
    e(f"v_lshlrev_b32 v{V_QW}, 13, v{t0}\nv_lshl_add_u32 v{V_QW}, v{t1}, 6, v{V_QW}\nv_lshl_add_u32 v{V_QW}, v{t2}, 4, v{V_QW}")
    e(f"s_lshl_b32 s52, s{S_WAVE}, 16\ns_add_u32 s52, s52, 4096\nv_add_u32 v{V_QW}, s52, v{V_QW}")
    for i in range(1, 4):
        d = (i & 1) * 4 * 8192 + (i >> 1) * 256 - i * 1024
        e(f"v_add_u32 v{V_QW+i}, {d}, v{V_QW}" if d >= 0 else f"v_subrev_u32 v{V_QW+i}, {-d}, v{V_QW}")
    e(f"v_lshrrev_b32 v{V_QX}, 2, v{L}\nv_and_b32 v{V_QX}, 7, v{V_QX}")
    e(f"v_lshrrev_b32 v{t3}, 2, v{V_QX}\nv_lshlrev_b32 v{t3}, 1, v{t3}\nv_xor_b32 v{t3}, v{t3}, v{t2}")
    e(f"v_lshlrev_b32 v{V_QX}, 11, v{V_QX}\nv_lshl_add_u32 v{V_QX}, v{t3}, 4, v{V_QX}")
    e(f"v_lshrrev_b32 v{t3}, 5, v{L}\nv_lshl_add_u32 v{V_QX}, v{t3}, 6, v{V_QX}")
    for i in range(1, 4): e(f"v_add_u32 v{V_QX+i}, {i*(16384-1024)}, v{V_QX}")
    e(f"s_lshl_b32 s52, s{S_WAVE}, 2\ns_lshr_b32 s52, 0xb480, s52\ns_and_b32 s52, s52, 15")
    e(f"s_lshl_b32 s{S_XO}, s52, 14\ns_lshl_b32 s{S_M0X}, s52, 10\ns_add_u32 s{S_M0X}, s{S_M0X}, {XREG}")
    e(f"s_mul_i32 s52, s{S_WAVE}, 3")
    e(f"s_lshl_b32 s{S_XO2}, s52, 14\ns_add_u32 s{S_XO2}, s{S_XO2}, {14*16384}")
    e(f"s_lshl_b32 s{S_M0X2}, s52, 10\ns_add_u32 s{S_M0X2}, s{S_M0X2}, {XREG}")
    e(f"s_mul_i32 s{S_M0W}, s53, 8200\ns_lshl_b32 s54, s{S_HH}, 12\ns_add_u32 s{S_M0W}, s{S_M0W}, s54")
    e(f"s_mov_b32 s{S_WO}, 0")
    if opt.get("qrole"):
        e(f"s_mul_i32 s52, s{S_HH}, 7\ns_lshl_b32 s{S_XO}, s52, 14\ns_lshl_b32 s{S_M0X}, s52, 10\ns_add_u32 s{S_M0X}, s{S_M0X}, {XREG}")
        e(f"s_mul_i32 s52, s{S_HH}, 6\ns_lshl_b32 s{S_XO2}, s52, 14\ns_add_u32 s{S_XO2}, s{S_XO2}, {14*16384}")
        e(f"s_lshl_b32 s{S_M0X2}, s52, 10\ns_add_u32 s{S_M0X2}, s{S_M0X2}, {XREG}")
    e(f"s_mul_i32 s52, s{S_B}, 425984\ns_lshl_b32 s54, s{S_HP}, 9")
    e("s_mov_b32 s10, 425984\ns_mov_b32 s11, 0x20000\ns_mov_b32 s15, 0x20000")
    e(f"s_sub_u32 s14, {8388608+4096}, s54")
    e("s_waitcnt lgkmcnt(0)")
    e("s_add_u32 s8, s40, s52\ns_addc_u32 s9, s41, 0")
    e("s_add_u32 s12, s46, s54\ns_addc_u32 s13, s47, 0\ns_sub_u32 s12, s12, 4096\ns_subb_u32 s13, s13, 0")
    e("s_cmp_eq_u32 s53, 1\ns_cbranch_scc1 L1_p1")
    head, _, _ = finalize_straight(P.ins, tag="k1head")
    out = list(head)
    for p in range(2):
        out += gen_path(p, head, opt)
    out.append(Ins("L1_end:")); out.append(Ins("s_endpgm"))
    Q = Prog(); Q.ins = out
    return Q.text(), DESC.format(name=name)

def setup2(p, opt):
    P = Prog(); e = P.e
    L = V_LANE
    t0, t1, t2, t3 = V_T, V_T + 1, V_T + 2, V_T + 3
    kv = (42, 43) if p == 0 else (44, 45)
    e(f"s_lshl_b32 s52, s{S_B}, 5\ns_lshl_b32 s54, s{S_HP}, 1\ns_add_u32 s52, s52, s54\ns_add_u32 s52, s52, s{S_HH}")
    if opt.get("kvrot", 1) == 1: e(f"s_lshr_b32 s54, s52, 5\ns_mul_i32 s54, s54, 11\ns_add_u32 s54, s54, s52\ns_and_b32 s54, s54, 31\ns_lshl_b32 s{S_KX}, s54, 13")
    else: e(f"s_mov_b32 s{S_KX}, 0")
    if opt.get("kvsame"): e(f"s_mov_b32 s52, s{S_HH}")
    e("s_lshl_b32 s54, s52, 18")
    e(f"s_add_u32 s16, s{kv[0]}, s54\ns_addc_u32 s17, s{kv[1]}, 0\ns_mov_b32 s18, 262144\ns_mov_b32 s19, 0x20000")
    e(f"s_mul_i32 s52, s{S_B}, {WS_O_BYTES_PER_B}")
    e(f"s_add_u32 s20, s4, s52\ns_addc_u32 s21, s5, 0\ns_mov_b32 s22, {WS_O_BYTES_PER_B}\ns_mov_b32 s23, 0x20000")
    e("s_mov_b32 s56, s6\ns_mov_b32 s57, s7\ns_mov_b32 s58, 8388608\ns_mov_b32 s59, 0x20000")
    e(f"s_lshl_b32 s{S_M0KV}, s{S_WAVE}, 13")
    e(f"s_mov_b32 s78, 256\ns_mov_b32 s79, 0x20000\ns_lshl_b32 s80, s{S_B}, 4")
    e(f"v_and_b32 v{V_QRW}, 1, v{t1}\nv_mul_u32_u24 v{V_QRW}, 8200, v{V_QRW}")
    e(f"v_lshrrev_b32 v{V_QRX}, 1, v{t1}\nv_lshl_add_u32 v{V_QRW}, v{V_QRX}, 12, v{V_QRW}")
    e(f"v_and_b32 v{V_QRX}, 15, v{L}\nv_lshl_add_u32 v{V_QRW}, v{V_QRX}, 4, v{V_QRW}")
    e(f"s_lshl_b32 s54, s{S_HH}, 11\nv_add_u32 v{V_QRW}, s54, v{V_QRW}")
    e(f"v_and_b32 v{t3}, 1, v{t0}\nv_lshlrev_b32 v{t3}, 1, v{t3}\nv_xor_b32 v{t3}, v{t3}, v{t1}\nv_lshlrev_b32 v{t3}, 4, v{t3}")
    e(f"v_and_b32 v{V_QRX2}, 7, v{L}\nv_lshl_add_u32 v{V_QRX2}, v{V_QRX2}, 6, v{t3}")
    e(f"v_lshrrev_b32 v{V_QRX}, 3, v{V_QRX}\nv_lshl_add_u32 v{V_QRX}, v{V_QRX}, 10, v{V_QRX2}")
    e(f"v_add_u32 v{V_QRX}, {XREG}, v{V_QRX}\nv_add_u32 v{V_QRX2}, {SLOT}, v{V_QRX}")
    e(f"v_mov_b32 v{V_BW}, v{V_QRW}\nv_mov_b32 v{V_BX}, v{V_QRX}")
    e(f"v_lshl_add_u32 v{V_KA}, v{t0}, 10, v{t3}\nv_lshl_add_u32 v{V_KA}, v{t2}, 6, v{V_KA}")
    e(f"s_lshl_b32 s54, s{S_HH}, 14\ns_add_u32 s54, s54, {2*SLOT}\nv_add_u32 v{V_KA}, s54, v{V_KA}")
    e(f"v_lshlrev_b32 v{V_VA0}, 10, v{t1}\nv_lshl_add_u32 v{V_VA0}, v{t0}, 6, v{V_VA0}\nv_lshl_add_u32 v{V_VA0}, v{t2}, 3, v{V_VA0}")
    e(f"s_add_u32 s54, s54, 8192\nv_add_u32 v{V_VA0}, s54, v{V_VA0}")
    e(f"v_and_b32 v{t3}, 1, v{t1}\nv_lshl_add_u32 v{V_VA0}, v{t3}, 5, v{V_VA0}\nv_xor_b32 v{V_VA1}, 32, v{V_VA0}")
    e(f"v_lshlrev_b32 v{V_KV}, 8, v{t0}\nv_lshl_add_u32 v{V_KV}, v{t1}, 6, v{V_KV}\nv_lshl_add_u32 v{V_KV}, v{t2}, 4, v{V_KV}")
    e(f"v_xor_b32 v{V_KV+1}, 32, v{V_KV}\nv_lshlrev_b32 v{V_PF}, 7, v{L}")
    e(f"v_lshlrev_b32 v{t3}, 4, v{L}\nv_add_u32 v{t3}, s{S_M0KV}, v{t3}")
    for t in range(4): e(f"v_add_u32 v{V_RW+t}, {((2+t)%5)*SLOT}, v{t3}")
    e(f"s_mov_b32 s{S_DST}, 0\ns_mov_b32 s{S_RD}, 0\ns_mov_b32 s{S_KA}, 0\ns_mov_b32 s{S_KO}, s{S_KX}\ns_or_b32 s{S_KO2}, s{S_KX}, 4096\ns_mov_b32 s{S_FLAG}, 0\ns_mov_b32 s{S_PREV}, {4*SLOT}")
    P.extend(gen_op.op_scalar_setup(opt, S_WAVE))
    return [i.text for i in P.ins]

def gen_path(p, head, opt):
    verbose = opt.get("verbose", False)
    KVF = opt.get("kvflags", "nt")
    NR = opt.get("nr", 4)
    nxa = 4 if p == 0 else 3
    tag = f"p{p}"
    out = []
    vmq = []
    def vm_wait(tags):
        last = max((k for k, t in enumerate(vmq) if t in tags), default=None)
        if last is None: return 63
        return min(63, len(vmq) - 1 - last)
    role = opt.get("qrole")
    def dmaW(s, slot):
        if role and p == 1: return []
        L = [f"s_add_u32 m0, s{S_M0W}, {slot}"]
        for i in range(4): L.append(f"buffer_load_dwordx4 v{V_QW+i}, s[12:15], s{S_WO} offen offset:{i*1024} {opt.get('wqf','')} lds")
        vmq.extend([("W", s)] * 4)
        if role:
            L += [f"s_add_u32 m0, m0, 8200", f"s_add_u32 s70, s{S_WO}, 65536"]
            for i in range(4): L.append(f"buffer_load_dwordx4 v{V_QW+i}, s[12:15], s70 offen offset:{i*1024} {opt.get('wqf','')} lds")
            vmq.extend([("W", s)] * 4)
        L.append(f"s_add_u32 s{S_WO}, s{S_WO}, 262144")
        return L
    def dmaX(which, sig, slot):
        if role == 1 and p == 1: return []
        if role == 2 and p == 0: return []
        n = nxa if which == "A" else 3
        if role: n = 7 if which == "A" else 6
        m0r, so = (S_M0X, S_XO) if which == "A" else (S_M0X2, S_XO2)
        L = [f"s_add_u32 m0, s{m0r}, {slot}"]
        for i in range(min(n, 4)): L.append(f"buffer_load_dwordx4 v{V_QX+i}, s[8:11], s{so} offen offset:{i*1024} {opt.get('xf','')} lds")
        if n > 4:
            L += [f"s_add_u32 m0, m0, 4096", f"s_add_u32 s70, s{so}, 65536"]
            for i in range(n - 4): L.append(f"buffer_load_dwordx4 v{V_QX+i}, s[8:11], s70 offen offset:{i*1024} {opt.get('xf','')} lds")
        L.append(f"s_add_u32 s{so}, s{so}, 128")
        vmq.extend([("X" + which, sig)] * n)
        return L
    KVADV = [f"s_add_u32 s{S_KA}, s{S_KA}, 8192", f"s_xor_b32 s{S_KO}, s{S_KA}, s{S_KX}", f"s_or_b32 s{S_KO2}, s{S_KO}, 4096"]
    KVRST = f"s_mov_b32 s{S_KA}, 0\ns_mov_b32 s{S_KO}, s{S_KX}\ns_or_b32 s{S_KO2}, s{S_KX}, 4096"
    def dmaKV(base, t, track=True):
        L = [f"s_add_u32 m0, s{S_M0KV}, {base}"]
        for i in range(4): L.append(f"buffer_load_dwordx4 v{V_KV+(i&1)}, s[16:19], s{S_KO} offen offset:{i*1024} {KVF} lds")
        L.append("s_add_u32 m0, m0, 4096")
        for i in range(4): L.append(f"buffer_load_dwordx4 v{V_KV+(i&1)}, s[16:19], s{S_KO2} offen offset:{i*1024} {KVF} lds")
        L += KVADV
        if track: vmq.extend([("KV", t)] * 8)
        return L
    def regKV(k):
        t, i = divmod(k, 8)
        L = [f"buffer_load_dwordx4 {ar(RREG(t,i))}, v{V_KV+(i&1)}, s[16:19], s{S_KO if i < 4 else S_KO2} offen offset:{(i&3)*1024} {KVF}"]
        if i == 7: L += KVADV
        vmq.append(("R", t))
        return L
    def wrKV(t): return [f"ds_write_b128 v{V_RW+t}, {ar(RREG(t,i))} offset:{i*1024}" for i in range(8)]
    def mt_of(c): return 6 * p + c if c < 6 else 12
    def readQ(s):
        buf = s % 2; kh = s % 2
        order = [f"ds_read_b64_tr_b16 {ar(QA(buf,j2,u)+2*uk,2)}, v{V_QRW} offset:{uk*1024+j2*256+u*8}"
                 for j2 in range(4) for u in range(2) for uk in range(2)]
        xs = []
        for c in range(7):
            mt = mt_of(c)
            if mt < 7: xs.append(f"ds_read_b128 {ar(QB(buf,c))}, v{V_QRX} offset:{mt*2048+kh*512}")
            else: xs.append(f"ds_read_b128 {ar(QB(buf,c))}, v{V_QRX2} offset:{(mt-7)*2048+kh*512}")
        return order[:2] + xs + order[2:]
    def adv_rd(s):
        L = ring_next(S_RD) + [f"v_add_u32 v{V_QRW}, s{S_RD}, v{V_BW}"]
        if (s + 1) % 2 == 0:
            L += [f"v_add_u32 v{V_QRX}, s{S_RD}, v{V_BX}", f"s_add_u32 s{S_T}, s{S_RD}, {SLOT}",
                  f"s_cmp_eq_u32 s{S_T}, {SLOT*NSLOT}\ns_cselect_b32 s{S_T}, 0, s{S_T}", f"v_add_u32 v{V_QRX2}, s{S_T}, v{V_BX}"]
        return L
    def need(s): return {("W", s), ("XA", s // 2), ("XB", s // 2)}
    P = Prog(); e = P.e
    e(f"L1_p{p}:")
    P.extend(dmaW(0, 0)); P.extend(dmaX("A", 0, 0)); P.extend(dmaX("B", 0, SLOT)); P.extend(dmaW(1, SLOT))
    P.extend(setup2(p, opt))
    if opt.get("qpf"):
        e(f"s_mov_b32 s69, {opt.get('qpf0',5)*8192}\ns_xor_b32 s68, s69, s{S_KX}\nv_lshlrev_b32 v228, 6, v{V_LANE}")
    if opt.get("early", 1) >= 1:
        P.extend(dmaW(2, 2 * SLOT)); P.extend(dmaX("A", 1, 2 * SLOT)); P.extend(dmaX("B", 1, 3 * SLOT))
    w0 = vm_wait(need(0))
    if opt.get("cpf", True):
        e(f"s_lshr_b32 s{S_PFO}, s2, 3\ns_lshl_b32 s{S_PFO}, s{S_PFO}, 2\ns_add_u32 s{S_PFO}, s{S_PFO}, s{S_WAVE}")
        if opt.get("thin", True):
            pf = code_pf(opt.get("kname", "attn_kernel"), "L_code_end", S_PFO, 226, V_KV)
            pf[1] = f"v_lshl_add_u32 v226, s{S_PFO}, 10, v{V_KV}"
            P.extend(pf)
        else:
            e(f"s_and_b32 s{S_PFO}, s{S_PFO}, 15")
            P.extend(code_pf(opt.get("kname", "attn_kernel"), "L_code_end", S_PFO, 226, V_PF))
        vmq.append(("T", "code")); w0 = min(63, w0 + 1)
    e(f"s_waitcnt vmcnt({w0})\ns_barrier")
    P.extend(stamp(1, opt))
    P.extend(readQ(0)); P.extend(adv_rd(0))
    if opt.get("early", 1) < 1:
        P.extend(dmaW(2, 2 * SLOT)); P.extend(dmaX("A", 1, 2 * SLOT)); P.extend(dmaX("B", 1, 3 * SLOT))
    seq, lg, vm = finalize_straight(P.ins, head, tag=tag + "pro", verbose=verbose)
    out += seq
    rs0, rs1 = opt.get("rstages", (10, 26))
    rsched = {}
    for k in range(NR * 8): rsched.setdefault(rs0 + (k * (rs1 - rs0)) // (NR * 8), []).append(k)
    LD = opt.get("lead", 4)
    kv_at = {0: (27, "cur"), 1: (29, "prev"), 2: (29, "cur"), 3: (31, "prev")}
    kv_at = {t: v for t, v in kv_at.items() if t <= LD}
    if opt.get("kvlate") == 1 and LD == 2: kv_at = {0: (27, "cur"), 1: (29, "prev"), 2: (30, "prev")}
    if opt.get("kvst"):
        kv_at = {t: (st, ((2 + t) % 5) * SLOT) for t, st in enumerate(opt["kvst"]) if st < 32}
        for t, (st, _) in kv_at.items(): assert st >= (27, 29, 29, 31)[t]
    def qstage(s):
        buf = s % 2
        pl = Place()
        wtags = need(s + 1) if s < 31 else set()
        wr = []
        for t, (st, which) in kv_at.items():
            if st == s and t < NR: wtags = wtags | {("R", t)}; wr += wrKV(t)
        pl.add(None, 0, [f"s_waitcnt vmcnt({vm_wait(wtags)}) lgkmcnt(0)", "s_barrier"])
        for j2 in range(4):
            for u in range(2):
                for c in range(7):
                    if c == 6 and (j2 >> 1) != p: continue
                    d = vr(QACC(c, j2, u, p))
                    pl.add(mf(d, ar(QA(buf, j2, u)), ar(QB(buf, c)), "0" if s == 0 else d), cap=2)
        dm = []
        cur, prev = f"s{S_DST}", f"s{S_PREV}"
        if s == 0: dm += dmaW(3, 3 * SLOT) + dmaW(4, 4 * SLOT)
        sig = (s + 4) // 2
        if sig <= 15: dm += dmaX("A" if s % 2 == 0 else "B", sig, prev)
        if s + 5 <= 31: dm += dmaW(s + 5, cur)
        for k in rsched.get(s, []): dm += regKV(k)
        for t, (st, which) in kv_at.items():
            if st == s and t >= NR: dm += dmaKV(cur if which == "cur" else prev if which == "prev" else which, t)
        q0, q1 = opt.get("qpfr", (2, 24))
        if opt.get("qpf") and role and p == 1 and q0 <= s < q1:
            n = opt["qpf"]
            for q in range(n):
                isv = (s % 2) if n == 1 else (q % 2)
                srd = "s[16:19]" if isv else "s[72:75]"
                dm += [f"buffer_load_dword v255, v228, {srd}, s68 offen {opt.get('qpff','')}"]; vmq.append(("T", "kv"))
                if isv: dm += [f"s_add_u32 s69, s69, 4096", f"s_xor_b32 s68, s69, s{S_KX}"]
        if opt.get("opre") and (p == 1 or role != 1) and 2 <= s < 26:
            n = opt["opre"]; share = 52 if role == 1 else 26
            if s == 2:
                dm += [f"s_lshl_b32 s74, s{S_HP}, 1\ns_add_u32 s74, s74, s{S_HH}", f"s_mul_i32 s74, s74, {52*1024}"]
                if role != 1 and p == 1: dm += [f"s_add_u32 s74, s74, {26*1024}"]
                dm += [f"s_add_u32 s75, s74, {(share-n)*1024}", f"v_lshlrev_b32 v229, 4, v{V_LANE}"]
            for q in range(n):
                dm += [f"buffer_store_dwordx4 v[244:247], v229, s[20:23], s74 offen offset:{q*1024} {opt.get('osf','')}"]; vmq.append(("T", "o"))
            dm += [f"s_add_u32 s74, s74, {n*1024}", "s_min_u32 s74, s74, s75"]
        if opt.get("wothin") and 2 <= s < 26 and s % 2 == opt["wothin"] - 1:
            if s < 4: dm += [f"s_lshl_b32 s38, s2, 2\ns_add_u32 s38, s38, s{S_WAVE}", "s_lshl_b32 s38, s38, 13", "s_add_u32 s71, s38, 7168"]
            dm += [f"buffer_load_dword v255, v{V_KV}, s[56:59], s38 offen", "s_add_u32 s38, s38, 1024", "s_min_u32 s38, s38, s71"]; vmq.append(("T", "wo"))
        if s == opt.get("wost"):
            dm += [f"s_lshl_b32 s38, s2, 2\ns_add_u32 s38, s38, s{S_WAVE}", "s_lshl_b32 s38, s38, 13", f"buffer_load_dword v255, v{V_PF}, s[56:59], s38 offen"]; vmq.append(("T", "wo"))
        if s in opt.get("cpf2", []):
            dm += ["global_load_dword v255, v[226:227], off"]; vmq.append(("T", "code"))
        dm += [f"s_mov_b32 s{S_PREV}, s{S_DST}"] + ring_next(S_DST)
        if any(isvm(x) for x in dm): pl.spread(1, 50, dm, vmcap=1)
        else: pl.put(40, dm)
        pos = 1
        if s < 31:
            pos = pl.put(1, readQ(s + 1), step=1)
            pos = pl.put(pos + 1, adv_rd(s + 1))
        if wr: pl.put(pos + 1, wr, step=1)
        res = pl.ins()
        abl = opt.get("abl", "")
        if 4 <= s < 26:
            if "nodma" in abl: res = [x for x in res if x.kind != "dma"]
            if "noread" in abl: res = [x for x in res if x.kind != "dsr"]
            if "nobar" in abl: res = [x for x in res if x.op != "s_barrier"]
            if "chain" in abl:
                k = 0; r2 = []
                ch = int(abl.split("chain")[1][0])
                for x in res:
                    if x.kind == "mfma":
                        ops = x.text.split(None, 1)[1].split(", ")
                        if k % ch == 0: dkeep = ops[0]
                        x = Ins(mf(dkeep, ops[1], ops[2], dkeep)); k += 1
                    r2.append(x)
                res = r2
        return res
    stages = [qstage(s) for s in range(32)]
    txt = lambda L: [i.text for i in L]
    LO = opt.get('lo', 4); HI = LO
    while HI + 2 <= 32 and txt(stages[HI]) == txt(stages[LO]) and txt(stages[HI + 1]) == txt(stages[LO + 1]): HI += 2
    if opt.get("qunroll"): HI = LO + 2
    if p == 0: print("qproj loop stages", LO, HI)
    seq = []
    for s in range(LO): seq += stages[s]
    seq += I(stamp(2, opt)) + [Ins(f"s_mov_b32 s{S_CNT}, {(HI-LO)//2}")]
    stag = opt.get("stag", 0)
    if stag:
        if opt.get("emu"):
            seq += I([f"s_bitcmp1_b32 s2, 3", f"s_cselect_b32 s{S_CNT}, {(HI-LO)//2+opt['emu'][1]}, {(HI-LO)//2+opt['emu'][0]}",
                      "s_cselect_b32 s81, 4, 0", "s_add_u32 s82, s80, 4", "s_add_u32 s80, s80, s81"])
        elif opt.get("stagall"):
            seq += I([f"s_mov_b32 s{S_CNT}, {(HI-LO)//2+stag}"])
        elif opt.get("stagl", 1) == 1:
            seq += I([f"s_bitcmp1_b32 s2, {opt.get('stagbit',3)}", f"s_cselect_b32 s{S_CNT}, {(HI-LO)//2+stag}, s{S_CNT}"])
        else:
            seq += I([f"s_lshr_b32 s66, s2, 3", f"s_and_b32 s66, s66, {opt['stagl']}", f"s_mul_i32 s66, s66, {stag}", f"s_add_u32 s{S_CNT}, s{S_CNT}, s66"])
        stages[LO + 1] = stages[LO + 1] + I([f"s_and_b32 s{S_WO}, s{S_WO}, 0x3fffff", f"s_and_b32 s{S_XO}, s{S_XO}, 0xfffffbff", f"s_and_b32 s{S_XO2}, s{S_XO2}, 0xfffffbff"])
    seq, lg, vm = finalize_straight(seq, out, lg, vm, tag=tag + "q01", verbose=verbose)
    out += seq
    body = [Ins(".p2align 6"), Ins(f"L1_q{p}:")] + stages[LO] + stages[LO + 1] + \
           I([f"s_sub_u32 s{S_CNT}, s{S_CNT}, 1", f"s_cmp_lg_u32 s{S_CNT}, 0", f"s_cbranch_scc1 L1_q{p}"])
    body, lg, vm = finalize_loop(body, out, lg, vm, tag=tag + "qloop", verbose=verbose)
    out += body
    seq = []
    for s in range(HI, 32):
        if s == 26: seq += I(stamp(3, opt))
        seq += stages[s]
    TILES = [6, 0, 1, 2, 3, 4, 5] if p == 0 else [0, 1, 2, 3, 4, 5]
    U = len(TILES)
    E = Prog(); e = E.e
    E.extend(stamp(4, opt))
    e(f"s_mov_b32 s{S_T}, {f32bits(QSCALE):#x}\ns_mov_b32 s{S_T+1}, {f32bits(QSCALE):#x}")
    if p == 0 or opt.get("dyn"):
        e(f"v_mov_b32 v230, 0\ns_mov_b64 exec, 1\nbuffer_load_dword v251 , v230, s[{gen_op.SF}:{gen_op.SF+3}], s{gen_op.S_FW} offen sc1 nt\ns_mov_b64 exec, -1".replace("v251 ", "v253"))
        vmq.append(("T", "base"))
    if p == 0: e(f"v_subrev_u32 v{V_T}, {SLOT}, v{V_RW}")
    else: e(f"v_subrev_u32 v{V_T}, {SLOT+8192}, v{V_RW}")
    def readK(kts=(0, 1)):
        return [f"ds_read_b128 {ar(K_(kt,ds))}, v{V_KA} offset:{kt*4096+ds*256}" for kt in kts for ds in range(4)]
    def readV(dt):
        return [f"ds_read_b64_tr_b16 {ar(V_(dt)+2*kt,2)}, v{V_VA0+(dt&1)} offset:{kt*4096+(dt>>1)*256}" for kt in range(2)]
    MX = lambda c: 32 * c + 8 if c < 6 else 16
    def qk0(c, kt):
        d = vr(MX(c) + kt * 4)
        return [mf(d, ar(K_(kt, ds)), ar(Q_(c, ds)), "0" if ds == 0 else d) for ds in range(4)]
    def qk_all(nk): return [m for c in sorted(TILES) for kt in range(nk) for m in qk0(c, kt)]
    def conv(c, j2, ins1=(), ins2=()):
        r = QACC(c, j2, 0, p)
        for h in range(0, 8, 2): e(f"v_pk_mul_f32 v[{r+h}:{r+h+1}], v[{r+h}:{r+h+1}], s[{S_T}:{S_T+1}]")
        E.extend(ins1)
        for h in range(4): e(f"v_cvt_pk_bf16_f32 v{r+h}, v{r+2*h}, v{r+2*h+1}")
        E.extend(ins2)
        if c == 6 and p == 1: e(f"ds_write_b128 v{V_T}, {vr(r)} offset:{(j2&1)*1024}")
        else:
            for h in range(4): e(f"v_accvgpr_write_b32 a{Q_(c,j2)+h}, v{r+h}")
    for j2 in (2 * p, 2 * p + 1): conv(6, j2)
    e(f"s_waitcnt vmcnt({vm_wait({('KV',0)})}) lgkmcnt(0)\ns_barrier")
    E.extend(stamp(5, opt))
    assert LD < 4
    side = []
    if p == 0: side += [f"ds_read_b128 {ar(Q_(6, 2+i))}, v{V_T} offset:{i*1024}" for i in range(2)]
    side += readK() + [x for dt in range(8) for x in readV(dt)]
    for t in range(LD + 1):
        if t not in kv_at: side += dmaKV(((2 + t) % 5) * SLOT, t)
    side += [f"s_lshl_b32 s{S_PFO}, s2, 2\ns_add_u32 s{S_PFO}, s{S_PFO}, s{S_WAVE}", f"s_lshl_b32 s{S_PFO}, s{S_PFO}, 13"]
    side += [f"v_and_b32 v{V_T+2}, 3, v{V_LANE}", f"v_cmp_eq_u32 vcc, 0, v{V_T+2}\nv_mov_b32 v{V_T+2}, 0x3f803f80\ns_nop 0\nv_cndmask_b32 v{V_T+2}, 0, v{V_T+2}, vcc"]
    side += [f"v_accvgpr_write_b32 a{ONES+h}, v{V_T+2}" for h in range(4)]
    mq = []
    red = lambda c: [f"v_max3_f32 v{MX(c)}, v{MX(c)}, v{MX(c)+1}, v{MX(c)+2}", f"v_max_f32 v{MX(c)}, v{MX(c)}, v{MX(c)+3}"]
    for c in range(6):
        for j2 in range(4):
            n1 = 10 if c == 0 and j2 == 0 else 3
            s1, side = side[:n1], side[n1:]
            m1, mq = mq[:1], mq[1:]
            m2 = []
            if len(mq) > 3 - j2: m2, mq = mq[:1], mq[1:]
            conv(c, j2, m1 + s1, m2)
        mq += qk0(c, 0)
        if c == 0 and p == 0: mq += qk0(6, 0)
    E.extend(side); E.extend(mq)
    for c in TILES: E.extend(red(c))
    seq += E.ins
    seq, lg, vm = finalize_straight(seq, out, lg, vm, tag=tag + "qtail", verbose=verbose)
    out += seq
    E = Prog(); e = E.e
    e(f"L1_m{p}:")
    e("s_waitcnt lgkmcnt(0)")
    for c in TILES: e(f"v_mov_b32 v{MX(c)+1}, v{MX(c)}")
    for c in TILES: e(f"v_permlane32_swap_b32 v{MX(c)}, v{MX(c)+1}")
    for c in TILES: e(f"v_max_f32 v{MX(c)}, v{MX(c)}, v{MX(c)+1}\nv_mov_b32 v{MX(c)+1}, v{MX(c)}")
    for c in TILES: e(f"v_permlane16_swap_b32 v{MX(c)}, v{MX(c)+1}")
    for c in TILES: e(f"v_max_f32 v{MX(c)}, v{MX(c)}, v{MX(c)+1}")
    for c in TILES:
        for h in range(4): e(f"v_sub_f32 v{NEGM(c)+h}, 0, v{MX(c)}")
    e(f"s_mov_b32 s{S_DST}, {((3+LD)%5)*SLOT}\ns_mov_b32 s{S_RD}, {2*SLOT}")
    E.extend(stamp(6, opt))
    pre_a = E.ins

    T0 = opt.get("t0", 30)
    groups = opt.get("groups", [[[6, 0, 1, 2, 3, 4, 5]], [[0, 1, 2, 3, 4, 5]]])[p]
    visits = [(t, TILES) for t in range(T0)] + [(t, g) for g in groups for t in range(T0, 32)]
    units = [(t, c) for t, g in visits for c in g]
    vend = []
    for t, g in visits: vend.append((vend[-1] if vend else -1) + len(g))
    N = len(units)
    pl = Place()
    slot_start = []
    for n in range(N + 2):
        slot_start.append(len(pl.m))
        qk = units[n] if n < N else None
        sm = units[n - 1] if 1 <= n <= N else None
        pv = units[n - 2] if n >= 2 else None
        def Qm(kt, ds):
            if not qk: return None
            d = vr(S_(n % 2, kt))
            return mf(d, ar(K_(kt, ds)), ar(Q_(qk[1], ds)), vr(NEGM(qk[1])) if ds == 0 else d)
        fst = pv is not None and pv[0] == 0
        def Pm(dt):
            if not pv: return None
            d = O_(pv[1], dt)
            return mf(d, ar(V_(dt)), vr(P_(n % 2)), "0" if fst else d)
        def Lm():
            if not pv: return None
            d = ar(L_(pv[1]))
            return mf(d, ar(ONES), vr(P_(n % 2)), "0" if fst else d)
        sb = (n - 1) % 2
        def Ex(i): return [f"v_exp_f32 v{S_(sb,0)+i}, v{S_(sb,0)+i}"] if sm else []
        def Cv(i): return [f"v_cvt_pk_bf16_f32 v{P_(sb)+i}, v{S_(sb,0)+2*i}, v{S_(sb,0)+2*i+1}"] if sm else []
        pl.add(None, 0)
        for ds in range(4): pl.add(Qm(0, ds), 0, Ex(ds))
        pl.add(Pm(0), 1, Cv(0)); pl.add(Pm(1), 1, Cv(1))
        pl.add(Pm(2), 2); pl.add(Pm(3), 2)
        pl.add(None, 0)
        for ds in range(4): pl.add(Qm(1, ds), 0, Ex(4 + ds))
        pl.add(Pm(4), 1, Cv(2)); pl.add(Pm(5), 1, Cv(3))
        pl.add(Pm(6), 2); pl.add(Pm(7), 2)
        pl.add(Lm(), 2)
    slot_start.append(len(pl.m))
    G = lambda n, k: slot_start[n] + k
    at = lambda n, k, items: pl.at(G(n, k), items)
    kx, vx = opt.get("kx", 0), opt.get("vx", 0)
    slot_of = lambda t: ((2 + t) % 5) * SLOT
    for vi in range(len(visits) - 1):
        n = vend[vi]
        tail = vi + 1 > T0
        k0 = readK((0,)); k1 = readK((1,))
        W = (lambda nn, kk, x: None) if tail else (lambda nn, kk, x: at(nn, kk, [x]))
        if kx == 0 or tail:
            at(n, 7, k0[:2]); at(n, 8, k0[2:]); at(n, 16, k1[:2]); at(n, 17, k1[2:])
            W(n, 18, "s_waitcnt lgkmcnt(4)")
            W(n + 1, 8, "s_waitcnt lgkmcnt(0)")
        else:
            at(n + 1, 0, k0 + k1 + [f"s_waitcnt lgkmcnt({4 if kx == 1 else 0})"])
            if kx == 1: at(n + 1, 8, ["s_waitcnt lgkmcnt(0)"])
        m = n + 2
        v = [readV(dt) for dt in range(8)]
        if vx == 0 or tail:
            at(m, 5, v[0][:1]); at(m, 6, v[0][1:]); at(m, 7, v[1]); at(m, 8, v[2])
            at(m, 14, v[3][:1]); at(m, 15, v[3][1:]); at(m, 16, v[4]); at(m, 17, v[5]); at(m, 18, v[6])
            W(m + 1, 4, "s_waitcnt lgkmcnt(6)")
            at(m + 1, 5, v[7][:1]); at(m + 1, 6, v[7][1:])
            W(m + 1, 8, "s_waitcnt lgkmcnt(2)")
            W(m + 1, 16, "s_waitcnt lgkmcnt(0)")
        else:
            at(m + 1, 0 if vx == 1 else 4, [x for f in v for x in f])
            at(m + 1, 4, [f"s_waitcnt lgkmcnt({8 if vx < 3 else 0})"])
            if vx < 3: at(m + 1, 8, ["s_waitcnt lgkmcnt(0)"])
        if not tail:
            T4 = S_T + 4
            at(n - 1, 5, [f"s_add_u32 s{T4}, s{S_RD}, {SLOT}"])
            at(n - 1, 7, [f"s_cmp_eq_u32 s{T4}, {SLOT*NSLOT}\ns_cselect_b32 s{T4}, 0, s{T4}"])
            at(n - 1, 14, [f"s_sub_u32 s{S_DELTA}, s{T4}, s{S_RD}"]); at(n - 1, 15, [f"s_mov_b32 s{S_RD}, s{T4}"])
            adv = lambda r: f"v_add_u32 v{r}, s{S_DELTA}, v{r}"
        else:
            d = slot_of(visits[vi + 1][0]) - slot_of(visits[vi][0])
            adv = lambda r: f"v_add_u32 v{r}, {d}, v{r}" if d >= 0 else f"v_subrev_u32 v{r}, {-d}, v{r}"
        pl.g[G(n, 5)].insert(len(pl.g[G(n, 5)]), adv(V_KA)); pl.cap[G(n, 5)] -= 1
        at(n + 1, 14, [adv(V_VA0)]); at(n + 1, 15, [adv(V_VA1)])
    BP = opt.get("bp", 3)
    NIT = (T0 - 2) // 2
    assert (T0 - 2) % 2 == 0
    for j in range(31):
        if j < T0:
            g = G(U * j + BP, 0); nxt = G(U * (j + 1) + BP, 0) if j + 1 < T0 else G(vend[j + 1], 0)
        else:
            g = G(vend[j], 0)
        if j >= T0 or j == 30:
            w = 0 if j == 30 else min(8 * (LD - 1), vm_wait({('KV', j + 1)}))
            pl.g[g] += [f"s_waitcnt vmcnt({w})", "s_barrier"]
            if j == 30:
                pf = [f"buffer_load_dword v255, v{V_PF}, s[56:59], s{S_PFO} offen"]
                for k in opt.get("wored", []):
                    pf += [f"s_xor_b32 s54, s{S_PFO}, {k << 15}", f"buffer_load_dword v255, v{V_PF}, s[56:59], s54 offen"]
                if opt.get("wost") is None and not opt.get("wothin"): pl.put(g + 1, pf)
            continue
        assert j + LD + 1 >= 31 or j + 1 < T0 or True
        pl.g[g] += [f"s_waitcnt vmcnt({min(8 * (LD - 1), vm_wait({('KV', j + 1)}))})", "s_barrier"]
        dm = dmaKV(f"s{S_DST}", j + LD + 1) + ring_next(S_DST)
        if opt.get("dmadelay") is None:
            pl.spread(g, min(nxt, G(U * (j + 1), 0)), dm, vmcap=opt.get("vmcap", 2), group=opt.get("dmagroup", 8))
        else:
            full = G(U * (j + 1) + BP, 0)
            lo = g + int((full - g) * opt["dmadelay"])
            pl.spread(lo, min(full, max(nxt, lo + 60)), dm, vmcap=1, group=8)
    if opt.get("wearly", 1): pl.g[G(N + 1, 0)] += ["s_waitcnt lgkmcnt(0)", "s_barrier"]
    assert T0 - 1 + LD + 1 >= 31, "all steps must have been issued before the tail"
    assert T0 - 1 + LD + 1 - 5 < T0, "dummy loads must not overwrite live tail slots"
    R_ = lambda c: NEGM(c)
    V_SA, V_SUM = 253, 254
    def norm_store(r, rc, j, mt, packed):
        L = []
        if packed:
            for h in range(0, 8, 2): L.append(f"v_pk_mul_f32 v[{r+h}:{r+h+1}], v[{r+h}:{r+h+1}], v[{rc}:{rc+1}] op_sel_hi:[1,0]")
        else:
            for h in range(8): L.append(f"v_mul_f32 v{r+h}, v{r+h}, v{rc}")
        for h in range(4): L.append(f"v_cvt_pk_bf16_f32 v{r+h}, v{r+2*h}, v{r+2*h+1}")
        L.append(f"s_add_u32 s{S_T+5}, s{S_T+3}, {(j*13+mt)*1024}")
        L.append(f"buffer_store_dwordx4 {vr(r)}, v{V_SA}, s[20:23], s{S_T+5} offen {opt.get('osf','')}")
        return L
    done = []
    def finish(c, packed):
        L = [f"v_accvgpr_read_b32 v{R_(c)+2}, a{L_(c)}", f"v_rcp_f32 v{R_(c)}, v{R_(c)+2}",
             f"v_add_f32 v{V_SUM}, v{V_SUM}, v{R_(c)+2}" if done else f"v_mov_b32 v{V_SUM}, v{R_(c)+2}"]
        for j in range(4):
            if c < 6: L += norm_store(c * 32 + j * 8, R_(c), j, mt_of(c), packed)
            else:
                stg = done[0] * 32 + j * 8
                L += [f"v_accvgpr_read_b32 v{stg+i}, a{208+8*j+i}" for i in range(8)] + norm_store(stg, R_(c), j, 12, packed)
        done.append(c)
        return L
    at(U * T0, 7, [f"v_lshlrev_b32 v{V_SA}, 4, v{V_LANE}", f"s_lshl_b32 s{S_T+3}, s{S_HP}, 1"])
    at(U * T0, 8, [f"s_add_u32 s{S_T+3}, s{S_T+3}, s{S_HH}", f"s_mul_i32 s{S_T+3}, s{S_T+3}, {4*13*1024}"])
    late = []
    pos = 0
    dens = opt.get("dens", 2)
    order = [n for n, (t, c) in enumerate(units) if t == 31]
    pend6 = None
    for n in order:
        c = units[n][1]
        if c == 6 and not done: pend6 = n; continue
        todo = [c] + ([6] if pend6 is not None else [])
        pend6 = None
        for cc in todo:
            start = G(n + 3, 1) if n + 3 <= N + 1 else len(pl.m)
            if start >= len(pl.m) - 4 or late or not opt.get("prog", 1): late.append(cc); continue
            pos = max(pos, start)
            items = finish(cc, False)
            k = 0
            while k < len(items) and pos < len(pl.m):
                if pl.m[pos]:
                    room = max(pl.cap[pos], 0) + (dens - 2 if pl.cap[pos] > 0 else dens - 2)
                    room = max(room, 0)
                    take = items[k:k + room]; pl.at(pos, take); k += len(take)
                pos += 1
            if k < len(items): pl.at(len(pl.m) - 1, items[k:]); pos = len(pl.m)
    cap = []
    if p == 0 or opt.get("dyn"): cap = I([f"s_cmp_lg_u32 s{S_FLAG}, 0\ns_cbranch_scc1 L1_nb{p}", f"v_readfirstlane_b32 s{gen_op.S_BASE}, v253", f"L1_nb{p}:"])
    seq = pre_a + pl.ins(0, G(2 * U, 0)) + cap + I(stamp(7, opt)) + [Ins(f"s_mov_b32 s{S_CNT}, {NIT}")]
    seq, lg, vm = finalize_straight(seq, out, lg, vm, tag=tag + "a0", verbose=verbose)
    out += seq
    per = G(4 * U, 0) - G(2 * U, 0)
    for it in range(1, NIT):
        for k in range(per):
            a, b = G(2 * U, 0) + k, G(2 * U, 0) + it * per + k
            assert pl.m[a] == pl.m[b] and pl.g[a] == pl.g[b], (it, k, pl.m[a], pl.m[b], pl.g[a], pl.g[b])
    lst = []
    if opt.get("prof2"):
        lst = I(["s_waitcnt lgkmcnt(0)", "s_memrealtime s[98:99]", "s_memtime s[100:101]", f"s_add_u32 s52, s{S_CNT}, 1", "s_and_b32 s52, s52, 0xfe", "s_sub_u32 s52, 38, s52", "s_add_u32 s53, s52, 1",
                 "s_waitcnt lgkmcnt(0)", "v_mov_b32 v252, s98", f"v_cmp_eq_u32 vcc, s52, v{V_LANE}", "v_cndmask_b32 v251, v251, v252, vcc",
                 "v_mov_b32 v252, s100", f"v_cmp_eq_u32 vcc, s53, v{V_LANE}", "v_cndmask_b32 v251, v251, v252, vcc"])
    body = [Ins(".p2align 6"), Ins(f"L1_a{p}:")] + pl.ins(G(2 * U, 0), G(4 * U, 0)) + lst + \
           I([f"s_sub_u32 s{S_CNT}, s{S_CNT}, 1", f"s_cmp_lg_u32 s{S_CNT}, 0", f"s_cbranch_scc1 L1_a{p}"])
    body, lg, vm = finalize_loop(body, out, lg, vm, tag=tag + "aloop", verbose=verbose)
    out += body
    seq = I(stamp(8, opt)) + pl.ins(G(T0 * U, 0), len(pl.m))
    E = Prog(); e = E.e
    e(f"L1_e{p}:")
    E.extend(stamp(9, opt))
    xs = 139264
    if opt.get("wearly", 1) == 1:
        E.extend(gen_op.op_vector_setup(opt, V_LANE, S_WAVE, S_HP)); E.extend(gen_op.w_first(opt))
    if 6 in late and not done: late = [c for c in late if c != 6][:1] + [6] + [c for c in late if c != 6][1:]
    for c in late: E.extend(finish(c, True))
    e(f"v_lshlrev_b32 v{V_T}, 2, v{V_LANE}\nv_add_u32 v{V_T}, {xs}, v{V_T}\ns_lshl_b32 s{S_T+2}, s{S_WAVE}, 8\nv_add_u32 v240, s{S_T+2}, v{V_T}")
    e(f"ds_write_b32 v240, v{V_SUM}")
    E.extend(stamp(10, opt))
    if opt.get("wearly", 1) != 1: E.extend(gen_op.op_vector_setup(opt, V_LANE, S_WAVE, S_HP))
    if opt.get("wearly", 1) == 2: E.extend(gen_op.w_first(opt))
    if opt.get("dyn"): e(f"s_lshl_b32 s{S_T+6}, 1, s{S_HP}\nv_mov_b32 v241, s{S_T+6}")
    else: e("v_mov_b32 v241, 1")
    if opt.get("dyn") and opt.get("prepoll", 1): e(gen_op.pollw())
    e("s_waitcnt vmcnt(0) lgkmcnt(0)\ns_barrier")
    for w in range(4): e(f"ds_read_b32 v{216+w}, v{V_T} offset:{w*256}")
    e(f"s_mov_b32 s{S_T+5}, 0x5f800000")
    e("v_add_f32 v216, v216, v217\nv_add_f32 v218, v218, v219\nv_add_f32 v216, v216, v218")
    e(f"v_cmp_ngt_f32 vcc, s{S_T+5}, v216")
    e(f"s_cmp_lg_u32 s{S_FLAG}, 0\ns_cbranch_scc1 L1_ok{p}")
    e(f"s_cbranch_vccnz L1_fb{p}")
    e(f"L1_ok{p}:")
    E.extend(stamp(20, opt))
    if p == 0:
        e(f"s_cmp_lg_u32 s{S_WAVE}, 0\ns_cbranch_scc1 L2_main")
        if opt.get("dyn"): e(f"s_and_b32 s{S_T+6}, s{S_HP}, 3\ns_lshl_b32 s{gen_op.S_FP}, s{S_B}, 2\ns_add_u32 s{gen_op.S_FP}, s{gen_op.S_FP}, s{S_T+6}\ns_mul_i32 s{gen_op.S_FP}, s{gen_op.S_FP}, {gen_op.FSTRIDE}\ns_mov_b64 exec, 1")
        else: e(f"s_mul_i32 s{gen_op.S_FP}, s{S_B}, {gen_op.FSTRIDE}\ns_mov_b64 exec, 1")
        e(f"buffer_atomic_add v241, v{gen_op.V_ZERO}, s[{gen_op.SF}:{gen_op.SF+3}], s{gen_op.S_FP} offen sc1")
        e(f"buffer_atomic_add v241, v{gen_op.V_ZERO}, s[76:79], s80 offen sc1\ns_mov_b64 exec, -1")
    e("s_branch L2_main")
    seq += E.ins
    seq, lg, vm = finalize_straight(seq, out, lg, vm, tag=tag + "tail", verbose=verbose)
    out += seq
    F = Prog(); e = F.e
    e(f"L1_fb{p}:")
    e("s_waitcnt vmcnt(0) lgkmcnt(0)\ns_barrier")
    back = (2 - (2 + 31) % 5) * SLOT
    assert back < 0
    for r in (V_KA, V_VA0, V_VA1): e(f"v_subrev_u32 v{r}, {-back}, v{r}")
    for c in TILES: e(f"v_mov_b32 v{24+c}, 0xff800000")
    e(KVRST + f"\ns_mov_b32 s{S_CNT}, 32\ns_mov_b32 s{S_FLAG}, 1")
    fpre, _, _ = finalize_straight(F.ins, [], [], [], tag=tag + "fb0")
    F = Prog(); e = F.e
    e(f"L1_fl{p}:")
    F.extend(dmaKV(2 * SLOT, 0, track=False))
    e("s_waitcnt vmcnt(0)\ns_barrier")
    F.extend(readK())
    F.extend(qk_all(2))
    for c in sorted(TILES):
        r = MX(c)
        e(f"v_max3_f32 v{r}, v{r}, v{r+1}, v{r+2}\nv_max3_f32 v{r+3}, v{r+3}, v{r+4}, v{r+5}\nv_max3_f32 v{r}, v{r}, v{r+6}, v{r+7}")
        e(f"v_max3_f32 v{24+c}, v{24+c}, v{r}, v{r+3}")
    e("s_barrier")
    e(f"s_sub_u32 s{S_CNT}, s{S_CNT}, 1\ns_cmp_lg_u32 s{S_CNT}, 0\ns_cbranch_scc1 L1_fl{p}")
    fl, _, _ = finalize_loop(F.ins, fpre, [], [], tag=tag + "fbl")
    F = Prog(); e = F.e
    e(KVRST)
    for t in range(LD + 1): F.extend(dmaKV(((2 + t) % 5) * SLOT, t, track=False))
    for c in TILES: e(f"v_mov_b32 v{MX(c)}, v{24+c}")
    e("s_waitcnt vmcnt(0)\ns_barrier")
    F.extend(readK())
    for dt in range(8): F.extend(readV(dt))
    e(f"s_branch L1_m{p}")
    fpost, _, _ = finalize_straight(F.ins, fl, [], [], tag=tag + "fb2")
    out += fpre + fl + fpost
    return out
```
